```python
import torch

def _softmax(x, axis=-1):
    return torch.softmax(x, dim=axis)
def _gelu(x):
    return torch.nn.functional.gelu(x, approximate="tanh")
def _silu(x):
    return torch.nn.functional.silu(x)
def _sigmoid(x):
    return torch.sigmoid(x)
def _layernorm(x, axis=-1, eps=1e-5):
    m = x.mean(dim=axis, keepdim=True)
    v = x.var(dim=axis, keepdim=True, unbiased=False)
    return (x - m) / torch.sqrt(v + eps)
def _scatter_add(tgt, idx, src, axis=0):
    return tgt.clone().index_add_(axis, idx, src)
def _segment_sum(src, seg, n):
    out = torch.zeros((n,) + src.shape[1:], dtype=src.dtype)
    return out.index_add_(0, seg, src)
def _pad(x, pw):
    flat = tuple(v for pair in reversed(pw) for v in pair)
    return torch.nn.functional.pad(x, flat)

kernel_name = 'standalone__deep_cross_wide_deep__recsys'

def setup_inputs():

    _w = (lambda a: (lambda t: t.to(torch.bfloat16) if t.is_floating_point() else t)(torch.as_tensor(a)))
    B, F, D = 16384, 100, 32
    V, Nd = min(100000, 100000), 13
    Din = F * D
    H = 4 * D
    return {
        "idx": _w((lambda lo, hi, *s: torch.randint(lo, hi, s))(0, V, B, F).to(torch.int64)),
        "table": _w((lambda *s: torch.randn(*s, dtype=torch.bfloat16) * 1.6)(V, D) * 0.05),
        "x_wide": _w((lambda *s: torch.randn(*s, dtype=torch.bfloat16) * 0.8)(B, Nd)),
        "w_wide": _w((lambda *s: torch.randn(*s, dtype=torch.bfloat16) * 0.8)(Nd) * 0.05),
        "b_wide": _w((lambda *s: torch.randn(*s, dtype=torch.bfloat16) * 0.8)(1) * 0.01),
        "W1": _w((lambda *s: torch.randn(*s, dtype=torch.bfloat16) * 1.6)(Din, H) * (2.0 / Din) ** 0.5),
        "b1": _w((lambda *s: torch.randn(*s, dtype=torch.bfloat16) * 1.6)(H) * 0.01),
        "W2": _w((lambda *s: torch.randn(*s, dtype=torch.bfloat16) * 1.6)(H) * (1.0 / H) ** 0.5),
        "b2": _w((lambda *s: torch.randn(*s, dtype=torch.bfloat16) * 1.6)(1) * 0.01),
    }

def reference(idx, table, x_wide, w_wide, b_wide, W1, b1, W2, b2):
    emb = table[idx]
    deep_in = emb.reshape(emb.shape[0], -1)
    h = deep_in @ W1 + b1
    h = h * (lambda x, dt: x.to(dt))(h > 0, h.dtype)
    deep_logit = h @ W2 + b2
    wide_logit = x_wide @ w_wide + b_wide
    return _sigmoid(wide_logit + deep_logit)
```

```python
import sys

NAME = "standalone__deep_cross_wide_deep__recsys"
HEADER = open("cdna_kernels/" + NAME + ".s.ref").read().split("; Override launch geometry")[0]

def gen(diag=False, rot=True, nslots=5):
    L = []
    def e(s=""): L.append("    " + s if s and not s.endswith(":") else s)
    NS = nslots
    PD = NS - 1
    IDX = 0
    XW = 25600
    B1 = XW + 2048
    W2 = B1 + 1024
    RING = W2 + 1024
    SLOT = 24576
    RED = IDX
    LDS_TOTAL = RING + NS * SLOT
    assert LDS_TOTAL <= 163840
    S_IDX, S_TAB, S_W1, S_MISC, S_OUT, S_SM = 8, 12, 16, 20, 24, 28
    sW, sW1024, sWw, sRd, sLd, sP, sFoff, sP8, sCnt, sT0, sT1 = 56, 57, 58, 59, 60, 61, 62, 63, 64, 65, 66
    sWW = 68
    sBW, sB2 = 81, 82
    sWg = 83
    sWoff = 84
    sTS = 86
    vLane, vPiece, vWoff, vIdxB, vE0c, vE1c, vB0c, vB1c = 1, 2, 3, 4, 5, 6, 7, 8
    vI0, vI1, vO0, vO1, vT = 10, 11, 12, 13, 14
    vE0, vE1, vB0, vB1 = 16, 17, 18, 19
    vFR = 20
    vW2 = 68
    vACC = 100
    vX = 132

    e(f"s_cmp_ge_u32 s2, 256")
    e(f"s_cbranch_scc1 L_end")
    if diag: e(f"s_memrealtime s[{sTS}:{sTS+1}]")
    e("s_load_dwordx16 s[36:51], s[0:1], 0")
    e("s_load_dwordx4 s[52:55], s[0:1], 64")
    if diag: e("s_load_dwordx2 s[90:91], s[0:1], 88")
    e(f"s_mov_b32 s{sWg}, s2")
    e(f"v_and_b32 v{vLane}, 63, v0")
    e(f"v_lshrrev_b32 v{vT}, 6, v0")
    e("s_nop 0")
    e(f"v_readfirstlane_b32 s{sW}, v{vT}")
    e(f"v_and_b32 v{vX}, 3, v{vLane}")
    e(f"v_bfe_u32 v{vX+1}, v{vLane}, 4, 2")
    e(f"v_xor_b32 v{vX}, v{vX}, v{vX+1}")
    e(f"v_lshlrev_b32 v{vPiece}, 4, v{vX}")
    e(f"v_and_b32 v{vX}, 15, v{vLane}")
    e(f"v_lshlrev_b32 v{vX+2}, 2, v{vX+1}")
    e(f"v_xor_b32 v{vX}, v{vX}, v{vX+2}")
    e(f"v_lshlrev_b32 v{vX}, 4, v{vX}")
    e(f"v_lshl_add_u32 v{vWoff}, v{vX+1}, 8, v{vX}")
    e(f"v_lshlrev_b32 v{vT}, 4, v{vLane}")
    e(f"s_lshl_b32 s{sW1024}, s{sW}, 10")
    e(f"s_lshl_b32 s{sWoff}, s{sW}, 12")
    e(f"s_add_u32 s{sWw}, s{sWoff}, 8192")
    if rot:
        e(f"s_lshr_b32 s{sP}, s2, 3")
        e(f"s_mul_i32 s{sP}, s{sP}, 25")
        e(f"s_lshr_b32 s{sP}, s{sP}, 4")
    else:
        e(f"s_mov_b32 s{sP}, 0")
    e("s_waitcnt lgkmcnt(0)")
    def srd(d, p, size):
        e(f"s_mov_b32 s{d}, s{p}")
        e(f"s_and_b32 s{d+1}, s{p+1}, 0xffff")
        e(f"s_mov_b32 s{d+2}, {size}")
        e(f"s_mov_b32 s{d+3}, 0x20000")
    srd(S_IDX, 36, 16384*400)
    srd(S_TAB, 38, 100000*64)
    srd(S_W1, 46, 3200*256)
    srd(S_OUT, 54, 16384*2)
    e(f"s_mul_i32 s{sT0}, s{sWg}, 25600")
    e(f"s_mul_i32 s{sT1}, s{sW}, 6144")
    e(f"s_add_u32 s{sT0}, s{sT0}, s{sT1}")
    e(f"s_add_u32 m0, s{sT1}, {IDX}")
    e("s_nop 0")
    for j in range(4):
        e(f"buffer_load_dwordx4 v{vT}, s[{S_IDX}:{S_IDX+3}], s{sT0} offen offset:{j*1024} lds")
    e(f"s_add_u32 m0, m0, 4096")
    e(f"s_add_u32 s{sT0}, s{sT0}, 4096")
    for j in range(3):
        e(f"buffer_load_dwordx4 v{vT}, s[{S_IDX}:{S_IDX+3}], s{sT0} offen offset:{j*1024} lds")
    e(f"s_cmp_lt_u32 s{sW}, 2")
    e(f"s_cselect_b32 s{S_MISC}, s40, s48")
    e(f"s_cselect_b32 s{S_MISC+1}, s41, s49")
    e(f"s_mov_b32 s{S_MISC+2}, 256")
    e(f"s_cselect_b32 s{S_MISC+2}, {16384*26}, s{S_MISC+2}")
    e(f"s_cmp_eq_u32 s{sW}, 3")
    e(f"s_cselect_b32 s{S_MISC}, s50, s{S_MISC}")
    e(f"s_cselect_b32 s{S_MISC+1}, s51, s{S_MISC+1}")
    e(f"s_and_b32 s{S_MISC+1}, s{S_MISC+1}, 0xffff")
    e(f"s_mov_b32 s{S_MISC+3}, 0x20000")
    e(f"s_mul_i32 s{sT0}, s{sWg}, 1664")
    e(f"s_add_u32 s{sT0}, s{sT0}, s{sW1024}")
    e(f"s_cmp_lt_u32 s{sW}, 2")
    e(f"s_cselect_b32 s{sT0}, s{sT0}, 0")
    e(f"s_add_u32 m0, s{sW1024}, {XW}")
    e("s_nop 0")
    e(f"buffer_load_dwordx4 v{vT}, s[{S_MISC}:{S_MISC+3}], s{sT0} offen lds")
    e(f"v_lshlrev_b32 v{vX+4}, 1, v{vLane}")
    for (p, size, dst) in ((42, 26, vX+5), (44, 2, vX+6), (52, 2, vX+7)):
        srd(S_SM, p, size)
        e(f"buffer_load_ushort v{dst}, v{vX+4}, s[{S_SM}:{S_SM+3}], 0 offen")
        e("s_nop 0")
    NMISC = 7 + 1 + 3
    def next_pair(sreg):
        e(f"s_add_u32 s{sreg}, s{sreg}, 1")
        e(f"s_cmp_ge_u32 s{sreg}, 50")
        e(f"s_cselect_b32 s{sreg}, 0, s{sreg}")
    def w_loads(slot_sreg_or_imm, pair_sreg):
        if isinstance(slot_sreg_or_imm, int):
            e(f"s_add_u32 m0, s{sWw}, {slot_sreg_or_imm}")
        else:
            e(f"s_add_u32 m0, s{sWw}, {slot_sreg_or_imm}")
        e(f"s_lshl_b32 s{sFoff}, s{pair_sreg}, 14")
        e(f"s_add_u32 s{sFoff}, s{sFoff}, s{sWoff}")
        for q in range(4):
            e(f"buffer_load_dwordx4 v{vWoff}, s[{S_W1}:{S_W1+3}], s{sFoff} offen offset:{q*1024} lds")
    sPt = 85
    e(f"s_mov_b32 s{sPt}, s{sP}")
    for st in range(PD):
        w_loads(RING + st*SLOT, sPt)
        next_pair(sPt)
    e(f"v_lshrrev_b32 v{vX}, 2, v{vLane}")
    e(f"s_lshl_b32 s{sT0}, s{sW}, 4")
    e(f"v_add_u32 v{vX}, s{sT0}, v{vX}")
    e(f"v_mul_u32_u24 v{vIdxB}, 400, v{vX}")
    e(f"s_lshr_b32 s{sT0}, s{sW}, 1")
    e(f"s_lshl_b32 s{sT0}, s{sT0}, 11")
    e(f"v_and_b32 v{vX}, 31, v{vLane}")
    e(f"v_lshlrev_b32 v{vX}, 6, v{vX}")
    e(f"v_add_u32 v{vX}, s{sT0}, v{vX}")
    e(f"v_lshrrev_b32 v{vX+1}, 5, v{vLane}")
    e(f"v_bfe_u32 v{vX+2}, v{vLane}, 2, 2")
    e(f"v_xor_b32 v{vX+3}, v{vX+1}, v{vX+2}")
    e(f"v_lshl_add_u32 v{vE0c}, v{vX+3}, 4, v{vX}")
    e(f"v_xor_b32 v{vX+3}, 2, v{vX+3}")
    e(f"v_lshl_add_u32 v{vE1c}, v{vX+3}, 4, v{vX}")
    e(f"v_bfe_u32 v{vX}, v{vLane}, 2, 2")
    e(f"v_lshl_add_u32 v{vX+2}, v{vX+1}, 3, v{vX}")
    e(f"v_lshlrev_b32 v{vX+2}, 8, v{vX+2}")
    e(f"v_bfe_u32 v{vX+3}, v{vLane}, 4, 1")
    e(f"v_lshlrev_b32 v{vX+3}, 1, v{vX+3}")
    e(f"v_bfe_u32 v{vX+8}, v{vLane}, 1, 1")
    e(f"v_add_u32 v{vX+3}, v{vX+3}, v{vX+8}")
    e(f"s_and_b32 s{sT0}, s{sW}, 1")
    e(f"s_lshl_b32 s{sT0}, s{sT0}, 3")
    e(f"v_add_u32 v{vX+3}, s{sT0}, v{vX+3}")
    e(f"v_lshlrev_b32 v{vX}, 2, v{vX}")
    e(f"v_and_b32 v{vX+8}, 1, v{vLane}")
    e(f"v_lshlrev_b32 v{vX+8}, 3, v{vX+8}")
    e(f"v_add_u32 v{vX+2}, v{vX+2}, v{vX+8}")
    e(f"v_add_u32 v{vX+2}, 8192, v{vX+2}")
    e(f"v_xor_b32 v{vX+9}, v{vX+3}, v{vX}")
    e(f"v_lshl_add_u32 v{vB0c}, v{vX+9}, 4, v{vX+2}")
    e(f"v_or_b32 v{vX+3}, 4, v{vX+3}")
    e(f"v_xor_b32 v{vX+9}, v{vX+3}, v{vX}")
    e(f"v_lshl_add_u32 v{vB1c}, v{vX+9}, 4, v{vX+2}")
    e(f"s_waitcnt vmcnt({PD*4})")
    e("s_barrier")
    e(f"v_lshlrev_b32 v{vX+5}, 16, v{vX+5}")
    e(f"v_lshlrev_b32 v{vX+6}, 16, v{vX+6}")
    e(f"v_lshlrev_b32 v{vX+7}, 16, v{vX+7}")
    e("s_nop 0")
    for j in range(13):
        e(f"v_readlane_b32 s{sWW+j}, v{vX+5}, {j}")
    e(f"v_readlane_b32 s{sBW}, v{vX+6}, 0")
    e(f"v_readlane_b32 s{sB2}, v{vX+7}, 0")
    e(f"s_mov_b32 s{sPt}, s{sP}")
    for st in range(PD):
        e(f"s_lshl_b32 s{sP8}, s{sPt}, 3")
        e(f"v_add_u32 v{vT}, s{sP8}, v{vIdxB}")
        e(f"ds_read_b64 v[{vFR+2*st}:{vFR+2*st+1}], v{vT}")
        next_pair(sPt)
    e(f"s_lshl_b32 s{sP8}, s{sPt}, 3")
    e(f"v_add_u32 v{vT}, s{sP8}, v{vIdxB}")
    e(f"ds_read_b64 v[{vI0}:{vI1}], v{vT}")
    for st in range(PD):
        e(f"s_waitcnt lgkmcnt({PD-st})")
        e(f"v_lshl_add_u32 v{vO0}, v{vFR+2*st}, 6, v{vPiece}")
        e(f"v_lshl_add_u32 v{vO1}, v{vFR+2*st+1}, 6, v{vPiece}")
        e(f"s_add_u32 m0, s{sW1024}, {RING+st*SLOT}")
        e("s_nop 0")
        e(f"buffer_load_dwordx4 v{vO0}, s[{S_TAB}:{S_TAB+3}], 0 offen lds")
        e(f"s_add_u32 m0, m0, 4096")
        e("s_nop 0")
        e(f"buffer_load_dwordx4 v{vO1}, s[{S_TAB}:{S_TAB+3}], 0 offen lds")
    e(f"s_and_b32 s{sT0}, s{sW}, 1")
    e(f"s_lshl_b32 s{sT0}, s{sT0}, 7")
    e(f"v_lshrrev_b32 v{vX}, 5, v{vLane}")
    e(f"v_lshlrev_b32 v{vX}, 3, v{vX}")
    e(f"v_add_u32 v{vX}, s{sT0}, v{vX}")
    for (base, dst) in ((B1, vACC), (W2, vW2)):
        for c in range(2):
            for q in range(4):
                e(f"ds_read_b64 v[{vFR+16+(c*4+q)*2}:{vFR+16+(c*4+q)*2+1}], v{vX} offset:{base + (32*c+8*q)*2}")
        e("s_waitcnt lgkmcnt(0)")
        for c in range(2):
            for q in range(4):
                s0 = vFR+16+(c*4+q)*2
                d = dst + c*16 + q*4
                e(f"v_lshlrev_b32 v{d}, 16, v{s0}")
                e(f"v_and_b32 v{d+1}, 0xffff0000, v{s0}")
                e(f"v_lshlrev_b32 v{d+2}, 16, v{s0+1}")
                e(f"v_and_b32 v{d+3}, 0xffff0000, v{s0+1}")
    e(f"s_mov_b32 s{sLd}, {RING + PD*SLOT}")
    e(f"s_mov_b32 s{sRd}, {RING}")

    def bump_slot(sreg):
        e(f"s_add_u32 s{sreg}, s{sreg}, {SLOT}")
        e(f"s_cmp_ge_u32 s{sreg}, {RING + NS*SLOT}")
        e(f"s_cselect_b32 s{sreg}, {RING}, s{sreg}")

    def stage(wait, load):
        e(f"s_waitcnt vmcnt({wait})")
        e("s_barrier")
        if load:
            e(f"v_lshl_add_u32 v{vO0}, v{vI0}, 6, v{vPiece}")
            e(f"v_lshl_add_u32 v{vO1}, v{vI1}, 6, v{vPiece}")
            e(f"s_add_u32 m0, s{sLd}, s{sW1024}")
            e("s_nop 0")
            e(f"buffer_load_dwordx4 v{vO0}, s[{S_TAB}:{S_TAB+3}], 0 offen lds")
            e(f"s_add_u32 m0, m0, 4096")
            e("s_nop 0")
            e(f"buffer_load_dwordx4 v{vO1}, s[{S_TAB}:{S_TAB+3}], 0 offen lds")
            w_loads(f"s{sLd}", sPt)
            next_pair(sPt)
            bump_slot(sLd)
            e(f"s_lshl_b32 s{sP8}, s{sPt}, 3")
            e(f"v_add_u32 v{vT}, s{sP8}, v{vIdxB}")
            e(f"ds_read_b64 v[{vI0}:{vI1}], v{vT}")
        e(f"v_add_u32 v{vE0}, s{sRd}, v{vE0c}")
        e(f"v_add_u32 v{vE1}, s{sRd}, v{vE1c}")
        e(f"v_add_u32 v{vB0}, s{sRd}, v{vB0c}")
        e(f"v_add_u32 v{vB1}, s{sRd}, v{vB1c}")
        def grp(g):
            j, s = g >> 1, g & 1
            r = vFR + g*12
            e(f"ds_read_b128 v[{r}:{r+3}], v{vE1 if s else vE0} offset:{j*4096}")
            for c in range(2):
                for t in range(2):
                    d = r + 4 + c*4 + t*2
                    e(f"ds_read_b64_tr_b16 v[{d}:{d+1}], v{vB1 if c else vB0} offset:{j*8192 + s*4096 + t*1024}")
        def mm(g):
            r = vFR + g*12
            for c in range(2):
                a = vACC + c*16
                e(f"v_mfma_f32_32x32x16_bf16 v[{a}:{a+15}], v[{r+4+c*4}:{r+7+c*4}], v[{r}:{r+3}], v[{a}:{a+15}]")
        grp(0); grp(1)
        e("s_waitcnt lgkmcnt(5)"); mm(0)
        grp(2)
        e("s_waitcnt lgkmcnt(5)"); mm(1)
        grp(3)
        e("s_waitcnt lgkmcnt(5)"); mm(2)
        e("s_waitcnt lgkmcnt(0)"); mm(3)
        bump_slot(sRd)

    NST = 50
    per = 6
    for i in range(PD-1):
        stage(2*(PD-1-i) + per*i, True)
    nloop = (NST - PD) - (PD-1)
    e(f"s_mov_b32 s{sCnt}, {nloop}")
    e("L_loop:")
    stage(per*(PD-1), True)
    e(f"s_sub_u32 s{sCnt}, s{sCnt}, 1")
    e(f"s_cmp_lg_u32 s{sCnt}, 0")
    e("s_cbranch_scc1 L_loop")
    for i in range(PD):
        stage(per*(PD-1-i), False)
    e("s_nop 15")
    e(f"v_mov_b32 v{vX}, 0")
    e(f"v_mov_b32 v{vX+1}, 0")
    for c in range(2):
        for r in range(16):
            a = vACC + c*16 + r
            e(f"v_max_f32 v{a}, 0, v{a}")
            e(f"v_fmac_f32 v{vX + (r&1)}, v{a}, v{vW2 + c*16 + r}")
    e(f"v_add_f32 v{vX}, v{vX}, v{vX+1}")
    e(f"s_lshl_b32 s{sT0}, s{sW}, 8")
    e(f"v_lshlrev_b32 v{vX+2}, 2, v{vLane}")
    e(f"v_add_u32 v{vX+2}, s{sT0}, v{vX+2}")
    e(f"ds_write_b32 v{vX+2}, v{vX} offset:{RED}")
    e("s_waitcnt lgkmcnt(0)")
    e("s_barrier")
    e(f"s_cmp_lg_u32 s{sW}, 0")
    e("s_cbranch_scc1 L_end")
    e(f"v_lshrrev_b32 v{vX}, 5, v{vLane}")
    e(f"v_lshlrev_b32 v{vX}, 9, v{vX}")
    e(f"v_and_b32 v{vX+1}, 31, v{vLane}")
    e(f"v_lshl_add_u32 v{vX}, v{vX+1}, 2, v{vX}")
    for k in range(4):
        e(f"ds_read_b32 v{vX+2+k}, v{vX} offset:{RED + k*128}")
    e(f"v_mul_u32_u24 v{vX+6}, 26, v{vLane}")
    for j in range(13):
        e(f"ds_read_u16 v{vFR+j}, v{vX+6} offset:{XW + 2*j}")
    e("s_waitcnt lgkmcnt(0)")
    e(f"v_add_f32 v{vX+2}, v{vX+2}, v{vX+3}")
    e(f"v_add_f32 v{vX+4}, v{vX+4}, v{vX+5}")
    e(f"v_add_f32 v{vX+2}, v{vX+2}, v{vX+4}")
    e(f"v_add_f32 v{vX+2}, s{sB2}, v{vX+2}")
    e(f"v_mov_b32 v{vX+3}, s{sBW}")
    for j in range(13):
        e(f"v_lshlrev_b32 v{vFR+j}, 16, v{vFR+j}")
        e(f"v_fmac_f32 v{vX+3}, s{sWW+j}, v{vFR+j}")
    e(f"v_add_f32 v{vX+2}, v{vX+2}, v{vX+3}")
    e(f"v_mul_f32 v{vX+2}, 0xbfb8aa3b, v{vX+2}")
    e(f"v_exp_f32 v{vX+2}, v{vX+2}")
    e("s_nop 0")
    e(f"v_add_f32 v{vX+2}, 1.0, v{vX+2}")
    e(f"v_rcp_f32 v{vX+2}, v{vX+2}")
    e("s_nop 0")
    e(f"v_cvt_pk_bf16_f32 v{vX+2}, v{vX+2}, v{vX+2}")
    e(f"s_lshl_b32 s{sT0}, s{sWg}, 7")
    e(f"v_lshlrev_b32 v{vX+3}, 1, v{vLane}")
    e(f"buffer_store_short v{vX+2}, v{vX+3}, s[{S_OUT}:{S_OUT+3}], s{sT0} offen")
    if diag:
        e(f"s_memrealtime s[{sTS+2}:{sTS+3}]")
        e("s_waitcnt lgkmcnt(0)")
        srd(S_SM, 90, 65536)
        e(f"s_lshl_b32 s{sT0}, s{sWg}, 4")
        e(f"v_mov_b32 v{vX+4}, s{sTS}")
        e(f"v_mov_b32 v{vX+5}, s{sTS+1}")
        e(f"v_mov_b32 v{vX+6}, s{sTS+2}")
        e(f"v_mov_b32 v{vX+7}, s{sTS+3}")
        e(f"v_mov_b32 v{vX+8}, 0")
        e(f"v_cmp_eq_u32 vcc, 0, v{vLane}")
        e("s_and_saveexec_b64 s[92:93], vcc")
        e(f"buffer_store_dwordx4 v[{vX+4}:{vX+7}], v{vX+8}, s[{S_SM}:{S_SM+3}], s{sT0} offen")
    e("L_end:")
    e("s_endpgm")
    body = "\n".join(L)
    out = HEADER
    out += "; Override launch geometry by editing the next line (default: block=256,\n"
    out += f"; @launch grid=(256,1,1) block=(256,1,1) lds={LDS_TOTAL}\n"
    out += f""".amdgcn_target "amdgcn-amd-amdhsa--gfx950"
.text
.globl {NAME}_kernel
.p2align 8
.type {NAME}_kernel,@function
{NAME}_kernel:
{body}
.section .rodata,"a"
.p2align 6
.amdhsa_kernel {NAME}_kernel
  .amdhsa_next_free_vgpr 160
  .amdhsa_next_free_sgpr 102
  .amdhsa_accum_offset 160
  .amdhsa_group_segment_fixed_size 0
  .amdhsa_kernarg_size 96
  .amdhsa_user_sgpr_count 2
  .amdhsa_user_sgpr_kernarg_segment_ptr 1
  .amdhsa_system_sgpr_workgroup_id_x 1
  .amdhsa_float_denorm_mode_32 3
.end_amdhsa_kernel
"""
    return out

if __name__ == "__main__":
    diag = "diag" in sys.argv
    path = [a for a in sys.argv[1:] if a.endswith(".s")]
    s = gen(diag=diag, rot="norot" not in sys.argv)
    open(path[0] if path else "cdna_kernels/" + NAME + ".s", "w").write(s)
```

```python
import sys

NAME = "standalone__deep_cross_wide_deep__recsys"
HEADER = open("cdna_kernels/" + NAME + ".s.ref").read().split("; Override launch geometry")[0]

def gen(diag=False, rot=True, nslots=5, ddbg=False):
    L = []
    def e(s=""): L.append("    " + s if s and not s.endswith(":") else s)
    NS = nslots
    PD = NS - 1
    IDX = 0
    XW = 25600
    B1 = XW + 2048
    W2 = B1 + 1024
    RING = W2 + 1024
    SLOT = 24576
    RED = IDX
    LDS_TOTAL = RING + NS * SLOT
    assert LDS_TOTAL <= 163840
    S_IDX, S_TAB, S_W1, S_MISC, S_OUT, S_SM = 8, 12, 16, 20, 24, 28
    sW, sW1024, sWw, sRd, sLd, sP, sFoff, sP8, sCnt, sT0, sT1 = 56, 57, 58, 59, 60, 61, 62, 63, 64, 65, 66
    sWW = 68
    sBW, sB2 = 81, 82
    sWg = 83
    sWoff = 84
    sTS = 86
    vLane, vPiece, vWoff, vIdxB, vE0c, vE1c, vB0c, vB1c = 1, 2, 3, 4, 5, 6, 7, 8
    vI0, vI1, vO0, vO1, vT = 10, 11, 12, 13, 14
    vE0, vE1, vB0, vB1 = 16, 17, 18, 19
    vFR = 20
    vW2 = 68
    vACC = 100
    vX = 132

    e(f"s_cmp_ge_u32 s2, 256")
    e(f"s_cbranch_scc1 L_end")
    if diag: e(f"s_memrealtime s[{sTS}:{sTS+1}]")
    e("s_load_dwordx16 s[36:51], s[0:1], 0")
    e("s_load_dwordx4 s[52:55], s[0:1], 64")
    if diag: e(f"s_load_dwordx2 s[90:91], s[0:1], {80 if ddbg else 88}")
    e(f"s_mov_b32 s{sWg}, s2")
    e(f"v_and_b32 v{vLane}, 63, v0")
    e(f"v_lshrrev_b32 v{vT}, 6, v0")
    e("s_nop 0")
    e(f"v_readfirstlane_b32 s{sW}, v{vT}")
    e(f"v_and_b32 v{vX}, 3, v{vLane}")
    e(f"v_bfe_u32 v{vX+1}, v{vLane}, 4, 2")
    e(f"v_xor_b32 v{vX}, v{vX}, v{vX+1}")
    e(f"v_lshlrev_b32 v{vPiece}, 4, v{vX}")
    e(f"v_and_b32 v{vX}, 15, v{vLane}")
    e(f"v_lshlrev_b32 v{vX+2}, 2, v{vX+1}")
    e(f"v_xor_b32 v{vX}, v{vX}, v{vX+2}")
    e(f"v_lshlrev_b32 v{vX}, 4, v{vX}")
    e(f"v_lshl_add_u32 v{vWoff}, v{vX+1}, 8, v{vX}")
    e(f"v_lshlrev_b32 v{vT}, 4, v{vLane}")
    e(f"s_lshl_b32 s{sW1024}, s{sW}, 10")
    e(f"s_lshl_b32 s{sWoff}, s{sW}, 12")
    e(f"s_add_u32 s{sWw}, s{sWoff}, 8192")
    if rot:
        e(f"s_lshr_b32 s{sP}, s2, 3")
        e(f"s_mul_i32 s{sP}, s{sP}, 25")
        e(f"s_lshr_b32 s{sP}, s{sP}, 4")
    else:
        e(f"s_mov_b32 s{sP}, 0")
    e("s_waitcnt lgkmcnt(0)")
    def srd(d, p, size):
        e(f"s_mov_b32 s{d}, s{p}")
        e(f"s_and_b32 s{d+1}, s{p+1}, 0xffff")
        e(f"s_mov_b32 s{d+2}, {size}")
        e(f"s_mov_b32 s{d+3}, 0x20000")
    srd(S_IDX, 36, 16384*400)
    srd(S_TAB, 38, 100000*64)
    srd(S_W1, 46, 3200*256)
    srd(S_OUT, 54, 16384*2)
    e(f"s_mul_i32 s{sT0}, s{sWg}, 25600")
    e(f"s_mul_i32 s{sT1}, s{sW}, 6144")
    e(f"s_add_u32 s{sT0}, s{sT0}, s{sT1}")
    e(f"s_add_u32 m0, s{sT1}, {IDX}")
    e("s_nop 0")
    for j in range(4):
        e(f"buffer_load_dwordx4 v{vT}, s[{S_IDX}:{S_IDX+3}], s{sT0} offen offset:{j*1024} lds")
    e(f"s_add_u32 m0, m0, 4096")
    e(f"s_add_u32 s{sT0}, s{sT0}, 4096")
    for j in range(3):
        e(f"buffer_load_dwordx4 v{vT}, s[{S_IDX}:{S_IDX+3}], s{sT0} offen offset:{j*1024} lds")
    e(f"s_cmp_lt_u32 s{sW}, 2")
    e(f"s_cselect_b32 s{S_MISC}, s40, s48")
    e(f"s_cselect_b32 s{S_MISC+1}, s41, s49")
    e(f"s_mov_b32 s{S_MISC+2}, 256")
    e(f"s_cselect_b32 s{S_MISC+2}, {16384*26}, s{S_MISC+2}")
    e(f"s_cmp_eq_u32 s{sW}, 3")
    e(f"s_cselect_b32 s{S_MISC}, s50, s{S_MISC}")
    e(f"s_cselect_b32 s{S_MISC+1}, s51, s{S_MISC+1}")
    e(f"s_and_b32 s{S_MISC+1}, s{S_MISC+1}, 0xffff")
    e(f"s_mov_b32 s{S_MISC+3}, 0x20000")
    e(f"s_mul_i32 s{sT0}, s{sWg}, 1664")
    e(f"s_add_u32 s{sT0}, s{sT0}, s{sW1024}")
    e(f"s_cmp_lt_u32 s{sW}, 2")
    e(f"s_cselect_b32 s{sT0}, s{sT0}, 0")
    e(f"s_add_u32 m0, s{sW1024}, {XW}")
    e("s_nop 0")
    e(f"buffer_load_dwordx4 v{vT}, s[{S_MISC}:{S_MISC+3}], s{sT0} offen lds")
    e(f"v_lshlrev_b32 v{vX+4}, 1, v{vLane}")
    for (p, size, dst) in ((42, 26, vX+5), (44, 2, vX+6), (52, 2, vX+7)):
        srd(S_SM, p, size)
        e(f"buffer_load_ushort v{dst}, v{vX+4}, s[{S_SM}:{S_SM+3}], 0 offen")
        e("s_nop 0")
    NMISC = 7 + 1 + 3
    def next_pair(sreg):
        e(f"s_add_u32 s{sreg}, s{sreg}, 1")
        e(f"s_cmp_ge_u32 s{sreg}, 50")
        e(f"s_cselect_b32 s{sreg}, 0, s{sreg}")
    def w_loads(slot_sreg_or_imm, pair_sreg):
        if isinstance(slot_sreg_or_imm, int):
            e(f"s_add_u32 m0, s{sWw}, {slot_sreg_or_imm}")
        else:
            e(f"s_add_u32 m0, s{sWw}, {slot_sreg_or_imm}")
        e(f"s_lshl_b32 s{sFoff}, s{pair_sreg}, 14")
        e(f"s_add_u32 s{sFoff}, s{sFoff}, s{sWoff}")
        for q in range(4):
            e(f"buffer_load_dwordx4 v{vWoff}, s[{S_W1}:{S_W1+3}], s{sFoff} offen offset:{q*1024} lds")
    sPt = 85
    e(f"s_mov_b32 s{sPt}, s{sP}")
    for st in range(PD):
        w_loads(RING + st*SLOT, sPt)
        next_pair(sPt)
    e(f"v_lshrrev_b32 v{vX}, 2, v{vLane}")
    e(f"s_lshl_b32 s{sT0}, s{sW}, 4")
    e(f"v_add_u32 v{vX}, s{sT0}, v{vX}")
    e(f"v_mul_u32_u24 v{vIdxB}, 400, v{vX}")
    e(f"s_lshr_b32 s{sT0}, s{sW}, 1")
    e(f"s_lshl_b32 s{sT0}, s{sT0}, 11")
    e(f"v_and_b32 v{vX}, 31, v{vLane}")
    e(f"v_lshlrev_b32 v{vX}, 6, v{vX}")
    e(f"v_add_u32 v{vX}, s{sT0}, v{vX}")
    e(f"v_lshrrev_b32 v{vX+1}, 5, v{vLane}")
    e(f"v_bfe_u32 v{vX+2}, v{vLane}, 2, 2")
    e(f"v_xor_b32 v{vX+3}, v{vX+1}, v{vX+2}")
    e(f"v_lshl_add_u32 v{vE0c}, v{vX+3}, 4, v{vX}")
    e(f"v_xor_b32 v{vX+3}, 2, v{vX+3}")
    e(f"v_lshl_add_u32 v{vE1c}, v{vX+3}, 4, v{vX}")
    e(f"v_bfe_u32 v{vX}, v{vLane}, 2, 2")
    e(f"v_lshl_add_u32 v{vX+2}, v{vX+1}, 3, v{vX}")
    e(f"v_lshlrev_b32 v{vX+2}, 8, v{vX+2}")
    e(f"v_bfe_u32 v{vX+3}, v{vLane}, 4, 1")
    e(f"v_lshlrev_b32 v{vX+3}, 1, v{vX+3}")
    e(f"v_bfe_u32 v{vX+8}, v{vLane}, 1, 1")
    e(f"v_add_u32 v{vX+3}, v{vX+3}, v{vX+8}")
    e(f"s_and_b32 s{sT0}, s{sW}, 1")
    e(f"s_lshl_b32 s{sT0}, s{sT0}, 3")
    e(f"v_add_u32 v{vX+3}, s{sT0}, v{vX+3}")
    e(f"v_lshlrev_b32 v{vX}, 2, v{vX}")
    e(f"v_and_b32 v{vX+8}, 1, v{vLane}")
    e(f"v_lshlrev_b32 v{vX+8}, 3, v{vX+8}")
    e(f"v_add_u32 v{vX+2}, v{vX+2}, v{vX+8}")
    e(f"v_add_u32 v{vX+2}, 8192, v{vX+2}")
    e(f"v_xor_b32 v{vX+9}, v{vX+3}, v{vX}")
    e(f"v_lshl_add_u32 v{vB0c}, v{vX+9}, 4, v{vX+2}")
    e(f"v_or_b32 v{vX+3}, 4, v{vX+3}")
    e(f"v_xor_b32 v{vX+9}, v{vX+3}, v{vX}")
    e(f"v_lshl_add_u32 v{vB1c}, v{vX+9}, 4, v{vX+2}")
    e(f"s_waitcnt vmcnt({PD*4})")
    e("s_barrier")
    if diag:
        e("s_memrealtime s[94:95]")
        e("s_waitcnt lgkmcnt(0)")
    e(f"v_lshlrev_b32 v{vX+5}, 16, v{vX+5}")
    e(f"v_lshlrev_b32 v{vX+6}, 16, v{vX+6}")
    e(f"v_lshlrev_b32 v{vX+7}, 16, v{vX+7}")
    e("s_nop 0")
    for j in range(13):
        e(f"v_readlane_b32 s{sWW+j}, v{vX+5}, {j}")
    e(f"v_readlane_b32 s{sBW}, v{vX+6}, 0")
    e(f"v_readlane_b32 s{sB2}, v{vX+7}, 0")
    e(f"s_mov_b32 s{sPt}, s{sP}")
    for st in range(PD):
        e(f"s_lshl_b32 s{sP8}, s{sPt}, 3")
        e(f"v_add_u32 v{vT}, s{sP8}, v{vIdxB}")
        e(f"ds_read_b64 v[{vFR+2*st}:{vFR+2*st+1}], v{vT}")
        next_pair(sPt)
    e(f"s_lshl_b32 s{sP8}, s{sPt}, 3")
    e(f"v_add_u32 v{vT}, s{sP8}, v{vIdxB}")
    e(f"ds_read_b64 v[{vI0}:{vI1}], v{vT}")
    for st in range(PD):
        e(f"s_waitcnt lgkmcnt({PD-st})")
        e(f"v_lshl_add_u32 v{vO0}, v{vFR+2*st}, 6, v{vPiece}")
        e(f"v_lshl_add_u32 v{vO1}, v{vFR+2*st+1}, 6, v{vPiece}")
        e(f"s_add_u32 m0, s{sW1024}, {RING+st*SLOT}")
        e("s_nop 0")
        e(f"buffer_load_dwordx4 v{vO0}, s[{S_TAB}:{S_TAB+3}], 0 offen lds")
        e(f"s_add_u32 m0, m0, 4096")
        e("s_nop 0")
        e(f"buffer_load_dwordx4 v{vO1}, s[{S_TAB}:{S_TAB+3}], 0 offen lds")
    e(f"s_and_b32 s{sT0}, s{sW}, 1")
    e(f"s_lshl_b32 s{sT0}, s{sT0}, 7")
    e(f"v_lshrrev_b32 v{vX}, 5, v{vLane}")
    e(f"v_lshlrev_b32 v{vX}, 3, v{vX}")
    e(f"v_add_u32 v{vX}, s{sT0}, v{vX}")
    for (base, dst) in ((B1, vACC), (W2, vW2)):
        for c in range(2):
            for q in range(4):
                e(f"ds_read_b64 v[{vFR+16+(c*4+q)*2}:{vFR+16+(c*4+q)*2+1}], v{vX} offset:{base + (32*c+8*q)*2}")
        e("s_waitcnt lgkmcnt(0)")
        for c in range(2):
            for q in range(4):
                s0 = vFR+16+(c*4+q)*2
                d = dst + c*16 + q*4
                e(f"v_lshlrev_b32 v{d}, 16, v{s0}")
                e(f"v_and_b32 v{d+1}, 0xffff0000, v{s0}")
                e(f"v_lshlrev_b32 v{d+2}, 16, v{s0+1}")
                e(f"v_and_b32 v{d+3}, 0xffff0000, v{s0+1}")
    if diag:
        e("s_memrealtime s[96:97]")
        e("s_waitcnt lgkmcnt(0)")
        e("s_mov_b32 s100, 0")
        e("s_mov_b32 s101, 0")
    e(f"s_mov_b32 s{sLd}, {RING + PD*SLOT}")
    e(f"s_mov_b32 s{sRd}, {RING}")

    def bump_slot(sreg):
        e(f"s_add_u32 s{sreg}, s{sreg}, {SLOT}")
        e(f"s_cmp_ge_u32 s{sreg}, {RING + NS*SLOT}")
        e(f"s_cselect_b32 s{sreg}, {RING}, s{sreg}")

    def stage(wait, load):
        e(f"s_waitcnt vmcnt({wait})")
        e("s_barrier")
        if load:
            e(f"v_lshl_add_u32 v{vO0}, v{vI0}, 6, v{vPiece}")
            e(f"v_lshl_add_u32 v{vO1}, v{vI1}, 6, v{vPiece}")
            e(f"s_add_u32 m0, s{sLd}, s{sW1024}")
            e("s_nop 0")
            e(f"buffer_load_dwordx4 v{vO0}, s[{S_TAB}:{S_TAB+3}], 0 offen lds")
            e(f"s_add_u32 m0, m0, 4096")
            e("s_nop 0")
            e(f"buffer_load_dwordx4 v{vO1}, s[{S_TAB}:{S_TAB+3}], 0 offen lds")
            w_loads(f"s{sLd}", sPt)
            next_pair(sPt)
            bump_slot(sLd)
            e(f"s_lshl_b32 s{sP8}, s{sPt}, 3")
            e(f"v_add_u32 v{vT}, s{sP8}, v{vIdxB}")
            e(f"ds_read_b64 v[{vI0}:{vI1}], v{vT}")
        e(f"v_add_u32 v{vE0}, s{sRd}, v{vE0c}")
        e(f"v_add_u32 v{vE1}, s{sRd}, v{vE1c}")
        e(f"v_add_u32 v{vB0}, s{sRd}, v{vB0c}")
        e(f"v_add_u32 v{vB1}, s{sRd}, v{vB1c}")
        def grp(g):
            j, s = g >> 1, g & 1
            r = vFR + g*12
            e(f"ds_read_b128 v[{r}:{r+3}], v{vE1 if s else vE0} offset:{j*4096}")
            for c in range(2):
                for t in range(2):
                    d = r + 4 + c*4 + t*2
                    e(f"ds_read_b64_tr_b16 v[{d}:{d+1}], v{vB1 if c else vB0} offset:{j*8192 + s*4096 + t*1024}")
        def mm(g):
            r = vFR + g*12
            for c in range(2):
                a = vACC + c*16
                e(f"v_mfma_f32_32x32x16_bf16 v[{a}:{a+15}], v[{r+4+c*4}:{r+7+c*4}], v[{r}:{r+3}], v[{a}:{a+15}]")
        grp(0); grp(1)
        e("s_waitcnt lgkmcnt(5)"); mm(0)
        grp(2)
        e("s_waitcnt lgkmcnt(5)"); mm(1)
        grp(3)
        e("s_waitcnt lgkmcnt(5)"); mm(2)
        e("s_waitcnt lgkmcnt(0)"); mm(3)
        bump_slot(sRd)

    NST = 50
    per = 6
    for i in range(PD-1):
        stage(2*(PD-1-i) + per*i, True)
    nloop = (NST - PD) - (PD-1)
    e(f"s_mov_b32 s{sCnt}, {nloop}")
    e("L_loop:")
    stage(per*(PD-1), True)
    e(f"s_sub_u32 s{sCnt}, s{sCnt}, 1")
    e(f"s_cmp_lg_u32 s{sCnt}, 0")
    e("s_cbranch_scc1 L_loop")
    for i in range(PD):
        stage(per*(PD-1-i), False)
    if diag:
        e("s_memrealtime s[98:99]")
        e("s_waitcnt lgkmcnt(0)")
    e("s_nop 15")
    e(f"v_mov_b32 v{vX}, 0")
    e(f"v_mov_b32 v{vX+1}, 0")
    for c in range(2):
        for r in range(16):
            a = vACC + c*16 + r
            e(f"v_max_f32 v{a}, 0, v{a}")
            e(f"v_fmac_f32 v{vX + (r&1)}, v{a}, v{vW2 + c*16 + r}")
    e(f"v_add_f32 v{vX}, v{vX}, v{vX+1}")
    e(f"s_lshl_b32 s{sT0}, s{sW}, 8")
    e(f"v_lshlrev_b32 v{vX+2}, 2, v{vLane}")
    e(f"v_add_u32 v{vX+2}, s{sT0}, v{vX+2}")
    e(f"ds_write_b32 v{vX+2}, v{vX} offset:{RED}")
    e("s_waitcnt lgkmcnt(0)")
    e("s_barrier")
    e(f"s_cmp_lg_u32 s{sW}, 0")
    e("s_cbranch_scc1 L_end")
    e(f"v_lshrrev_b32 v{vX}, 5, v{vLane}")
    e(f"v_lshlrev_b32 v{vX}, 9, v{vX}")
    e(f"v_and_b32 v{vX+1}, 31, v{vLane}")
    e(f"v_lshl_add_u32 v{vX}, v{vX+1}, 2, v{vX}")
    for k in range(4):
        e(f"ds_read_b32 v{vX+2+k}, v{vX} offset:{RED + k*128}")
    e(f"v_mul_u32_u24 v{vX+6}, 26, v{vLane}")
    for j in range(13):
        e(f"ds_read_u16 v{vFR+j}, v{vX+6} offset:{XW + 2*j}")
    e("s_waitcnt lgkmcnt(0)")
    e(f"v_add_f32 v{vX+2}, v{vX+2}, v{vX+3}")
    e(f"v_add_f32 v{vX+4}, v{vX+4}, v{vX+5}")
    e(f"v_add_f32 v{vX+2}, v{vX+2}, v{vX+4}")
    e(f"v_add_f32 v{vX+2}, s{sB2}, v{vX+2}")
    e(f"v_mov_b32 v{vX+3}, s{sBW}")
    for j in range(13):
        e(f"v_lshlrev_b32 v{vFR+j}, 16, v{vFR+j}")
        e(f"v_fmac_f32 v{vX+3}, s{sWW+j}, v{vFR+j}")
    e(f"v_add_f32 v{vX+2}, v{vX+2}, v{vX+3}")
    e(f"v_mul_f32 v{vX+2}, 0xbfb8aa3b, v{vX+2}")
    e(f"v_exp_f32 v{vX+2}, v{vX+2}")
    e("s_nop 0")
    e(f"v_add_f32 v{vX+2}, 1.0, v{vX+2}")
    e(f"v_rcp_f32 v{vX+2}, v{vX+2}")
    e("s_nop 0")
    e(f"v_cvt_pk_bf16_f32 v{vX+2}, v{vX+2}, v{vX+2}")
    e(f"s_lshl_b32 s{sT0}, s{sWg}, 7")
    e(f"v_lshlrev_b32 v{vX+3}, 1, v{vLane}")
    e(f"buffer_store_short v{vX+2}, v{vX+3}, s[{S_OUT}:{S_OUT+3}], s{sT0} offen")
    if diag:
        e(f"s_memrealtime s[{sTS+2}:{sTS+3}]")
        e("s_waitcnt lgkmcnt(0)")
        srd(S_SM, 90, 256 if ddbg else 65536)
    if diag and ddbg:
        e(f"v_cmp_eq_u32 vcc, 0, v{vLane}")
        e("s_and_saveexec_b64 s[92:93], vcc")
        e(f"s_not_b32 s{sT0}, s{sTS}")
        for k, sr in enumerate((sT0, 94, 96, 98, sTS+2)):
            e(f"v_mov_b32 v{vX+4}, s{sr}")
            e(f"v_mov_b32 v{vX+8}, {4*k}")
            e(f"buffer_atomic_umax v{vX+4}, v{vX+8}, s[{S_SM}:{S_SM+3}], 0 offen")
            e("s_nop 1")
        e(f"v_mov_b32 v{vX+4}, s{sTS}")
        e(f"v_mov_b32 v{vX+8}, 20")
        e(f"buffer_atomic_umax v{vX+4}, v{vX+8}, s[{S_SM}:{S_SM+3}], 0 offen")
    if diag and not ddbg:
        e(f"s_lshl_b32 s{sT0}, s{sWg}, 6")
        e(f"v_mov_b32 v{vX+4}, s{sTS}")
        e(f"v_mov_b32 v{vX+5}, s{sTS+1}")
        e(f"v_mov_b32 v{vX+6}, s{sTS+2}")
        e(f"v_mov_b32 v{vX+7}, s{sTS+3}")
        e(f"v_mov_b32 v{vX+8}, 0")
        e(f"v_cmp_eq_u32 vcc, 0, v{vLane}")
        e("s_and_saveexec_b64 s[92:93], vcc")
        e(f"buffer_store_dwordx4 v[{vX+4}:{vX+7}], v{vX+8}, s[{S_SM}:{S_SM+3}], s{sT0} offen")
        for k in range(2):
            e("s_nop 1")
            for j in range(4):
                e(f"v_mov_b32 v{vX+4+j}, s{94 + k*4 + j if 94 + k*4 + j < 102 else 94}")
            e(f"buffer_store_dwordx4 v[{vX+4}:{vX+7}], v{vX+8}, s[{S_SM}:{S_SM+3}], s{sT0} offen offset:{16 + 16*k}")
    e("L_end:")
    e("s_endpgm")
    body = "\n".join(L)
    out = HEADER
    out += "; Override launch geometry by editing the next line (default: block=256,\n"
    out += f"; @launch grid=(256,1,1) block=(256,1,1) lds={LDS_TOTAL}\n"
    out += f""".amdgcn_target "amdgcn-amd-amdhsa--gfx950"
.text
.globl {NAME}_kernel
.p2align 8
.type {NAME}_kernel,@function
{NAME}_kernel:
{body}
.section .rodata,"a"
.p2align 6
.amdhsa_kernel {NAME}_kernel
  .amdhsa_next_free_vgpr 160
  .amdhsa_next_free_sgpr 102
  .amdhsa_accum_offset 160
  .amdhsa_group_segment_fixed_size 0
  .amdhsa_kernarg_size 96
  .amdhsa_user_sgpr_count 2
  .amdhsa_user_sgpr_kernarg_segment_ptr 1
  .amdhsa_system_sgpr_workgroup_id_x 1
  .amdhsa_float_denorm_mode_32 3
.end_amdhsa_kernel
"""
    return out

if __name__ == "__main__":
    diag = "diag" in sys.argv
    path = [a for a in sys.argv[1:] if a.endswith(".s")]
    s = gen(diag=diag or "ddbg" in sys.argv, rot="norot" not in sys.argv, ddbg="ddbg" in sys.argv)
    open(path[0] if path else "cdna_kernels/" + NAME + ".s", "w").write(s)
```

```python
import sys

NAME = "standalone__deep_cross_wide_deep__recsys"
HEADER = open("cdna_kernels/" + NAME + ".s.ref").read().split("; Override launch geometry")[0]


class Em:
    def __init__(self):
        self.L = []
        self.vm = []
        self.vm_done = -1
        self.ds = []
        self.ds_done = -1
    def e(self, s):
        self.L.append(s if s.endswith(":") else "    " + s)
    def vmem(self, s, tag=None):
        self.e(s); self.vm.append(tag)
    def dsop(self, s, tag=None):
        self.e(s); self.ds.append(tag)
    def _need(self, lst, tags):
        idx = -1
        for t in tags:
            cand = [i for i, x in enumerate(lst) if x == t]
            assert cand, f"tag {t} never issued"
            idx = max(idx, cand[-1])
        return idx
    def wait_vm(self, tags):
        idx = self._need(self.vm, tags)
        if idx > self.vm_done:
            n = len(self.vm) - 1 - idx
            assert n <= 63, n
            self.e(f"s_waitcnt vmcnt({n})")
            self.vm_done = idx
    def wait_ds(self, tags):
        idx = self._need(self.ds, tags)
        if idx > self.ds_done:
            n = len(self.ds) - 1 - idx
            if n > 15: n = 15;
            self.e(f"s_waitcnt lgkmcnt({n})")
            self.ds_done = len(self.ds) - 1 - n
    def drain_ds(self):
        self.e("s_waitcnt lgkmcnt(0)"); self.ds_done = len(self.ds) - 1
    def drain_vm(self):
        self.e("s_waitcnt vmcnt(0)"); self.vm_done = len(self.vm) - 1


def make_items(k):
    nK1 = 50 - k
    items = []
    s = kk = 0
    total1 = 50 + nK1
    for pos in range(total1):
        if kk < nK1 and (kk + 1) * 50 <= s * nK1:
            items.append(("K", kk)); kk += 1
        elif s < 50:
            items.append(("S", s)); s += 1
        else:
            items.append(("K", kk)); kk += 1
    while kk < 50:
        items.append(("K", kk)); kk += 1
    assert len(items) == 100
    return items


def gen(diag=False, k=50, NA=10, NWB=8, tlbwarm=True, poll_lead=10, sig_delay=8):
    E = Em(); e = E.e
    DG = NA - 2
    WST = 0
    ARING = WST + NWB * 8192
    IDX = ARING + NA * 4096
    XW = IDX + 51200
    B1 = XW + 2048
    W2 = B1 + 1024
    LDS_TOTAL = W2 + 1024
    RED = WST
    assert LDS_TOTAL <= 163840, LDS_TOTAL
    assert NWB * 8192 <= 65536 and NA * 4096 <= 65536
    S_IDX, S_TAB, S_W1, S_MISC, S_OUT, S_SM, S_WS, S_DBG = 8, 12, 16, 20, 24, 28, 32, 60
    sW, sKh, sColS, sColK, sColW, sW2048, sW1024, sT0, sT1, sWbase, sFoff = 64, 65, 66, 67, 68, 69, 70, 71, 72, 73, 74
    sKeepRow, sPartOff, sMyOff, sFlagBit, sPartBit = 75, 76, 77, 78, 79
    sWW, sBW, sB2 = 80, 93, 94
    sSpin = 95
    sTS = 96
    stamp_next = [36]
    def stamp():
        if diag:
            r = stamp_next[0]; stamp_next[0] += 2
            assert r + 1 <= 51
            e(f"s_memrealtime s[{r}:{r+1}]")
            E.drain_ds()
    vLane, vPiece, vWoff, vIdxB, vE0, vE1, vWtr = 1, 2, 3, 4, 5, 6, 7
    vI = {"S": 8, "K": 10}
    vT, vT2, vFlagOff, vFlag = 12, 13, 14, 15
    vEB = 16
    vACC = {"S": 48, "K": 80}
    def wreg(slot, lo, n):
        if slot < 18:
            b = 112 + slot * 8 + lo
            return f"v[{b}:{b+n-1}]"
        b = (slot - 18) * 8 + lo
        return f"a[{b}:{b+n-1}]"

    items = make_items(k)
    first_use = {}
    last_use = {}
    for t, (sub, j) in enumerate(items):
        first_use.setdefault(j, t); last_use[j] = t
    lastS = max(t for t, it in enumerate(items) if it[0] == "S")

    e("s_cmp_ge_u32 s2, 256")
    e("s_cbranch_scc1 L_end")
    if diag: e(f"s_memrealtime s[{sTS}:{sTS+1}]")
    e("s_load_dwordx16 s[36:51], s[0:1], 0")
    e("s_load_dwordx4 s[52:55], s[0:1], 64")
    e("s_load_dwordx4 s[56:59], s[0:1], 80")
    e(f"v_and_b32 v{vLane}, 63, v0")
    e(f"v_lshrrev_b32 v{vT}, 6, v0")
    e("s_nop 0")
    e(f"v_readfirstlane_b32 s{sW}, v{vT}")
    X = vEB
    e(f"v_and_b32 v{X}, 3, v{vLane}")
    e(f"v_bfe_u32 v{X+1}, v{vLane}, 4, 2")
    e(f"v_xor_b32 v{X}, v{X}, v{X+1}")
    e(f"v_lshlrev_b32 v{vPiece}, 4, v{X}")
    e(f"v_and_b32 v{X}, 15, v{vLane}")
    e(f"v_lshlrev_b32 v{X+2}, 2, v{X+1}")
    e(f"v_xor_b32 v{X}, v{X}, v{X+2}")
    e(f"v_lshlrev_b32 v{X}, 4, v{X}")
    e(f"v_lshl_add_u32 v{vWoff}, v{X+1}, 8, v{X}")
    e(f"v_lshlrev_b32 v{vT}, 4, v{vLane}")
    e(f"s_lshr_b32 s{sKh}, s2, 3")
    e(f"s_and_b32 s{sKh}, s{sKh}, 1")
    e(f"s_lshr_b32 s{sT0}, s2, 4")
    e(f"s_lshl_b32 s{sT1}, s{sT0}, 3")
    e(f"s_and_b32 s{sKeepRow}, s2, 7")
    e(f"s_add_u32 s{sT1}, s{sT1}, s{sKeepRow}")
    e(f"s_lshl_b32 s{sT1}, s{sT1}, 7")
    e(f"s_lshl_b32 s{sKeepRow}, s{sKh}, 6")
    e(f"s_add_u32 s{sKeepRow}, s{sKeepRow}, s{sT1}")
    e(f"s_mul_i32 s{sT0}, s{sT0}, 25")
    e(f"s_lshr_b32 s{sT0}, s{sT0}, 4")
    e(f"s_lshl_b32 s{sColS}, s{sT0}, 3")
    e(f"s_mov_b32 s{sColK}, s{sColS}")
    e(f"s_lshl_b32 s{sColW}, s{sT0}, 14")
    e(f"s_lshl_b32 s{sW2048}, s{sW}, 11")
    e(f"s_lshl_b32 s{sW1024}, s{sW}, 10")
    e(f"s_mul_i32 s{sWbase}, s{sKh}, {50*8192}")
    e(f"s_add_u32 s{sWbase}, s{sWbase}, s{sW2048}")
    e(f"s_lshl_b32 s{sMyOff}, s2, 15")
    e(f"s_xor_b32 s{sT0}, s2, 8")
    e(f"s_lshl_b32 s{sPartOff}, s{sT0}, 15")
    e(f"s_lshl_b32 s{sT0}, s{sW}, 13")
    e(f"s_add_u32 s{sMyOff}, s{sMyOff}, s{sT0}")
    e(f"s_add_u32 s{sPartOff}, s{sPartOff}, s{sT0}")
    e(f"s_and_b32 s{sT0}, s2, 3")
    e(f"s_lshl_b32 s{sT0}, s{sT0}, 3")
    e(f"s_lshl_b32 s{sFlagBit}, 1, s{sT0}")
    E.drain_ds()
    def srd(d, p, size):
        e(f"s_mov_b32 s{d}, s{p}")
        e(f"s_and_b32 s{d+1}, s{p+1}, 0xffff")
        e(f"s_mov_b32 s{d+2}, {size}")
        e(f"s_mov_b32 s{d+3}, 0x20000")
    srd(S_IDX, 36, 16384*400)
    e(f"s_xor_b32 s{sT0}, s{sKeepRow}, 64")
    e(f"s_mul_i32 s{sT0}, s{sT0}, 400")
    e(f"s_mul_i32 s{sT1}, s{sW}, 6144")
    e(f"s_add_u32 s{sT0}, s{sT0}, s{sT1}")
    def idx_dma(ldsbase, tag):
        e(f"s_add_u32 m0, s{sT1}, {ldsbase}")
        e("s_nop 0")
        for j in range(4):
            E.vmem(f"buffer_load_dwordx4 v{vT}, s[{S_IDX}:{S_IDX+3}], s{sT0} offen offset:{j*1024} lds", tag)
        e("s_add_u32 m0, m0, 4096")
        e(f"s_add_u32 s{sT0}, s{sT0}, 4096")
        for j in range(3):
            E.vmem(f"buffer_load_dwordx4 v{vT}, s[{S_IDX}:{S_IDX+3}], s{sT0} offen offset:{j*1024} lds", tag)
    idx_dma(IDX, "idxS")
    srd(S_W1, 46, 3200*256)
    srd(S_TAB, 38, 100000*64)
    if tlbwarm:
        e("s_load_dword s4, s[38:39], 0")
        e("s_mov_b32 s5, 0x200000")
        e("s_load_dword s4, s[38:39], s5")
        e("s_mov_b32 s5, 0x400000")
        e("s_load_dword s4, s[38:39], s5")
        e("s_mov_b32 s5, 0x600000")
        e("s_load_dword s4, s[38:39], s5")
    def w_dma(slot):
        buf = WST + (slot % NWB) * 8192
        e(f"s_add_u32 m0, s{sW2048}, {buf}")
        e(f"s_add_u32 s{sFoff}, s{sColW}, s{sWbase}")
        for q in range(2):
            E.vmem(f"buffer_load_dwordx4 v{vWoff}, s[{S_W1}:{S_W1+3}], s{sFoff} offen offset:{q*1024} lds", ("W", slot))
        e(f"s_add_u32 s{sColW}, s{sColW}, 8192")
        e(f"s_cmp_ge_u32 s{sColW}, {50*8192}")
        e(f"s_cselect_b32 s{sColW}, 0, s{sColW}")
    npre = min(NWB, 50)
    for j in range(npre):
        w_dma(j)
    e(f"s_mul_i32 s{sT0}, s{sKeepRow}, 400")
    e(f"s_add_u32 s{sT0}, s{sT0}, s{sT1}")
    idx_dma(IDX + 25600, "idxK")
    e(f"s_cmp_lt_u32 s{sW}, 2")
    e(f"s_cselect_b32 s{S_MISC}, s40, s48")
    e(f"s_cselect_b32 s{S_MISC+1}, s41, s49")
    e(f"s_mov_b32 s{S_MISC+2}, 256")
    e(f"s_cselect_b32 s{S_MISC+2}, {16384*26}, s{S_MISC+2}")
    e(f"s_cmp_eq_u32 s{sW}, 3")
    e(f"s_cselect_b32 s{S_MISC}, s50, s{S_MISC}")
    e(f"s_cselect_b32 s{S_MISC+1}, s51, s{S_MISC+1}")
    e(f"s_and_b32 s{S_MISC+1}, s{S_MISC+1}, 0xffff")
    e(f"s_mov_b32 s{S_MISC+3}, 0x20000")
    e(f"s_mul_i32 s{sT0}, s{sKeepRow}, 26")
    e(f"s_add_u32 s{sT0}, s{sT0}, s{sW1024}")
    e(f"s_cmp_lt_u32 s{sW}, 2")
    e(f"s_cselect_b32 s{sT0}, s{sT0}, 0")
    e(f"s_add_u32 m0, s{sW1024}, {XW}")
    e("s_nop 0")
    E.vmem(f"buffer_load_dwordx4 v{vT}, s[{S_MISC}:{S_MISC+3}], s{sT0} offen lds", "misc")
    vSm = 112
    vSm = X + 8
    e(f"v_lshlrev_b32 v{vSm}, 1, v{vLane}")
    for n, (p, size) in enumerate(((42, 26), (44, 2), (52, 2))):
        srd(S_SM, p, size)
        E.vmem(f"buffer_load_ushort v{vSm+1+n}, v{vSm}, s[{S_SM}:{S_SM+3}], 0 offen", "small")
        e("s_nop 0")
    srd(S_OUT, 54, 16384*2)
    srd(S_DBG, 56, 256)
    srd(S_WS, 58, 256*32768)
    stamp()
    e(f"v_lshrrev_b32 v{X}, 2, v{vLane}")
    e(f"s_lshl_b32 s{sT0}, s{sW}, 4")
    e(f"v_add_u32 v{X}, s{sT0}, v{X}")
    e(f"v_mul_u32_u24 v{vIdxB}, 400, v{X}")
    e(f"s_mul_i32 s{sT0}, s{sKh}, 200")
    e(f"s_add_u32 s{sT0}, s{sT0}, {IDX}")
    e(f"v_add_u32 v{vIdxB}, s{sT0}, v{vIdxB}")
    e(f"v_and_b32 v{X}, 31, v{vLane}")
    e(f"v_lshlrev_b32 v{X}, 6, v{X}")
    e(f"v_add_u32 v{X}, {ARING}, v{X}")
    e(f"v_lshrrev_b32 v{X+1}, 5, v{vLane}")
    e(f"v_bfe_u32 v{X+2}, v{vLane}, 2, 2")
    e(f"v_xor_b32 v{X+3}, v{X+1}, v{X+2}")
    e(f"v_lshl_add_u32 v{vE0}, v{X+3}, 4, v{X}")
    e(f"v_xor_b32 v{X+3}, 2, v{X+3}")
    e(f"v_lshl_add_u32 v{vE1}, v{X+3}, 4, v{X}")
    e(f"v_lshl_add_u32 v{X+3}, v{X+1}, 3, v{X+2}")
    e(f"v_lshlrev_b32 v{X+3}, 8, v{X+3}")
    e(f"v_bfe_u32 v{X+4}, v{vLane}, 4, 1")
    e(f"v_lshlrev_b32 v{X+4}, 1, v{X+4}")
    e(f"v_bfe_u32 v{X+5}, v{vLane}, 1, 1")
    e(f"v_add_u32 v{X+4}, v{X+4}, v{X+5}")
    e(f"s_lshl_b32 s{sT0}, s{sW}, 2")
    e(f"v_add_u32 v{X+4}, s{sT0}, v{X+4}")
    e(f"v_lshlrev_b32 v{X+2}, 2, v{X+2}")
    e(f"v_xor_b32 v{X+4}, v{X+4}, v{X+2}")
    e(f"v_and_b32 v{X+5}, 1, v{vLane}")
    e(f"v_lshlrev_b32 v{X+5}, 3, v{X+5}")
    e(f"v_add_u32 v{X+3}, v{X+3}, v{X+5}")
    e(f"v_lshl_add_u32 v{vWtr}, v{X+4}, 4, v{X+3}")
    e(f"s_xor_b32 s{sT0}, s2, 8")
    e(f"s_and_b32 s{sT0}, s{sT0}, 0xfc")
    e(f"v_mov_b32 v{vFlagOff}, s{sT0}")
    E.wait_vm(["idxS"])
    e("s_barrier")
    stamp()
    E.drain_ds()

    colreg = {"S": sColS, "K": sColK}
    def idx_read(sub, pair, dst):
        e(f"v_add_u32 v{vT2}, s{colreg[sub]}, v{vIdxB}")
        E.dsop(f"ds_read_b64 v[{dst}:{dst+1}], v{vT2} offset:{25600 if sub == 'K' else 0}", ("idx", sub, pair))
        c = colreg[sub]
        e(f"s_add_u32 s{c}, s{c}, 8")
        e(f"s_cmp_ge_u32 s{c}, 200")
        e(f"s_cselect_b32 s{c}, 0, s{c}")
    def g_issue(i, reg):
        slot = ARING + (i % NA) * 4096
        e(f"v_lshl_add_u32 v{reg}, v{reg}, 6, v{vPiece}")
        e(f"s_add_u32 m0, s{sW1024}, {slot}")
        e("s_nop 0")
        E.vmem(f"buffer_load_dwordx4 v{reg}, s[{S_TAB}:{S_TAB+3}], 0 offen lds", ("G", i))
    pre = items[:DG]
    need_pairs = []
    for (sub, j) in pre:
        if (sub, j >> 1) not in need_pairs: need_pairs.append((sub, j >> 1))
    if any(s == "K" for s, _ in need_pairs):
        E.wait_vm(["idxK"]); e("s_barrier")
    tmp = {}
    tb = X + 12
    for n, (sub, p) in enumerate(need_pairs):
        tmp[(sub, p)] = tb + 2 * n
        assert tb + 2 * n + 1 < vACC["S"]
        idx_read(sub, p, tb + 2 * n)
    pair_state = {}
    E.drain_ds()
    for i, (sub, j) in enumerate(pre):
        g_issue(i, tmp[(sub, j >> 1)] + (j & 1))
    nxt_pair = {"S": 0, "K": 0}
    for sub in ("S", "K"):
        used = [j for (s, j) in pre if s == sub]
        if used and (used[-1] & 1) == 0:
            p = used[-1] >> 1
            e(f"v_mov_b32 v{vI[sub]+1}, v{tmp[(sub, p)]+1}")
            pair_state[sub] = p
            nxt_pair[sub] = p + 1
        else:
            nxt_pair[sub] = (used[-1] >> 1) + 1 if used else 0
            pair_state[sub] = None
    stamp()
    E.wait_vm(["small"])
    for n in range(3):
        e(f"v_lshlrev_b32 v{vSm+1+n}, 16, v{vSm+1+n}")
    e("s_nop 0")
    for j in range(13):
        e(f"v_readlane_b32 s{sWW+j}, v{vSm+1}, {j}")
    e(f"v_readlane_b32 s{sBW}, v{vSm+2}, 0")
    e(f"v_readlane_b32 s{sB2}, v{vSm+3}, 0")

    def ensure_pair(sub, pair, idxk_ok):
        if pair_state[sub] != pair and pair < 25:
            assert pair == nxt_pair[sub], (sub, pair, nxt_pair)
            idx_read(sub, pair, vI[sub])
            pair_state[sub] = pair
            nxt_pair[sub] = pair + 1

    def e_reads(i):
        buf = vEB + (i % 2) * 16
        slot = (i % NA) * 4096
        for s in range(2):
            for rb in range(2):
                d = buf + (s * 2 + rb) * 4
                E.dsop(f"ds_read_b128 v[{d}:{d+3}], v{vE1 if s else vE0} offset:{slot + rb*2048}", ("E", i))
    def w_tr(slot):
        buf = WST + (slot % NWB) * 8192
        for s in range(2):
            for t in range(2):
                E.dsop(f"ds_read_b64_tr_b16 {wreg(slot, s*4 + t*2, 2)}, v{vWtr} offset:{buf + s*4096 + t*1024}", ("Wtr", slot))

    tr_at = {}
    dma_at = {}
    for j in range(50):
        tr_at.setdefault(first_use[j] - 1, []).append(j)
        if j >= npre:
            t = first_use[j - NWB] + 1
            t += t & 1
            dma_at.setdefault(t, []).append(j)
            assert t + 2 <= first_use[j] - 1, (j, t, first_use[j])
    idxK_waited = any(s == "K" for s, _ in need_pairs)
    b1_done = False

    def init_accK():
        E.wait_vm(["misc"])
        e("s_barrier")
        e(f"v_lshrrev_b32 v{vT2}, 5, v{vLane}")
        e(f"v_lshlrev_b32 v{vT2}, 3, v{vT2}")
        e(f"s_lshl_b32 s{sT0}, s{sW}, 6")
        e(f"v_add_u32 v{vT2}, s{sT0}, v{vT2}")
        e(f"v_add_u32 v{vT2}, {B1}, v{vT2}")
        a = vACC["K"]
        for q in range(4):
            E.dsop(f"ds_read_b64 v[{a+16+2*q}:{a+17+2*q}], v{vT2} offset:{16*q}", "b1")
        E.drain_ds()
        for q in range(4):
            s0 = a + 16 + 2 * q
            e(f"v_lshlrev_b32 v{a+4*q}, 16, v{s0}")
            e(f"v_and_b32 v{a+4*q+1}, 0xffff0000, v{s0}")
            e(f"v_lshlrev_b32 v{a+4*q+2}, 16, v{s0+1}")
            e(f"v_and_b32 v{a+4*q+3}, 0xffff0000, v{s0+1}")
        for r in range(16):
            e(f"v_mov_b32 v{a+16+r}, v{a+r}")
    init_accK()

    sig_step = lastS + 1 + sig_delay
    sig_step += sig_step & 1
    part_ok = max(last_use[j] for j in range(6)) + 1
    load_step = max(part_ok, 100 - poll_lead + 4)
    poll_step = load_step - 4
    assert poll_step > sig_step or True
    firstS_done = False

    for t in range(-2, 100):
        if t % 2 == 0:
            need = []
            for i in (t + 1, t + 2):
                if 0 <= i < 100: need.append(("G", i))
            for tt in (t, t + 1):
                for j in tr_at.get(tt, []): need.append(("W", j))
            if not idxK_waited:
                fut = [i for i in range(max(t + DG, 0), min(t + DG + 4, 100)) if items[i][0] == "K"]
                if fut:
                    need.append("idxK"); idxK_waited = True
            if t == sig_step: need.append("Pst")
            if need: E.wait_vm(need)
            e("s_barrier")
            if t == sig_step:
                e(f"s_and_b32 s{sT1}, s2, 0xfc")
                e(f"v_mov_b32 v{vT}, s{sT1}")
                e(f"v_mov_b32 v{vFlag}, s{sFlagBit}")
                e(f"s_cmp_eq_u32 s{sW}, 0")
                e(f"s_cselect_b32 s{sT0}, 1, 0")
                e(f"s_mov_b32 exec_hi, 0")
                e(f"s_mov_b32 exec_lo, s{sT0}")
                E.vmem(f"buffer_atomic_add v{vFlag}, v{vT}, s[{S_DBG}:{S_DBG+3}], 0 offen", "sig")
                e("s_mov_b64 exec, -1")
                e("s_nop 3")
        mf = []
        if t >= 0:
            sub, j = items[t]
            buf = vEB + (t % 2) * 16
            a = vACC[sub]
            E.wait_ds([("E", t), ("Wtr", j)])
            for s in range(2):
                for rb in range(2):
                    c = f"v[{a+rb*16}:{a+rb*16+15}]"
                    src = "0" if (sub == "S" and j == 0 and s == 0) else c
                    mf.append(f"v_mfma_f32_32x32x16_bf16 {c}, {wreg(j, s*4, 4)}, v[{buf+(s*2+rb)*4}:{buf+(s*2+rb)*4+3}], {src}")
        def mfma(n):
            if n < len(mf): e(mf[n])
        mfma(0)
        if 0 <= t + 1 < 100: e_reads(t + 1)
        mfma(1)
        gi = t + DG
        if DG <= gi < 100 and t >= 0:
            sub2, j2 = items[gi]
            assert pair_state[sub2] == (j2 >> 1), (t, gi, sub2, j2, pair_state)
            E.wait_ds([("idx", sub2, j2 >> 1)]) if ("idx", sub2, j2 >> 1) in E.ds else None
            g_issue(gi, vI[sub2] + (j2 & 1))
            if j2 & 1: pair_state[sub2] = None
        mfma(2)
        for j in dma_at.get(t, []): w_dma(j)
        for j in tr_at.get(t, []): w_tr(j)
        mfma(3)
        for look in (t + 1 + DG, t + 2 + DG):
            if DG <= look < 100 and t >= -1:
                sub3, j3 = items[look]
                if pair_state[sub3] is None and (j3 & 1) == 0:
                    ensure_pair(sub3, j3 >> 1, True)
        if t == lastS:
            e("s_nop 15")
            a = vACC["S"]
            e(f"v_lshlrev_b32 v{vT}, 4, v{vLane}")
            for q in range(8):
                E.vmem(f"buffer_store_dwordx4 v[{a+4*q}:{a+4*q+3}], v{vT}, s[{S_WS}:{S_WS+3}], s{sMyOff} offen offset:{(q%4)*1024} sc1" if q < 4 else
                       f"buffer_store_dwordx4 v[{a+4*q}:{a+4*q+3}], v{vT}, s[{S_WS}:{S_WS+3}], s{sT0} offen offset:{(q%4)*1024} sc1", "Pst")
                if q == 3: e(f"s_add_u32 s{sT0}, s{sMyOff}, 4096")
            stamp()
        if t == poll_step:
            E.vmem(f"buffer_load_dword v{vFlag}, v{vFlagOff}, s[{S_DBG}:{S_DBG+3}], 0 offen sc1", "poll")
        if t == load_step:
            E.wait_vm(["poll"])
            e(f"v_readfirstlane_b32 s{sT0}, v{vFlag}")
            e("s_nop 1")
            e(f"s_and_b32 s{sT0}, s{sT0}, s{sFlagBit}")
            e("s_cbranch_scc0 L_spin")
            e("L_spin_done:")
            e(f"v_lshlrev_b32 v{vT}, 4, v{vLane}")
            e(f"s_add_u32 s{sT0}, s{sPartOff}, 4096")
            for q in range(8):
                so = sPartOff if q < 4 else sT0
                E.vmem(f"buffer_load_dwordx4 v[{112+4*q}:{112+4*q+3}], v{vT}, s[{S_WS}:{S_WS+3}], s{so} offen offset:{(q%4)*1024} sc1", "Pld")
    stamp()
    vW2 = 144
    e(f"v_lshrrev_b32 v{vT2}, 5, v{vLane}")
    e(f"v_lshlrev_b32 v{vT2}, 3, v{vT2}")
    e(f"s_lshl_b32 s{sT0}, s{sW}, 6")
    e(f"v_add_u32 v{vT2}, s{sT0}, v{vT2}")
    e(f"v_add_u32 v{vT2}, {W2}, v{vT2}")
    for q in range(4):
        E.dsop(f"ds_read_b64 v[{vEB+2*q}:{vEB+2*q+1}], v{vT2} offset:{16*q}", "w2")
    E.drain_ds()
    for q in range(4):
        s0 = vEB + 2 * q
        e(f"v_lshlrev_b32 v{vW2+4*q}, 16, v{s0}")
        e(f"v_and_b32 v{vW2+4*q+1}, 0xffff0000, v{s0}")
        e(f"v_lshlrev_b32 v{vW2+4*q+2}, 16, v{s0+1}")
        e(f"v_and_b32 v{vW2+4*q+3}, 0xffff0000, v{s0+1}")
    E.wait_vm(["Pld"])
    e("s_nop 7")
    a = vACC["K"]
    R = vEB + 8
    for rb in range(2):
        e(f"v_mov_b32 v{R+rb}, 0")
    for rb in range(2):
        for r in range(16):
            x = a + rb * 16 + r
            e(f"v_add_f32 v{x}, v{x}, v{112+rb*16+r}")
            e(f"v_max_f32 v{x}, 0, v{x}")
            e(f"v_fmac_f32 v{R+rb}, v{x}, v{vW2+r}")
    e(f"v_lshrrev_b32 v{vT}, 5, v{vLane}")
    e(f"v_lshlrev_b32 v{vT}, 8, v{vT}")
    e(f"v_and_b32 v{vT2}, 31, v{vLane}")
    e(f"v_lshl_add_u32 v{vT}, v{vT2}, 2, v{vT}")
    e(f"s_lshl_b32 s{sT0}, s{sW}, 9")
    e(f"v_add_u32 v{vT}, s{sT0}, v{vT}")
    e("s_barrier")
    E.dsop(f"ds_write_b32 v{vT}, v{R} offset:{RED}", "red")
    E.dsop(f"ds_write_b32 v{vT}, v{R+1} offset:{RED+128}", "red")
    E.drain_ds()
    e("s_barrier")
    e(f"s_cmp_lg_u32 s{sW}, 0")
    e("s_cbranch_scc1 L_end")
    e(f"v_lshlrev_b32 v{vT}, 2, v{vLane}")
    Y = vEB + 12
    for kk in range(8):
        e(f"ds_read_b32 v{Y+kk}, v{vT} offset:{RED + kk*256}")
    e(f"v_mul_u32_u24 v{vT2}, 26, v{vLane}")
    e(f"v_add_u32 v{vT2}, {XW}, v{vT2}")
    Z = 48
    for j in range(13):
        e(f"ds_read_u16 v{Z+j}, v{vT2} offset:{2*j}")
    e("s_waitcnt lgkmcnt(0)")
    for kk in range(1, 8):
        e(f"v_add_f32 v{Y}, v{Y}, v{Y+kk}")
    e(f"v_add_f32 v{Y}, s{sB2}, v{Y}")
    e(f"v_mov_b32 v{Y+1}, s{sBW}")
    for j in range(13):
        e(f"v_lshlrev_b32 v{Z+j}, 16, v{Z+j}")
        e(f"v_fmac_f32 v{Y+1}, s{sWW+j}, v{Z+j}")
    e(f"v_add_f32 v{Y}, v{Y}, v{Y+1}")
    e(f"v_mul_f32 v{Y}, 0xbfb8aa3b, v{Y}")
    e(f"v_exp_f32 v{Y}, v{Y}")
    e("s_nop 0")
    e(f"v_add_f32 v{Y}, 1.0, v{Y}")
    e(f"v_rcp_f32 v{Y}, v{Y}")
    e("s_nop 0")
    e(f"v_cvt_pk_bf16_f32 v{Y}, v{Y}, v{Y}")
    e(f"s_lshl_b32 s{sT0}, s{sKeepRow}, 1")
    e(f"v_lshlrev_b32 v{vT}, 1, v{vLane}")
    e(f"buffer_store_short v{Y}, v{vT}, s[{S_OUT}:{S_OUT+3}], s{sT0} offen")
    if diag:
        e(f"s_memrealtime s[{sTS+2}:{sTS+3}]")
        e("s_waitcnt lgkmcnt(0)")
        e(f"s_add_u32 s{S_SM}, s58, {16<<20}")
        e(f"s_addc_u32 s{S_SM+1}, s59, 0")
        e(f"s_and_b32 s{S_SM+1}, s{S_SM+1}, 0xffff")
        e(f"s_mov_b32 s{S_SM+2}, 65536")
        e(f"s_mov_b32 s{S_SM+3}, 0x20000")
        e(f"s_lshl_b32 s{sT0}, s2, 7")
        e(f"v_cmp_eq_u32 vcc, 0, v{vLane}")
        e("s_and_saveexec_b64 s[4:5], vcc")
        e(f"v_mov_b32 v{vT}, 0")
        regs = [sTS, sTS+1, sTS+2, sTS+3] + list(range(36, 52))
        nst = (stamp_next[0] - 36)
        for g in range(5):
            for jj in range(4):
                r = regs[g*4+jj]
                if r >= 36 and r < 52 and r >= stamp_next[0]:
                    e(f"v_mov_b32 v{Z+jj}, 0")
                else:
                    e(f"v_mov_b32 v{Z+jj}, s{r}")
            e(f"buffer_store_dwordx4 v[{Z}:{Z+3}], v{vT}, s[{S_SM}:{S_SM+3}], s{sT0} offen offset:{16*g}")
            e("s_nop 1")
    e("s_endpgm")
    e("L_spin:")
    e(f"s_mov_b32 s{sSpin}, {1<<17}")
    e("L_spin_loop:")
    e(f"buffer_load_dword v{vFlag}, v{vFlagOff}, s[{S_DBG}:{S_DBG+3}], 0 offen sc1")
    e("s_waitcnt vmcnt(0)")
    e(f"v_readfirstlane_b32 s{sT0}, v{vFlag}")
    e("s_nop 1")
    e(f"s_and_b32 s{sT0}, s{sT0}, s{sFlagBit}")
    e("s_cbranch_scc1 L_spin_done")
    e(f"s_sub_u32 s{sSpin}, s{sSpin}, 1")
    e(f"s_cmp_lg_u32 s{sSpin}, 0")
    e("s_cbranch_scc1 L_spin_loop")
    e("s_branch L_spin_done")
    e("L_end:")
    e("s_endpgm")
    body = "\n".join(E.L)
    out = HEADER
    out += "; Override launch geometry by editing the next line (default: block=256,\n"
    out += f"; @launch grid=(256,1,1) block=(256,1,1) lds={LDS_TOTAL}\n"
    out += f""".amdgcn_target "amdgcn-amd-amdhsa--gfx950"
.text
.globl {NAME}_kernel
.p2align 8
.type {NAME}_kernel,@function
{NAME}_kernel:
{body}
.section .rodata,"a"
.p2align 6
.amdhsa_kernel {NAME}_kernel
  .amdhsa_next_free_vgpr 512
  .amdhsa_next_free_sgpr 102
  .amdhsa_accum_offset 256
  .amdhsa_group_segment_fixed_size 0
  .amdhsa_kernarg_size 96
  .amdhsa_user_sgpr_count 2
  .amdhsa_user_sgpr_kernarg_segment_ptr 1
  .amdhsa_system_sgpr_workgroup_id_x 1
  .amdhsa_float_denorm_mode_32 3
.end_amdhsa_kernel
"""
    return out

if __name__ == "__main__":
    kw = {}
    path = None
    for a in sys.argv[1:]:
        if a.endswith(".s"): path = a
        elif a == "diag": kw["diag"] = True
        elif "=" in a:
            n, v = a.split("="); kw[n] = int(v)
    s = gen(**kw)
    open(path or "cdna_kernels/" + NAME + ".s", "w").write(s)
```

```python
import sys

NAME = "standalone__deep_cross_wide_deep__recsys"
HEADER = open("cdna_kernels/" + NAME + ".s.ref").read().split("; Override launch geometry")[0]

def gen(diag=False, rot=True, nslots=5):
    L = []
    def e(s=""): L.append("    " + s if s and not s.endswith(":") else s)
    NS = nslots
    PD = NS - 1
    IDX = 0
    XW = 25600
    B1 = XW + 2048
    W2 = B1 + 1024
    RING = W2 + 1024
    SLOT = 24576
    RED = IDX
    LDS_TOTAL = RING + NS * SLOT
    assert LDS_TOTAL <= 163840
    S_IDX, S_TAB, S_W1, S_MISC, S_OUT, S_SM = 8, 12, 16, 20, 24, 28
    sW, sW1024, sWw, sRd, sLd, sP, sFoff, sP8, sCnt, sT0, sT1 = 56, 57, 58, 59, 60, 61, 62, 63, 64, 65, 66
    sWW = 68
    sBW, sB2 = 81, 82
    sWg = 83
    sWoff = 84
    sTS = 86
    vLane, vPiece, vWoff, vIdxB, vE0c, vE1c, vB0c, vB1c = 1, 2, 3, 4, 5, 6, 7, 8
    vI0, vI1, vO0, vO1, vT = 10, 11, 12, 13, 14
    vE0, vE1, vB0, vB1 = 16, 17, 18, 19
    vFR = 20
    vW2 = 68
    vACC = 100
    vX = 132

    e(f"s_cmp_ge_u32 s2, 256")
    e(f"s_cbranch_scc1 L_end")
    if diag: e(f"s_memrealtime s[{sTS}:{sTS+1}]")
    e("s_load_dwordx16 s[36:51], s[0:1], 0")
    e("s_load_dwordx4 s[52:55], s[0:1], 64")
    if diag: e("s_load_dwordx2 s[90:91], s[0:1], 88")
    e(f"s_mov_b32 s{sWg}, s2")
    e(f"v_and_b32 v{vLane}, 63, v0")
    e(f"v_lshrrev_b32 v{vT}, 6, v0")
    e("s_nop 0")
    e(f"v_readfirstlane_b32 s{sW}, v{vT}")
    e(f"v_and_b32 v{vX}, 3, v{vLane}")
    e(f"v_bfe_u32 v{vX+1}, v{vLane}, 4, 2")
    e(f"v_xor_b32 v{vX}, v{vX}, v{vX+1}")
    e(f"v_lshlrev_b32 v{vPiece}, 4, v{vX}")
    e(f"v_and_b32 v{vX}, 15, v{vLane}")
    e(f"v_lshlrev_b32 v{vX+2}, 2, v{vX+1}")
    e(f"v_xor_b32 v{vX}, v{vX}, v{vX+2}")
    e(f"v_lshlrev_b32 v{vX}, 4, v{vX}")
    e(f"v_lshl_add_u32 v{vWoff}, v{vX+1}, 8, v{vX}")
    e(f"v_lshlrev_b32 v{vT}, 4, v{vLane}")
    e(f"s_lshl_b32 s{sW1024}, s{sW}, 10")
    e(f"s_lshl_b32 s{sWoff}, s{sW}, 12")
    e(f"s_add_u32 s{sWw}, s{sWoff}, 8192")
    if rot:
        e(f"s_lshr_b32 s{sP}, s2, 3")
        e(f"s_mul_i32 s{sP}, s{sP}, 25")
        e(f"s_lshr_b32 s{sP}, s{sP}, 4")
    else:
        e(f"s_mov_b32 s{sP}, 0")
    e("s_waitcnt lgkmcnt(0)")
    def srd(d, p, size):
        e(f"s_mov_b32 s{d}, s{p}")
        e(f"s_and_b32 s{d+1}, s{p+1}, 0xffff")
        e(f"s_mov_b32 s{d+2}, {size}")
        e(f"s_mov_b32 s{d+3}, 0x20000")
    srd(S_IDX, 36, 16384*400)
    srd(S_TAB, 38, 100000*64)
    srd(S_W1, 46, 3200*256)
    srd(S_OUT, 54, 16384*2)
    e(f"s_mul_i32 s{sT0}, s{sWg}, 25600")
    e(f"s_mul_i32 s{sT1}, s{sW}, 6144")
    e(f"s_add_u32 s{sT0}, s{sT0}, s{sT1}")
    e(f"s_add_u32 m0, s{sT1}, {IDX}")
    e("s_nop 0")
    for j in range(4):
        e(f"buffer_load_dwordx4 v{vT}, s[{S_IDX}:{S_IDX+3}], s{sT0} offen offset:{j*1024} lds")
    e(f"s_add_u32 m0, m0, 4096")
    e(f"s_add_u32 s{sT0}, s{sT0}, 4096")
    for j in range(3):
        e(f"buffer_load_dwordx4 v{vT}, s[{S_IDX}:{S_IDX+3}], s{sT0} offen offset:{j*1024} lds")
    e(f"s_cmp_lt_u32 s{sW}, 2")
    e(f"s_cselect_b32 s{S_MISC}, s40, s48")
    e(f"s_cselect_b32 s{S_MISC+1}, s41, s49")
    e(f"s_mov_b32 s{S_MISC+2}, 256")
    e(f"s_cselect_b32 s{S_MISC+2}, {16384*26}, s{S_MISC+2}")
    e(f"s_cmp_eq_u32 s{sW}, 3")
    e(f"s_cselect_b32 s{S_MISC}, s50, s{S_MISC}")
    e(f"s_cselect_b32 s{S_MISC+1}, s51, s{S_MISC+1}")
    e(f"s_and_b32 s{S_MISC+1}, s{S_MISC+1}, 0xffff")
    e(f"s_mov_b32 s{S_MISC+3}, 0x20000")
    e(f"s_mul_i32 s{sT0}, s{sWg}, 1664")
    e(f"s_add_u32 s{sT0}, s{sT0}, s{sW1024}")
    e(f"s_cmp_lt_u32 s{sW}, 2")
    e(f"s_cselect_b32 s{sT0}, s{sT0}, 0")
    e(f"s_add_u32 m0, s{sW1024}, {XW}")
    e("s_nop 0")
    e(f"buffer_load_dwordx4 v{vT}, s[{S_MISC}:{S_MISC+3}], s{sT0} offen lds")
    e(f"v_lshlrev_b32 v{vX+4}, 1, v{vLane}")
    for (p, size, dst) in ((42, 26, vX+5), (44, 2, vX+6), (52, 2, vX+7)):
        srd(S_SM, p, size)
        e(f"buffer_load_ushort v{dst}, v{vX+4}, s[{S_SM}:{S_SM+3}], 0 offen")
        e("s_nop 0")
    NMISC = 7 + 1 + 3
    def next_pair(sreg):
        e(f"s_add_u32 s{sreg}, s{sreg}, 1")
        e(f"s_cmp_ge_u32 s{sreg}, 50")
        e(f"s_cselect_b32 s{sreg}, 0, s{sreg}")
    def w_loads(slot_sreg_or_imm, pair_sreg):
        if isinstance(slot_sreg_or_imm, int):
            e(f"s_add_u32 m0, s{sWw}, {slot_sreg_or_imm}")
        else:
            e(f"s_add_u32 m0, s{sWw}, {slot_sreg_or_imm}")
        e(f"s_lshl_b32 s{sFoff}, s{pair_sreg}, 14")
        e(f"s_add_u32 s{sFoff}, s{sFoff}, s{sWoff}")
        for q in range(4):
            e(f"buffer_load_dwordx4 v{vWoff}, s[{S_W1}:{S_W1+3}], s{sFoff} offen offset:{q*1024} lds")
    sPt = 85
    e(f"s_mov_b32 s{sPt}, s{sP}")
    for st in range(PD):
        w_loads(RING + st*SLOT, sPt)
        next_pair(sPt)
    e(f"v_lshrrev_b32 v{vX}, 2, v{vLane}")
    e(f"s_lshl_b32 s{sT0}, s{sW}, 4")
    e(f"v_add_u32 v{vX}, s{sT0}, v{vX}")
    e(f"v_mul_u32_u24 v{vIdxB}, 400, v{vX}")
    e(f"s_lshr_b32 s{sT0}, s{sW}, 1")
    e(f"s_lshl_b32 s{sT0}, s{sT0}, 11")
    e(f"v_and_b32 v{vX}, 31, v{vLane}")
    e(f"v_lshlrev_b32 v{vX}, 6, v{vX}")
    e(f"v_add_u32 v{vX}, s{sT0}, v{vX}")
    e(f"v_lshrrev_b32 v{vX+1}, 5, v{vLane}")
    e(f"v_bfe_u32 v{vX+2}, v{vLane}, 2, 2")
    e(f"v_xor_b32 v{vX+3}, v{vX+1}, v{vX+2}")
    e(f"v_lshl_add_u32 v{vE0c}, v{vX+3}, 4, v{vX}")
    e(f"v_xor_b32 v{vX+3}, 2, v{vX+3}")
    e(f"v_lshl_add_u32 v{vE1c}, v{vX+3}, 4, v{vX}")
    e(f"v_bfe_u32 v{vX}, v{vLane}, 2, 2")
    e(f"v_lshl_add_u32 v{vX+2}, v{vX+1}, 3, v{vX}")
    e(f"v_lshlrev_b32 v{vX+2}, 8, v{vX+2}")
    e(f"v_bfe_u32 v{vX+3}, v{vLane}, 4, 1")
    e(f"v_lshlrev_b32 v{vX+3}, 1, v{vX+3}")
    e(f"v_bfe_u32 v{vX+8}, v{vLane}, 1, 1")
    e(f"v_add_u32 v{vX+3}, v{vX+3}, v{vX+8}")
    e(f"s_and_b32 s{sT0}, s{sW}, 1")
    e(f"s_lshl_b32 s{sT0}, s{sT0}, 3")
    e(f"v_add_u32 v{vX+3}, s{sT0}, v{vX+3}")
    e(f"v_lshlrev_b32 v{vX}, 2, v{vX}")
    e(f"v_and_b32 v{vX+8}, 1, v{vLane}")
    e(f"v_lshlrev_b32 v{vX+8}, 3, v{vX+8}")
    e(f"v_add_u32 v{vX+2}, v{vX+2}, v{vX+8}")
    e(f"v_add_u32 v{vX+2}, 8192, v{vX+2}")
    e(f"v_xor_b32 v{vX+9}, v{vX+3}, v{vX}")
    e(f"v_lshl_add_u32 v{vB0c}, v{vX+9}, 4, v{vX+2}")
    e(f"v_or_b32 v{vX+3}, 4, v{vX+3}")
    e(f"v_xor_b32 v{vX+9}, v{vX+3}, v{vX}")
    e(f"v_lshl_add_u32 v{vB1c}, v{vX+9}, 4, v{vX+2}")
    e(f"s_waitcnt vmcnt({PD*4})")
    e("s_barrier")
    if diag:
        e("s_memrealtime s[94:95]")
        e("s_waitcnt lgkmcnt(0)")
    e(f"v_lshlrev_b32 v{vX+5}, 16, v{vX+5}")
    e(f"v_lshlrev_b32 v{vX+6}, 16, v{vX+6}")
    e(f"v_lshlrev_b32 v{vX+7}, 16, v{vX+7}")
    e("s_nop 0")
    for j in range(13):
        e(f"v_readlane_b32 s{sWW+j}, v{vX+5}, {j}")
    e(f"v_readlane_b32 s{sBW}, v{vX+6}, 0")
    e(f"v_readlane_b32 s{sB2}, v{vX+7}, 0")
    e(f"s_mov_b32 s{sPt}, s{sP}")
    for st in range(PD):
        e(f"s_lshl_b32 s{sP8}, s{sPt}, 3")
        e(f"v_add_u32 v{vT}, s{sP8}, v{vIdxB}")
        e(f"ds_read_b64 v[{vFR+2*st}:{vFR+2*st+1}], v{vT}")
        next_pair(sPt)
    e(f"s_lshl_b32 s{sP8}, s{sPt}, 3")
    e(f"v_add_u32 v{vT}, s{sP8}, v{vIdxB}")
    e(f"ds_read_b64 v[{vI0}:{vI1}], v{vT}")
    for st in range(PD):
        e(f"s_waitcnt lgkmcnt({PD-st})")
        e(f"v_lshl_add_u32 v{vO0}, v{vFR+2*st}, 6, v{vPiece}")
        e(f"v_lshl_add_u32 v{vO1}, v{vFR+2*st+1}, 6, v{vPiece}")
        e(f"s_add_u32 m0, s{sW1024}, {RING+st*SLOT}")
        e("s_nop 0")
        e(f"buffer_load_dwordx4 v{vO0}, s[{S_TAB}:{S_TAB+3}], 0 offen lds")
        e(f"s_add_u32 m0, m0, 4096")
        e("s_nop 0")
        e(f"buffer_load_dwordx4 v{vO1}, s[{S_TAB}:{S_TAB+3}], 0 offen lds")
    e(f"s_and_b32 s{sT0}, s{sW}, 1")
    e(f"s_lshl_b32 s{sT0}, s{sT0}, 7")
    e(f"v_lshrrev_b32 v{vX}, 5, v{vLane}")
    e(f"v_lshlrev_b32 v{vX}, 3, v{vX}")
    e(f"v_add_u32 v{vX}, s{sT0}, v{vX}")
    for (base, dst) in ((B1, vACC), (W2, vW2)):
        for c in range(2):
            for q in range(4):
                e(f"ds_read_b64 v[{vFR+16+(c*4+q)*2}:{vFR+16+(c*4+q)*2+1}], v{vX} offset:{base + (32*c+8*q)*2}")
        e("s_waitcnt lgkmcnt(0)")
        for c in range(2):
            for q in range(4):
                s0 = vFR+16+(c*4+q)*2
                d = dst + c*16 + q*4
                e(f"v_lshlrev_b32 v{d}, 16, v{s0}")
                e(f"v_and_b32 v{d+1}, 0xffff0000, v{s0}")
                e(f"v_lshlrev_b32 v{d+2}, 16, v{s0+1}")
                e(f"v_and_b32 v{d+3}, 0xffff0000, v{s0+1}")
    if diag:
        e("s_memrealtime s[96:97]")
        e("s_waitcnt lgkmcnt(0)")
        e("s_mov_b32 s100, 0")
        e("s_mov_b32 s101, 0")
    e(f"s_mov_b32 s{sLd}, {RING + PD*SLOT}")
    e(f"s_mov_b32 s{sRd}, {RING}")

    def bump_slot(sreg):
        e(f"s_add_u32 s{sreg}, s{sreg}, {SLOT}")
        e(f"s_cmp_ge_u32 s{sreg}, {RING + NS*SLOT}")
        e(f"s_cselect_b32 s{sreg}, {RING}, s{sreg}")

    def stage(wait, load):
        e(f"s_waitcnt vmcnt({wait})")
        e("s_barrier")
        if load:
            e(f"v_lshl_add_u32 v{vO0}, v{vI0}, 6, v{vPiece}")
            e(f"v_lshl_add_u32 v{vO1}, v{vI1}, 6, v{vPiece}")
            e(f"s_add_u32 m0, s{sLd}, s{sW1024}")
            e("s_nop 0")
            e(f"buffer_load_dwordx4 v{vO0}, s[{S_TAB}:{S_TAB+3}], 0 offen lds")
            e(f"s_add_u32 m0, m0, 4096")
            e("s_nop 0")
            e(f"buffer_load_dwordx4 v{vO1}, s[{S_TAB}:{S_TAB+3}], 0 offen lds")
            w_loads(f"s{sLd}", sPt)
            next_pair(sPt)
            bump_slot(sLd)
            e(f"s_lshl_b32 s{sP8}, s{sPt}, 3")
            e(f"v_add_u32 v{vT}, s{sP8}, v{vIdxB}")
            e(f"ds_read_b64 v[{vI0}:{vI1}], v{vT}")
        e(f"v_add_u32 v{vE0}, s{sRd}, v{vE0c}")
        e(f"v_add_u32 v{vE1}, s{sRd}, v{vE1c}")
        e(f"v_add_u32 v{vB0}, s{sRd}, v{vB0c}")
        e(f"v_add_u32 v{vB1}, s{sRd}, v{vB1c}")
        def grp(g):
            j, s = g >> 1, g & 1
            r = vFR + g*12
            e(f"ds_read_b128 v[{r}:{r+3}], v{vE1 if s else vE0} offset:{j*4096}")
            for c in range(2):
                for t in range(2):
                    d = r + 4 + c*4 + t*2
                    e(f"ds_read_b64_tr_b16 v[{d}:{d+1}], v{vB1 if c else vB0} offset:{j*8192 + s*4096 + t*1024}")
        def mm(g):
            r = vFR + g*12
            for c in range(2):
                a = vACC + c*16
                e(f"v_mfma_f32_32x32x16_bf16 v[{a}:{a+15}], v[{r+4+c*4}:{r+7+c*4}], v[{r}:{r+3}], v[{a}:{a+15}]")
        grp(0); grp(1)
        e("s_waitcnt lgkmcnt(5)"); mm(0)
        grp(2)
        e("s_waitcnt lgkmcnt(5)"); mm(1)
        grp(3)
        e("s_waitcnt lgkmcnt(5)"); mm(2)
        e("s_waitcnt lgkmcnt(0)"); mm(3)
        bump_slot(sRd)

    NST = 50
    per = 6
    for i in range(PD-1):
        stage(2*(PD-1-i) + per*i, True)
    nloop = (NST - PD) - (PD-1)
    e(f"s_mov_b32 s{sCnt}, {nloop}")
    e("L_loop:")
    stage(per*(PD-1), True)
    e(f"s_sub_u32 s{sCnt}, s{sCnt}, 1")
    e(f"s_cmp_lg_u32 s{sCnt}, 0")
    e("s_cbranch_scc1 L_loop")
    for i in range(PD):
        stage(per*(PD-1-i), False)
    if diag:
        e("s_memrealtime s[98:99]")
        e("s_waitcnt lgkmcnt(0)")
    e("s_nop 15")
    e(f"v_mov_b32 v{vX}, 0")
    e(f"v_mov_b32 v{vX+1}, 0")
    for c in range(2):
        for r in range(16):
            a = vACC + c*16 + r
            e(f"v_max_f32 v{a}, 0, v{a}")
            e(f"v_fmac_f32 v{vX + (r&1)}, v{a}, v{vW2 + c*16 + r}")
    e(f"v_add_f32 v{vX}, v{vX}, v{vX+1}")
    e(f"s_lshl_b32 s{sT0}, s{sW}, 8")
    e(f"v_lshlrev_b32 v{vX+2}, 2, v{vLane}")
    e(f"v_add_u32 v{vX+2}, s{sT0}, v{vX+2}")
    e(f"ds_write_b32 v{vX+2}, v{vX} offset:{RED}")
    e("s_waitcnt lgkmcnt(0)")
    e("s_barrier")
    e(f"s_cmp_lg_u32 s{sW}, 0")
    e("s_cbranch_scc1 L_end")
    e(f"v_lshrrev_b32 v{vX}, 5, v{vLane}")
    e(f"v_lshlrev_b32 v{vX}, 9, v{vX}")
    e(f"v_and_b32 v{vX+1}, 31, v{vLane}")
    e(f"v_lshl_add_u32 v{vX}, v{vX+1}, 2, v{vX}")
    for k in range(4):
        e(f"ds_read_b32 v{vX+2+k}, v{vX} offset:{RED + k*128}")
    e(f"v_mul_u32_u24 v{vX+6}, 26, v{vLane}")
    for j in range(13):
        e(f"ds_read_u16 v{vFR+j}, v{vX+6} offset:{XW + 2*j}")
    e("s_waitcnt lgkmcnt(0)")
    e(f"v_add_f32 v{vX+2}, v{vX+2}, v{vX+3}")
    e(f"v_add_f32 v{vX+4}, v{vX+4}, v{vX+5}")
    e(f"v_add_f32 v{vX+2}, v{vX+2}, v{vX+4}")
    e(f"v_add_f32 v{vX+2}, s{sB2}, v{vX+2}")
    e(f"v_mov_b32 v{vX+3}, s{sBW}")
    for j in range(13):
        e(f"v_lshlrev_b32 v{vFR+j}, 16, v{vFR+j}")
        e(f"v_fmac_f32 v{vX+3}, s{sWW+j}, v{vFR+j}")
    e(f"v_add_f32 v{vX+2}, v{vX+2}, v{vX+3}")
    e(f"v_mul_f32 v{vX+2}, 0xbfb8aa3b, v{vX+2}")
    e(f"v_exp_f32 v{vX+2}, v{vX+2}")
    e("s_nop 0")
    e(f"v_add_f32 v{vX+2}, 1.0, v{vX+2}")
    e(f"v_rcp_f32 v{vX+2}, v{vX+2}")
    e("s_nop 0")
    e(f"v_cvt_pk_bf16_f32 v{vX+2}, v{vX+2}, v{vX+2}")
    e(f"s_lshl_b32 s{sT0}, s{sWg}, 7")
    e(f"v_lshlrev_b32 v{vX+3}, 1, v{vLane}")
    e(f"buffer_store_short v{vX+2}, v{vX+3}, s[{S_OUT}:{S_OUT+3}], s{sT0} offen")
    if diag:
        e(f"s_memrealtime s[{sTS+2}:{sTS+3}]")
        e("s_waitcnt lgkmcnt(0)")
        srd(S_SM, 90, 65536)
        e(f"s_lshl_b32 s{sT0}, s{sWg}, 6")
        e(f"v_mov_b32 v{vX+4}, s{sTS}")
        e(f"v_mov_b32 v{vX+5}, s{sTS+1}")
        e(f"v_mov_b32 v{vX+6}, s{sTS+2}")
        e(f"v_mov_b32 v{vX+7}, s{sTS+3}")
        e(f"v_mov_b32 v{vX+8}, 0")
        e(f"v_cmp_eq_u32 vcc, 0, v{vLane}")
        e("s_and_saveexec_b64 s[92:93], vcc")
        e(f"buffer_store_dwordx4 v[{vX+4}:{vX+7}], v{vX+8}, s[{S_SM}:{S_SM+3}], s{sT0} offen")
        for k in range(3):
            e("s_nop 1")
            for j in range(4):
                e(f"v_mov_b32 v{vX+4+j}, s{94 + k*4 + j if 94 + k*4 + j < 102 else 94}")
            e(f"buffer_store_dwordx4 v[{vX+4}:{vX+7}], v{vX+8}, s[{S_SM}:{S_SM+3}], s{sT0} offen offset:{16 + 16*k}")
    e("L_end:")
    e("s_endpgm")
    body = "\n".join(L)
    out = HEADER
    out += "; Override launch geometry by editing the next line (default: block=256,\n"
    out += f"; @launch grid=(256,1,1) block=(256,1,1) lds={LDS_TOTAL}\n"
    out += f""".amdgcn_target "amdgcn-amd-amdhsa--gfx950"
.text
.globl {NAME}_kernel
.p2align 8
.type {NAME}_kernel,@function
{NAME}_kernel:
{body}
.section .rodata,"a"
.p2align 6
.amdhsa_kernel {NAME}_kernel
  .amdhsa_next_free_vgpr 160
  .amdhsa_next_free_sgpr 102
  .amdhsa_accum_offset 160
  .amdhsa_group_segment_fixed_size 0
  .amdhsa_kernarg_size 96
  .amdhsa_user_sgpr_count 2
  .amdhsa_user_sgpr_kernarg_segment_ptr 1
  .amdhsa_system_sgpr_workgroup_id_x 1
  .amdhsa_float_denorm_mode_32 3
.end_amdhsa_kernel
"""
    return out

if __name__ == "__main__":
    diag = "diag" in sys.argv
    path = [a for a in sys.argv[1:] if a.endswith(".s")]
    s = gen(diag=diag, rot="norot" not in sys.argv)
    open(path[0] if path else "cdna_kernels/" + NAME + ".s", "w").write(s)
```

```python
import sys

NAME = "standalone__deep_cross_wide_deep__recsys"
HEADER = open("cdna_kernels/" + NAME + ".s.ref").read().split("; Override launch geometry")[0]


class Em:
    def __init__(self):
        self.L = []
        self.vm = []
        self.vm_done = -1
        self.ds = []
        self.ds_done = -1
    def e(self, s):
        self.L.append(s if s.endswith(":") else "    " + s)
    def vmem(self, s, tag=None):
        self.e(s); self.vm.append(tag)
    def dsop(self, s, tag=None):
        self.e(s); self.ds.append(tag)
    def _need(self, lst, tags):
        idx = -1
        for t in tags:
            cand = [i for i, x in enumerate(lst) if x == t]
            assert cand, f"tag {t} never issued"
            idx = max(idx, cand[-1])
        return idx
    def wait_vm(self, tags):
        idx = self._need(self.vm, tags)
        if idx > self.vm_done:
            n = len(self.vm) - 1 - idx
            assert n <= 63, n
            self.e(f"s_waitcnt vmcnt({n})")
            self.vm_done = idx
    def wait_ds(self, tags):
        idx = self._need(self.ds, tags)
        if idx > self.ds_done:
            n = len(self.ds) - 1 - idx
            if n > 15: n = 15;
            self.e(f"s_waitcnt lgkmcnt({n})")
            self.ds_done = len(self.ds) - 1 - n
    def drain_ds(self):
        self.e("s_waitcnt lgkmcnt(0)"); self.ds_done = len(self.ds) - 1
    def drain_vm(self):
        self.e("s_waitcnt vmcnt(0)"); self.vm_done = len(self.vm) - 1


def make_items(k):
    nK1 = 50 - k
    items = []
    s = kk = 0
    total1 = 50 + nK1
    for pos in range(total1):
        if kk < nK1 and (kk + 1) * 50 <= s * nK1:
            items.append(("K", kk)); kk += 1
        elif s < 50:
            items.append(("S", s)); s += 1
        else:
            items.append(("K", kk)); kk += 1
    while kk < 50:
        items.append(("K", kk)); kk += 1
    assert len(items) == 100
    return items


def gen(diag=False, k=50, NA=10, NWB=8, tlbwarm=True, poll_lead=10, sig_delay=8, nomfma=0, spread=0):
    E = Em(); e = E.e
    DG = NA - 2
    WST = 0
    ARING = WST + NWB * 8192
    IDX = ARING + NA * 4096
    XW = IDX + 51200
    B1 = XW + 2048
    W2 = B1 + 1024
    LDS_TOTAL = W2 + 1024
    RED = WST
    assert LDS_TOTAL <= 163840, LDS_TOTAL
    assert NWB * 8192 <= 65536 and NA * 4096 <= 65536
    S_IDX, S_TAB, S_W1, S_MISC, S_OUT, S_SM, S_WS, S_DBG = 8, 12, 16, 20, 24, 28, 32, 60
    sW, sKh, sColS, sColK, sColW, sW2048, sW1024, sT0, sT1, sWbase, sFoff = 64, 65, 66, 67, 68, 69, 70, 71, 72, 73, 74
    sKeepRow, sPartOff, sMyOff, sFlagBit, sPartBit = 75, 76, 77, 78, 79
    sWW, sBW, sB2 = 80, 93, 94
    sSpin = 95
    sTS = 96
    stamp_next = [36]
    def stamp():
        if diag:
            r = stamp_next[0]; stamp_next[0] += 2
            assert r + 1 <= 51
            e(f"s_memrealtime s[{r}:{r+1}]")
            E.drain_ds()
    vLane, vPiece, vWoff, vIdxB, vE0, vE1, vWtr = 1, 2, 3, 4, 5, 6, 7
    vI = {"S": 8, "K": 10}
    vT, vT2, vFlagOff, vFlag = 12, 13, 14, 15
    vEB = 16
    vACC = {"S": 48, "K": 80}
    def wreg(slot, lo, n):
        if slot < 18:
            b = 112 + slot * 8 + lo
            return f"v[{b}:{b+n-1}]"
        b = (slot - 18) * 8 + lo
        return f"a[{b}:{b+n-1}]"

    items = make_items(k)
    first_use = {}
    last_use = {}
    for t, (sub, j) in enumerate(items):
        first_use.setdefault(j, t); last_use[j] = t
    lastS = max(t for t, it in enumerate(items) if it[0] == "S")

    e("s_cmp_ge_u32 s2, 256")
    e("s_cbranch_scc1 L_end")
    if diag: e(f"s_memrealtime s[{sTS}:{sTS+1}]")
    e("s_load_dwordx16 s[36:51], s[0:1], 0")
    e("s_load_dwordx4 s[52:55], s[0:1], 64")
    e("s_load_dwordx4 s[56:59], s[0:1], 80")
    e(f"v_and_b32 v{vLane}, 63, v0")
    e(f"v_lshrrev_b32 v{vT}, 6, v0")
    e("s_nop 0")
    e(f"v_readfirstlane_b32 s{sW}, v{vT}")
    X = vEB
    e(f"v_and_b32 v{X}, 3, v{vLane}")
    e(f"v_bfe_u32 v{X+1}, v{vLane}, 4, 2")
    e(f"v_xor_b32 v{X}, v{X}, v{X+1}")
    e(f"v_lshlrev_b32 v{vPiece}, 4, v{X}")
    e(f"v_and_b32 v{X}, 15, v{vLane}")
    e(f"v_lshlrev_b32 v{X+2}, 2, v{X+1}")
    e(f"v_xor_b32 v{X}, v{X}, v{X+2}")
    e(f"v_lshlrev_b32 v{X}, 4, v{X}")
    e(f"v_lshl_add_u32 v{vWoff}, v{X+1}, 8, v{X}")
    e(f"v_lshlrev_b32 v{vT}, 4, v{vLane}")
    e(f"s_lshr_b32 s{sKh}, s2, 3")
    e(f"s_and_b32 s{sKh}, s{sKh}, 1")
    e(f"s_lshr_b32 s{sT0}, s2, 4")
    e(f"s_lshl_b32 s{sT1}, s{sT0}, 3")
    e(f"s_and_b32 s{sKeepRow}, s2, 7")
    e(f"s_add_u32 s{sT1}, s{sT1}, s{sKeepRow}")
    e(f"s_lshl_b32 s{sT1}, s{sT1}, 7")
    e(f"s_lshl_b32 s{sKeepRow}, s{sKh}, 6")
    e(f"s_add_u32 s{sKeepRow}, s{sKeepRow}, s{sT1}")
    e(f"s_mul_i32 s{sT0}, s{sT0}, 25")
    e(f"s_lshr_b32 s{sT0}, s{sT0}, 4")
    e(f"s_lshl_b32 s{sColS}, s{sT0}, 3")
    e(f"s_mov_b32 s{sColK}, s{sColS}")
    e(f"s_lshl_b32 s{sColW}, s{sT0}, 14")
    e(f"s_lshl_b32 s{sW2048}, s{sW}, 11")
    e(f"s_lshl_b32 s{sW1024}, s{sW}, 10")
    e(f"s_mul_i32 s{sWbase}, s{sKh}, {50*8192}")
    e(f"s_add_u32 s{sWbase}, s{sWbase}, s{sW2048}")
    e(f"s_lshl_b32 s{sMyOff}, s2, 15")
    e(f"s_xor_b32 s{sT0}, s2, 8")
    e(f"s_lshl_b32 s{sPartOff}, s{sT0}, 15")
    e(f"s_lshl_b32 s{sT0}, s{sW}, 13")
    e(f"s_add_u32 s{sMyOff}, s{sMyOff}, s{sT0}")
    e(f"s_add_u32 s{sPartOff}, s{sPartOff}, s{sT0}")
    e(f"s_and_b32 s{sT0}, s2, 3")
    e(f"s_lshl_b32 s{sT0}, s{sT0}, 3")
    e(f"s_lshl_b32 s{sFlagBit}, 1, s{sT0}")
    E.drain_ds()
    def srd(d, p, size):
        e(f"s_mov_b32 s{d}, s{p}")
        e(f"s_and_b32 s{d+1}, s{p+1}, 0xffff")
        e(f"s_mov_b32 s{d+2}, {size}")
        e(f"s_mov_b32 s{d+3}, 0x20000")
    srd(S_IDX, 36, 16384*400)
    e(f"s_xor_b32 s{sT0}, s{sKeepRow}, 64")
    e(f"s_mul_i32 s{sT0}, s{sT0}, 400")
    e(f"s_mul_i32 s{sT1}, s{sW}, 6144")
    e(f"s_add_u32 s{sT0}, s{sT0}, s{sT1}")
    def idx_dma(ldsbase, tag):
        e(f"s_add_u32 m0, s{sT1}, {ldsbase}")
        e("s_nop 0")
        for j in range(4):
            E.vmem(f"buffer_load_dwordx4 v{vT}, s[{S_IDX}:{S_IDX+3}], s{sT0} offen offset:{j*1024} lds", tag)
        e("s_add_u32 m0, m0, 4096")
        e(f"s_add_u32 s{sT0}, s{sT0}, 4096")
        for j in range(3):
            E.vmem(f"buffer_load_dwordx4 v{vT}, s[{S_IDX}:{S_IDX+3}], s{sT0} offen offset:{j*1024} lds", tag)
    idx_dma(IDX, "idxS")
    srd(S_W1, 46, 3200*256)
    srd(S_TAB, 38, 100000*64)
    if tlbwarm:
        e("s_load_dword s4, s[38:39], 0")
        e("s_mov_b32 s5, 0x200000")
        e("s_load_dword s4, s[38:39], s5")
        e("s_mov_b32 s5, 0x400000")
        e("s_load_dword s4, s[38:39], s5")
        e("s_mov_b32 s5, 0x600000")
        e("s_load_dword s4, s[38:39], s5")
    def w_dma(slot):
        buf = WST + (slot % NWB) * 8192
        e(f"s_add_u32 m0, s{sW2048}, {buf}")
        e(f"s_add_u32 s{sFoff}, s{sColW}, s{sWbase}")
        for q in range(2):
            E.vmem(f"buffer_load_dwordx4 v{vWoff}, s[{S_W1}:{S_W1+3}], s{sFoff} offen offset:{q*1024} lds", ("W", slot))
        e(f"s_add_u32 s{sColW}, s{sColW}, 8192")
        e(f"s_cmp_ge_u32 s{sColW}, {50*8192}")
        e(f"s_cselect_b32 s{sColW}, 0, s{sColW}")
    npre = min(NWB, 50)
    for j in range(npre):
        w_dma(j)
    e(f"s_mul_i32 s{sT0}, s{sKeepRow}, 400")
    e(f"s_add_u32 s{sT0}, s{sT0}, s{sT1}")
    idx_dma(IDX + 25600, "idxK")
    e(f"s_cmp_lt_u32 s{sW}, 2")
    e(f"s_cselect_b32 s{S_MISC}, s40, s48")
    e(f"s_cselect_b32 s{S_MISC+1}, s41, s49")
    e(f"s_mov_b32 s{S_MISC+2}, 256")
    e(f"s_cselect_b32 s{S_MISC+2}, {16384*26}, s{S_MISC+2}")
    e(f"s_cmp_eq_u32 s{sW}, 3")
    e(f"s_cselect_b32 s{S_MISC}, s50, s{S_MISC}")
    e(f"s_cselect_b32 s{S_MISC+1}, s51, s{S_MISC+1}")
    e(f"s_and_b32 s{S_MISC+1}, s{S_MISC+1}, 0xffff")
    e(f"s_mov_b32 s{S_MISC+3}, 0x20000")
    e(f"s_mul_i32 s{sT0}, s{sKeepRow}, 26")
    e(f"s_add_u32 s{sT0}, s{sT0}, s{sW1024}")
    e(f"s_cmp_lt_u32 s{sW}, 2")
    e(f"s_cselect_b32 s{sT0}, s{sT0}, 0")
    e(f"s_add_u32 m0, s{sW1024}, {XW}")
    e("s_nop 0")
    E.vmem(f"buffer_load_dwordx4 v{vT}, s[{S_MISC}:{S_MISC+3}], s{sT0} offen lds", "misc")
    vSm = 112
    vSm = X + 8
    e(f"v_lshlrev_b32 v{vSm}, 1, v{vLane}")
    for n, (p, size) in enumerate(((42, 26), (44, 2), (52, 2))):
        srd(S_SM, p, size)
        E.vmem(f"buffer_load_ushort v{vSm+1+n}, v{vSm}, s[{S_SM}:{S_SM+3}], 0 offen", "small")
        e("s_nop 0")
    srd(S_OUT, 54, 16384*2)
    srd(S_DBG, 56, 256)
    srd(S_WS, 58, 256*32768)
    stamp()
    e(f"v_lshrrev_b32 v{X}, 2, v{vLane}")
    e(f"s_lshl_b32 s{sT0}, s{sW}, 4")
    e(f"v_add_u32 v{X}, s{sT0}, v{X}")
    e(f"v_mul_u32_u24 v{vIdxB}, 400, v{X}")
    e(f"s_mul_i32 s{sT0}, s{sKh}, 200")
    e(f"s_add_u32 s{sT0}, s{sT0}, {IDX}")
    e(f"v_add_u32 v{vIdxB}, s{sT0}, v{vIdxB}")
    e(f"v_and_b32 v{X}, 31, v{vLane}")
    e(f"v_lshlrev_b32 v{X}, 6, v{X}")
    e(f"v_add_u32 v{X}, {ARING}, v{X}")
    e(f"v_lshrrev_b32 v{X+1}, 5, v{vLane}")
    e(f"v_bfe_u32 v{X+2}, v{vLane}, 2, 2")
    e(f"v_xor_b32 v{X+3}, v{X+1}, v{X+2}")
    e(f"v_lshl_add_u32 v{vE0}, v{X+3}, 4, v{X}")
    e(f"v_xor_b32 v{X+3}, 2, v{X+3}")
    e(f"v_lshl_add_u32 v{vE1}, v{X+3}, 4, v{X}")
    e(f"v_lshl_add_u32 v{X+3}, v{X+1}, 3, v{X+2}")
    e(f"v_lshlrev_b32 v{X+3}, 8, v{X+3}")
    e(f"v_bfe_u32 v{X+4}, v{vLane}, 4, 1")
    e(f"v_lshlrev_b32 v{X+4}, 1, v{X+4}")
    e(f"v_bfe_u32 v{X+5}, v{vLane}, 1, 1")
    e(f"v_add_u32 v{X+4}, v{X+4}, v{X+5}")
    e(f"s_lshl_b32 s{sT0}, s{sW}, 2")
    e(f"v_add_u32 v{X+4}, s{sT0}, v{X+4}")
    e(f"v_lshlrev_b32 v{X+2}, 2, v{X+2}")
    e(f"v_xor_b32 v{X+4}, v{X+4}, v{X+2}")
    e(f"v_and_b32 v{X+5}, 1, v{vLane}")
    e(f"v_lshlrev_b32 v{X+5}, 3, v{X+5}")
    e(f"v_add_u32 v{X+3}, v{X+3}, v{X+5}")
    e(f"v_lshl_add_u32 v{vWtr}, v{X+4}, 4, v{X+3}")
    e(f"s_xor_b32 s{sT0}, s2, 8")
    e(f"s_and_b32 s{sT0}, s{sT0}, 0xfc")
    e(f"v_mov_b32 v{vFlagOff}, s{sT0}")
    E.wait_vm(["idxS"])
    e("s_barrier")
    stamp()
    E.drain_ds()

    colreg = {"S": sColS, "K": sColK}
    def idx_read(sub, pair, dst):
        e(f"v_add_u32 v{vT2}, s{colreg[sub]}, v{vIdxB}")
        E.dsop(f"ds_read_b64 v[{dst}:{dst+1}], v{vT2} offset:{25600 if sub == 'K' else 0}", ("idx", sub, pair))
        c = colreg[sub]
        e(f"s_add_u32 s{c}, s{c}, 8")
        e(f"s_cmp_ge_u32 s{c}, 200")
        e(f"s_cselect_b32 s{c}, 0, s{c}")
    def g_issue(i, reg):
        slot = ARING + (i % NA) * 4096
        e(f"v_lshl_add_u32 v{reg}, v{reg}, 6, v{vPiece}")
        e(f"s_add_u32 m0, s{sW1024}, {slot}")
        e("s_nop 0")
        E.vmem(f"buffer_load_dwordx4 v{reg}, s[{S_TAB}:{S_TAB+3}], 0 offen lds", ("G", i))
    pre = items[:DG]
    need_pairs = []
    for (sub, j) in pre:
        if (sub, j >> 1) not in need_pairs: need_pairs.append((sub, j >> 1))
    if any(s == "K" for s, _ in need_pairs):
        E.wait_vm(["idxK"]); e("s_barrier")
    tmp = {}
    tb = X + 12
    for n, (sub, p) in enumerate(need_pairs):
        tmp[(sub, p)] = tb + 2 * n
        assert tb + 2 * n + 1 < vACC["S"]
        idx_read(sub, p, tb + 2 * n)
    pair_state = {}
    E.drain_ds()
    for i, (sub, j) in enumerate(pre):
        g_issue(i, tmp[(sub, j >> 1)] + (j & 1))
    nxt_pair = {"S": 0, "K": 0}
    for sub in ("S", "K"):
        used = [j for (s, j) in pre if s == sub]
        if used and (used[-1] & 1) == 0:
            p = used[-1] >> 1
            e(f"v_mov_b32 v{vI[sub]+1}, v{tmp[(sub, p)]+1}")
            pair_state[sub] = p
            nxt_pair[sub] = p + 1
        else:
            nxt_pair[sub] = (used[-1] >> 1) + 1 if used else 0
            pair_state[sub] = None
    stamp()
    E.wait_vm(["small"])
    for n in range(3):
        e(f"v_lshlrev_b32 v{vSm+1+n}, 16, v{vSm+1+n}")
    e("s_nop 0")
    for j in range(13):
        e(f"v_readlane_b32 s{sWW+j}, v{vSm+1}, {j}")
    e(f"v_readlane_b32 s{sBW}, v{vSm+2}, 0")
    e(f"v_readlane_b32 s{sB2}, v{vSm+3}, 0")

    def ensure_pair(sub, pair, idxk_ok):
        if pair_state[sub] != pair and pair < 25:
            assert pair == nxt_pair[sub], (sub, pair, nxt_pair)
            idx_read(sub, pair, vI[sub])
            pair_state[sub] = pair
            nxt_pair[sub] = pair + 1

    def e_reads(i):
        buf = vEB + (i % 2) * 16
        slot = (i % NA) * 4096
        for s in range(2):
            for rb in range(2):
                d = buf + (s * 2 + rb) * 4
                E.dsop(f"ds_read_b128 v[{d}:{d+3}], v{vE1 if s else vE0} offset:{slot + rb*2048}", ("E", i))
    def w_tr(slot):
        buf = WST + (slot % NWB) * 8192
        for s in range(2):
            for t in range(2):
                E.dsop(f"ds_read_b64_tr_b16 {wreg(slot, s*4 + t*2, 2)}, v{vWtr} offset:{buf + s*4096 + t*1024}", ("Wtr", slot))

    tr_at = {}
    dma_at = {}
    for j in range(50):
        tr_at.setdefault(first_use[j] - 1, []).append(j)
        if j >= npre:
            t = first_use[j - NWB] + 1
            t += t & 1
            dma_at.setdefault(t, []).append(j)
            assert t + 2 <= first_use[j] - 1, (j, t, first_use[j])
    idxK_waited = any(s == "K" for s, _ in need_pairs)
    b1_done = False

    def init_accK():
        E.wait_vm(["misc"])
        e("s_barrier")
        e(f"v_lshrrev_b32 v{vT2}, 5, v{vLane}")
        e(f"v_lshlrev_b32 v{vT2}, 3, v{vT2}")
        e(f"s_lshl_b32 s{sT0}, s{sW}, 6")
        e(f"v_add_u32 v{vT2}, s{sT0}, v{vT2}")
        e(f"v_add_u32 v{vT2}, {B1}, v{vT2}")
        a = vACC["K"]
        for q in range(4):
            E.dsop(f"ds_read_b64 v[{a+16+2*q}:{a+17+2*q}], v{vT2} offset:{16*q}", "b1")
        E.drain_ds()
        for q in range(4):
            s0 = a + 16 + 2 * q
            e(f"v_lshlrev_b32 v{a+4*q}, 16, v{s0}")
            e(f"v_and_b32 v{a+4*q+1}, 0xffff0000, v{s0}")
            e(f"v_lshlrev_b32 v{a+4*q+2}, 16, v{s0+1}")
            e(f"v_and_b32 v{a+4*q+3}, 0xffff0000, v{s0+1}")
        for r in range(16):
            e(f"v_mov_b32 v{a+16+r}, v{a+r}")
    init_accK()

    sig_step = lastS + 1 + sig_delay
    sig_step += sig_step & 1
    part_ok = max(last_use[j] for j in range(6)) + 1
    load_step = max(part_ok, 100 - poll_lead + 4, sig_step + 5)
    poll_step = load_step - 4
    assert poll_step > sig_step and load_step <= 99, (sig_step, poll_step, load_step)
    firstS_done = False

    for t in range(-2, 100):
        if t % 2 == 0:
            need = []
            for i in (t + 1, t + 2):
                if 0 <= i < 100: need.append(("G", i))
            for tt in (t, t + 1):
                for j in tr_at.get(tt, []): need.append(("W", j))
            if not idxK_waited:
                fut = [i for i in range(max(t + DG, 0), min(t + DG + 4, 100)) if items[i][0] == "K"]
                if fut:
                    need.append("idxK"); idxK_waited = True
            if t == sig_step: need.append("Pst")
            if need: E.wait_vm(need)
            e("s_barrier")
            if t == sig_step:
                e(f"s_and_b32 s{sT1}, s2, 0xfc")
                e(f"v_mov_b32 v{vT}, s{sT1}")
                e(f"v_mov_b32 v{vFlag}, s{sFlagBit}")
                e(f"s_cmp_eq_u32 s{sW}, 0")
                e(f"s_cselect_b32 s{sT0}, 1, 0")
                e(f"s_mov_b32 exec_hi, 0")
                e(f"s_mov_b32 exec_lo, s{sT0}")
                E.vmem(f"buffer_atomic_add v{vFlag}, v{vT}, s[{S_DBG}:{S_DBG+3}], 0 offen", "sig")
                e("s_mov_b64 exec, -1")
                e("s_nop 3")
        mf = []
        if t >= 0:
            sub, j = items[t]
            buf = vEB + (t % 2) * 16
            a = vACC[sub]
            E.wait_ds([("E", t), ("Wtr", j)])
            for s in range(2):
                for rb in range(2):
                    c = f"v[{a+rb*16}:{a+rb*16+15}]"
                    src = "0" if (sub == "S" and j == 0 and s == 0) else c
                    mf.append(f"v_mfma_f32_32x32x16_bf16 {c}, {wreg(j, s*4, 4)}, v[{buf+(s*2+rb)*4}:{buf+(s*2+rb)*4+3}], {src}")
        def mfma(n):
            if n < len(mf) and not (nomfma and (n % nomfma != 0 or nomfma == 99)):
                e(mf[n])
                if spread: e(f"s_nop {spread-1}" if spread <= 16 else "s_nop 15\n    s_nop 15")
        mfma(0)
        if 0 <= t + 1 < 100: e_reads(t + 1)
        mfma(1)
        gi = t + DG
        if DG <= gi < 100 and t >= 0:
            sub2, j2 = items[gi]
            assert pair_state[sub2] == (j2 >> 1), (t, gi, sub2, j2, pair_state)
            E.wait_ds([("idx", sub2, j2 >> 1)]) if ("idx", sub2, j2 >> 1) in E.ds else None
            g_issue(gi, vI[sub2] + (j2 & 1))
            if j2 & 1: pair_state[sub2] = None
        mfma(2)
        for j in dma_at.get(t, []): w_dma(j)
        for j in tr_at.get(t, []): w_tr(j)
        mfma(3)
        for look in (t + 1 + DG, t + 2 + DG):
            if DG <= look < 100 and t >= -1:
                sub3, j3 = items[look]
                if pair_state[sub3] is None and (j3 & 1) == 0:
                    ensure_pair(sub3, j3 >> 1, True)
        if t == lastS:
            e("s_nop 15")
            a = vACC["S"]
            e(f"v_lshlrev_b32 v{vT}, 4, v{vLane}")
            for q in range(8):
                E.vmem(f"buffer_store_dwordx4 v[{a+4*q}:{a+4*q+3}], v{vT}, s[{S_WS}:{S_WS+3}], s{sMyOff} offen offset:{(q%4)*1024} sc1" if q < 4 else
                       f"buffer_store_dwordx4 v[{a+4*q}:{a+4*q+3}], v{vT}, s[{S_WS}:{S_WS+3}], s{sT0} offen offset:{(q%4)*1024} sc1", "Pst")
                if q == 3: e(f"s_add_u32 s{sT0}, s{sMyOff}, 4096")
            stamp()
            if diag:
                e("s_memtime s[48:49]"); E.drain_ds()
        if t == poll_step:
            E.vmem(f"buffer_load_dword v{vFlag}, v{vFlagOff}, s[{S_DBG}:{S_DBG+3}], 0 offen sc1", "poll")
        if t == load_step:
            E.wait_vm(["poll"])
            e(f"v_readfirstlane_b32 s{sT0}, v{vFlag}")
            e("s_nop 1")
            e(f"s_and_b32 s{sT0}, s{sT0}, s{sFlagBit}")
            e("s_cbranch_scc0 L_spin")
            e("L_spin_done:")
            e(f"v_lshlrev_b32 v{vT}, 4, v{vLane}")
            e(f"s_add_u32 s{sT0}, s{sPartOff}, 4096")
            for q in range(8):
                so = sPartOff if q < 4 else sT0
                E.vmem(f"buffer_load_dwordx4 v[{112+4*q}:{112+4*q+3}], v{vT}, s[{S_WS}:{S_WS+3}], s{so} offen offset:{(q%4)*1024} sc1", "Pld")
    stamp()
    if diag:
        e("s_memtime s[50:51]"); E.drain_ds()
        e("s_sub_u32 s48, s50, s48")
        e("s_mov_b32 s49, 0")
        e("s_mov_b32 s46, 0"); e("s_mov_b32 s47, 0")
        stamp_next[0] = 50
    vW2 = 144
    e(f"v_lshrrev_b32 v{vT2}, 5, v{vLane}")
    e(f"v_lshlrev_b32 v{vT2}, 3, v{vT2}")
    e(f"s_lshl_b32 s{sT0}, s{sW}, 6")
    e(f"v_add_u32 v{vT2}, s{sT0}, v{vT2}")
    e(f"v_add_u32 v{vT2}, {W2}, v{vT2}")
    for q in range(4):
        E.dsop(f"ds_read_b64 v[{vEB+2*q}:{vEB+2*q+1}], v{vT2} offset:{16*q}", "w2")
    E.drain_ds()
    for q in range(4):
        s0 = vEB + 2 * q
        e(f"v_lshlrev_b32 v{vW2+4*q}, 16, v{s0}")
        e(f"v_and_b32 v{vW2+4*q+1}, 0xffff0000, v{s0}")
        e(f"v_lshlrev_b32 v{vW2+4*q+2}, 16, v{s0+1}")
        e(f"v_and_b32 v{vW2+4*q+3}, 0xffff0000, v{s0+1}")
    E.wait_vm(["Pld"])
    e("s_nop 7")
    a = vACC["K"]
    R = vEB + 8
    for rb in range(2):
        e(f"v_mov_b32 v{R+rb}, 0")
    for rb in range(2):
        for r in range(16):
            x = a + rb * 16 + r
            e(f"v_add_f32 v{x}, v{x}, v{112+rb*16+r}")
            e(f"v_max_f32 v{x}, 0, v{x}")
            e(f"v_fmac_f32 v{R+rb}, v{x}, v{vW2+r}")
    e(f"v_lshrrev_b32 v{vT}, 5, v{vLane}")
    e(f"v_lshlrev_b32 v{vT}, 8, v{vT}")
    e(f"v_and_b32 v{vT2}, 31, v{vLane}")
    e(f"v_lshl_add_u32 v{vT}, v{vT2}, 2, v{vT}")
    e(f"s_lshl_b32 s{sT0}, s{sW}, 9")
    e(f"v_add_u32 v{vT}, s{sT0}, v{vT}")
    e("s_barrier")
    E.dsop(f"ds_write_b32 v{vT}, v{R} offset:{RED}", "red")
    E.dsop(f"ds_write_b32 v{vT}, v{R+1} offset:{RED+128}", "red")
    E.drain_ds()
    e("s_barrier")
    e(f"s_cmp_lg_u32 s{sW}, 0")
    e("s_cbranch_scc1 L_end")
    e(f"v_lshlrev_b32 v{vT}, 2, v{vLane}")
    Y = vEB + 12
    for kk in range(8):
        e(f"ds_read_b32 v{Y+kk}, v{vT} offset:{RED + kk*256}")
    e(f"v_mul_u32_u24 v{vT2}, 26, v{vLane}")
    e(f"v_add_u32 v{vT2}, {XW}, v{vT2}")
    Z = 48
    for j in range(13):
        e(f"ds_read_u16 v{Z+j}, v{vT2} offset:{2*j}")
    e("s_waitcnt lgkmcnt(0)")
    for kk in range(1, 8):
        e(f"v_add_f32 v{Y}, v{Y}, v{Y+kk}")
    e(f"v_add_f32 v{Y}, s{sB2}, v{Y}")
    e(f"v_mov_b32 v{Y+1}, s{sBW}")
    for j in range(13):
        e(f"v_lshlrev_b32 v{Z+j}, 16, v{Z+j}")
        e(f"v_fmac_f32 v{Y+1}, s{sWW+j}, v{Z+j}")
    e(f"v_add_f32 v{Y}, v{Y}, v{Y+1}")
    e(f"v_mul_f32 v{Y}, 0xbfb8aa3b, v{Y}")
    e(f"v_exp_f32 v{Y}, v{Y}")
    e("s_nop 0")
    e(f"v_add_f32 v{Y}, 1.0, v{Y}")
    e(f"v_rcp_f32 v{Y}, v{Y}")
    e("s_nop 0")
    e(f"v_cvt_pk_bf16_f32 v{Y}, v{Y}, v{Y}")
    e(f"s_lshl_b32 s{sT0}, s{sKeepRow}, 1")
    e(f"v_lshlrev_b32 v{vT}, 1, v{vLane}")
    e(f"buffer_store_short v{Y}, v{vT}, s[{S_OUT}:{S_OUT+3}], s{sT0} offen")
    if diag:
        e(f"s_memrealtime s[{sTS+2}:{sTS+3}]")
        e("s_waitcnt lgkmcnt(0)")
        e(f"s_add_u32 s{S_SM}, s58, {16<<20}")
        e(f"s_addc_u32 s{S_SM+1}, s59, 0")
        e(f"s_and_b32 s{S_SM+1}, s{S_SM+1}, 0xffff")
        e(f"s_mov_b32 s{S_SM+2}, 65536")
        e(f"s_mov_b32 s{S_SM+3}, 0x20000")
        e(f"s_lshl_b32 s{sT0}, s2, 7")
        e(f"v_cmp_eq_u32 vcc, 0, v{vLane}")
        e("s_and_saveexec_b64 s[4:5], vcc")
        e(f"v_mov_b32 v{vT}, 0")
        regs = [sTS, sTS+1, sTS+2, sTS+3] + list(range(36, 52))
        nst = (stamp_next[0] - 36)
        for g in range(5):
            for jj in range(4):
                r = regs[g*4+jj]
                if r >= 36 and r < 52 and r >= stamp_next[0]:
                    e(f"v_mov_b32 v{Z+jj}, 0")
                else:
                    e(f"v_mov_b32 v{Z+jj}, s{r}")
            e(f"buffer_store_dwordx4 v[{Z}:{Z+3}], v{vT}, s[{S_SM}:{S_SM+3}], s{sT0} offen offset:{16*g}")
            e("s_nop 1")
    e("s_endpgm")
    e("L_spin:")
    e(f"s_mov_b32 s{sSpin}, {1<<17}")
    e("L_spin_loop:")
    e(f"buffer_load_dword v{vFlag}, v{vFlagOff}, s[{S_DBG}:{S_DBG+3}], 0 offen sc1")
    e("s_waitcnt vmcnt(0)")
    e(f"v_readfirstlane_b32 s{sT0}, v{vFlag}")
    e("s_nop 1")
    e(f"s_and_b32 s{sT0}, s{sT0}, s{sFlagBit}")
    e("s_cbranch_scc1 L_spin_done")
    e(f"s_sub_u32 s{sSpin}, s{sSpin}, 1")
    e(f"s_cmp_lg_u32 s{sSpin}, 0")
    e("s_cbranch_scc1 L_spin_loop")
    e("s_branch L_spin_done")
    e("L_end:")
    e("s_endpgm")
    body = "\n".join(E.L)
    out = HEADER
    out += "; Override launch geometry by editing the next line (default: block=256,\n"
    out += f"; @launch grid=(256,1,1) block=(256,1,1) lds={LDS_TOTAL}\n"
    out += f""".amdgcn_target "amdgcn-amd-amdhsa--gfx950"
.text
.globl {NAME}_kernel
.p2align 8
.type {NAME}_kernel,@function
{NAME}_kernel:
{body}
.section .rodata,"a"
.p2align 6
.amdhsa_kernel {NAME}_kernel
  .amdhsa_next_free_vgpr 512
  .amdhsa_next_free_sgpr 102
  .amdhsa_accum_offset 256
  .amdhsa_group_segment_fixed_size 0
  .amdhsa_kernarg_size 96
  .amdhsa_user_sgpr_count 2
  .amdhsa_user_sgpr_kernarg_segment_ptr 1
  .amdhsa_system_sgpr_workgroup_id_x 1
  .amdhsa_float_denorm_mode_32 3
.end_amdhsa_kernel
"""
    return out

if __name__ == "__main__":
    kw = {}
    path = None
    for a in sys.argv[1:]:
        if a.endswith(".s"): path = a
        elif a == "diag": kw["diag"] = True
        elif "=" in a:
            n, v = a.split("="); kw[n] = int(v)
    s = gen(**kw)
    open(path or "cdna_kernels/" + NAME + ".s", "w").write(s)
```

```python
import sys
from gen_s2 import Em, NAME, HEADER


def gen(diag=False, NWB=12, NA=16, tlbwarm=True, poll_lead=10, sig_delay=8, nomfma=0, gearly=8, order="SK", wgrp=2, probe=0, hdiag=0):
    E = Em(); e = E.e
    DG = NA - 2
    NAD = 8
    WST = 0
    ADED = WST + NWB * 8192
    RING0 = ADED + NAD * 4096 - NA * 4096
    IDX = ADED + NAD * 4096
    XW = IDX + 26624
    B1 = XW + 2048
    W2 = B1 + 1024
    LDS_TOTAL = W2 + 1024
    RED = WST
    assert LDS_TOTAL <= 163840, LDS_TOTAL
    assert NA * 4096 <= 65536 and RING0 >= 0
    def aslot(i):
        r = i % NA
        return (NA - NAD) * 4096 + r * 4096 if r < NAD else (r - NAD) * 4096
    def aslot_wbufs(i):
        a = RING0 + aslot(i)
        return None if a >= ADED else (a - WST) // 8192
    S_IDX, S_TAB, S_W1, S_MISC, S_OUT, S_SM, S_WS, S_DBG = 8, 12, 16, 20, 24, 28, 32, 60
    sW, sKh, sColS, sColK, sColW, sW2048, sW1024, sT0, sT1, sWbase, sFoff = 64, 65, 66, 67, 68, 69, 70, 71, 72, 73, 74
    sKeepRow, sPartOff, sMyOff, sFlagBit = 75, 76, 77, 78
    sWW, sBW, sB2 = 80, 93, 94
    sSpin = 95
    sTS = 96
    stamp_next = [2]
    def stamp(cyc=False):
        if diag:
            n = stamp_next[0]; stamp_next[0] += 1
            e(f"s_memtime s[6:7]" if cyc else "s_memrealtime s[6:7]")
            E.drain_ds()
            e(f"v_writelane_b32 v0, s6, {2*n}")
            e(f"v_writelane_b32 v0, s7, {2*n+1}")
    vLane, vPiece, vWoff, vIdxB, vE0, vE1, vWtr = 1, 2, 3, 4, 5, 6, 7
    vI = {"S": 8, "K": 10}
    vT, vT2, vFlagOff, vFlag = 12, 13, 14, 15
    vEB = 16
    vACC = {"S": 48, "K": 80}
    def wreg(slot, lo, n):
        if slot < 18:
            b = 112 + slot * 8 + lo
            return f"v[{b}:{b+n-1}]"
        b = (slot - 18) * 8 + lo
        return f"a[{b}:{b+n-1}]"

    items = [("S", j) for j in range(50)] + [("K", j) for j in range(50)]
    last_use = {}
    for t, (sub, j) in enumerate(items): last_use[j] = t
    lastS = 49

    e("s_cmp_ge_u32 s2, 256")
    e("s_cbranch_scc1 L_end")
    if diag: e(f"s_memrealtime s[{sTS}:{sTS+1}]")
    e("s_load_dwordx16 s[36:51], s[0:1], 0")
    e("s_load_dwordx4 s[52:55], s[0:1], 64")
    e("s_load_dwordx4 s[56:59], s[0:1], 80")
    e(f"v_and_b32 v{vLane}, 63, v0")
    e(f"v_lshrrev_b32 v{vT}, 6, v0")
    e("s_nop 0")
    e(f"v_readfirstlane_b32 s{sW}, v{vT}")
    if diag: e("v_mov_b32 v0, 0")
    X = vEB
    vQ = X + 20
    for i in range(4):
        e(f"v_add_u32 v{X}, {64*i}, v{vLane}")
        e(f"v_mul_u32_u24 v{X+1}, 5042, v{X}")
        e(f"v_lshrrev_b32 v{X+1}, 16, v{X+1}")
        e(f"v_mul_u32_u24 v{X+2}, 13, v{X+1}")
        e(f"v_sub_u32 v{X+2}, v{X}, v{X+2}")
        e(f"v_mul_u32_u24 v{X+1}, 400, v{X+1}")
        e(f"v_lshl_add_u32 v{vQ+i}, v{X+2}, 4, v{X+1}")
        if i: e(f"v_subrev_u32 v{vQ+i}, {1024*i}, v{vQ+i}")
    e(f"s_lshr_b32 s{sKh}, s2, 3")
    e(f"s_and_b32 s{sKh}, s{sKh}, 1")
    e(f"s_lshr_b32 s{sT0}, s2, 4")
    e(f"s_lshl_b32 s{sT1}, s{sT0}, 3")
    e(f"s_and_b32 s{sKeepRow}, s2, 7")
    e(f"s_add_u32 s{sT1}, s{sT1}, s{sKeepRow}")
    e(f"s_lshl_b32 s{sT1}, s{sT1}, 7")
    e(f"s_lshl_b32 s{sKeepRow}, s{sKh}, 6")
    e(f"s_add_u32 s{sKeepRow}, s{sKeepRow}, s{sT1}")
    e(f"s_mul_i32 s{sT0}, s{sT0}, 25")
    e(f"s_lshr_b32 s{sT0}, s{sT0}, 4")
    e(f"s_lshl_b32 s{sColS}, s{sT0}, 3")
    e(f"s_mov_b32 s{sColK}, s{sColS}")
    e(f"s_lshl_b32 s{sColW}, s{sT0}, 14")
    e(f"s_lshl_b32 s{sW2048}, s{sW}, 11")
    e(f"s_lshl_b32 s{sW1024}, s{sW}, 10")
    e(f"s_mul_i32 s{sWbase}, s{sKh}, {50*8192}")
    e(f"s_add_u32 s{sWbase}, s{sWbase}, s{sW2048}")
    e(f"s_xor_b32 s{sT0}, s{sKeepRow}, 64")
    e(f"s_lshl_b32 s{sT1}, s{sW}, 4")
    e(f"s_add_u32 s{sT0}, s{sT0}, s{sT1}")
    e(f"s_mul_i32 s{sT0}, s{sT0}, 400")
    e(f"s_mul_i32 s{sFoff}, s{sKh}, 192")
    e(f"s_add_u32 s{sT0}, s{sT0}, s{sFoff}")
    e(f"s_mul_i32 s{sT1}, s{sW}, 3328")
    E.drain_ds()
    def srd(d, p, size):
        e(f"s_mov_b32 s{d}, s{p}")
        e(f"s_and_b32 s{d+1}, s{p+1}, 0xffff")
        e(f"s_mov_b32 s{d+2}, {size}")
        e(f"s_mov_b32 s{d+3}, 0x20000")
    srd(S_IDX, 36, 16384*400)
    def idx_dma(ldsbase, tag):
        e(f"s_add_u32 m0, s{sT1}, {ldsbase}")
        e("s_nop 0")
        for i in range(3):
            E.vmem(f"buffer_load_dwordx4 v{vQ+i}, s[{S_IDX}:{S_IDX+3}], s{sT0} offen offset:{i*1024} lds", tag)
        e("s_mov_b64 exec, 0xffff")
        E.vmem(f"buffer_load_dwordx4 v{vQ+3}, s[{S_IDX}:{S_IDX+3}], s{sT0} offen offset:3072 lds", tag)
        e("s_mov_b64 exec, -1")
    if probe: stamp()
    idx_dma(IDX, "idxS")
    if probe:
        E.drain_vm(); stamp()
    e(f"s_lshl_b32 s{sFoff}, s{sKh}, 1")
    e(f"s_sub_u32 s{sFoff}, s{sFoff}, 1")
    e(f"s_mul_i32 s{sFoff}, s{sFoff}, {64*400}")
    e(f"s_add_u32 s{sT0}, s{sT0}, s{sFoff}")
    idx_dma(IDX + 13312, "idxK")
    if probe:
        E.drain_vm(); stamp()
    srd(S_W1, 46, 3200*256)
    e(f"v_bfe_u32 v{X+1}, v{vLane}, 4, 2")
    e(f"v_and_b32 v{X}, 15, v{vLane}")
    e(f"v_lshlrev_b32 v{X+2}, 2, v{X+1}")
    e(f"v_xor_b32 v{X}, v{X}, v{X+2}")
    e(f"v_lshlrev_b32 v{X}, 4, v{X}")
    e(f"v_lshl_add_u32 v{vWoff}, v{X+1}, 8, v{X}")
    def w_dma(slot):
        buf = WST + (slot % NWB) * 8192
        e(f"s_add_u32 m0, s{sW2048}, {buf}")
        e(f"s_add_u32 s{sFoff}, s{sColW}, s{sWbase}")
        for q in range(2):
            E.vmem(f"buffer_load_dwordx4 v{vWoff}, s[{S_W1}:{S_W1+3}], s{sFoff} offen offset:{q*1024} lds", ("W", slot))
        e(f"s_add_u32 s{sColW}, s{sColW}, 8192")
        e(f"s_cmp_ge_u32 s{sColW}, {50*8192}")
        e(f"s_cselect_b32 s{sColW}, 0, s{sColW}")
    srd(S_TAB, 38, 100000*64)
    if tlbwarm:
        e("s_load_dword s4, s[38:39], 0")
        for a in (0x200000, 0x400000, 0x600000):
            e(f"s_mov_b32 s5, {a}")
            e("s_load_dword s4, s[38:39], s5")
    for j in range(NWB):
        w_dma(j)
        if probe and j == 1:
            E.drain_vm(); stamp()
    if not probe: stamp()
    e(f"v_and_b32 v{X}, 3, v{vLane}")
    e(f"v_bfe_u32 v{X+1}, v{vLane}, 4, 2")
    e(f"v_xor_b32 v{X}, v{X}, v{X+1}")
    e(f"v_lshlrev_b32 v{vPiece}, 4, v{X}")
    e(f"v_lshrrev_b32 v{X}, 2, v{vLane}")
    e(f"v_mul_u32_u24 v{vIdxB}, 208, v{X}")
    e(f"s_lshl_b32 s{sT0}, s{sKh}, 3")
    e(f"s_add_u32 s{sT0}, s{sT0}, s{sT1}")
    e(f"s_add_u32 s{sT0}, s{sT0}, {IDX}")
    e(f"v_add_u32 v{vIdxB}, s{sT0}, v{vIdxB}")
    e(f"v_and_b32 v{X}, 31, v{vLane}")
    e(f"v_lshlrev_b32 v{X}, 6, v{X}")
    e(f"v_add_u32 v{X}, {RING0}, v{X}")
    e(f"v_lshrrev_b32 v{X+1}, 5, v{vLane}")
    e(f"v_bfe_u32 v{X+2}, v{vLane}, 2, 2")
    e(f"v_xor_b32 v{X+3}, v{X+1}, v{X+2}")
    e(f"v_lshl_add_u32 v{vE0}, v{X+3}, 4, v{X}")
    e(f"v_xor_b32 v{X+3}, 2, v{X+3}")
    e(f"v_lshl_add_u32 v{vE1}, v{X+3}, 4, v{X}")
    e(f"v_lshl_add_u32 v{X+3}, v{X+1}, 3, v{X+2}")
    e(f"v_lshlrev_b32 v{X+3}, 8, v{X+3}")
    e(f"v_bfe_u32 v{X+4}, v{vLane}, 4, 1")
    e(f"v_lshlrev_b32 v{X+4}, 1, v{X+4}")
    e(f"v_bfe_u32 v{X+5}, v{vLane}, 1, 1")
    e(f"v_add_u32 v{X+4}, v{X+4}, v{X+5}")
    e(f"s_lshl_b32 s{sT0}, s{sW}, 2")
    e(f"v_add_u32 v{X+4}, s{sT0}, v{X+4}")
    e(f"v_lshlrev_b32 v{X+2}, 2, v{X+2}")
    e(f"v_xor_b32 v{X+4}, v{X+4}, v{X+2}")
    e(f"v_and_b32 v{X+5}, 1, v{vLane}")
    e(f"v_lshlrev_b32 v{X+5}, 3, v{X+5}")
    e(f"v_add_u32 v{X+3}, v{X+3}, v{X+5}")
    e(f"v_lshl_add_u32 v{vWtr}, v{X+4}, 4, v{X+3}")
    e(f"v_add_u32 v{vT2}, 65536, v{vWtr}")
    vWtrH = vT2
    e(f"s_lshl_b32 s{sMyOff}, s2, 15")
    e(f"s_xor_b32 s{sT0}, s2, 8")
    e(f"s_lshl_b32 s{sPartOff}, s{sT0}, 15")
    if hdiag:
        e(f"s_lshr_b32 s{sT0}, s{sT0}, 5")
        e(f"s_lshl_b32 s{sT0}, s{sT0}, 2")
    else:
        e(f"s_and_b32 s{sT0}, s{sT0}, 0xfc")
    e(f"v_mov_b32 v{vFlagOff}, s{sT0}")
    e(f"s_lshl_b32 s{sT0}, s{sW}, 13")
    e(f"s_add_u32 s{sMyOff}, s{sMyOff}, s{sT0}")
    e(f"s_add_u32 s{sPartOff}, s{sPartOff}, s{sT0}")
    if hdiag:
        e(f"s_xor_b32 s{sT0}, s2, 8")
        e(f"s_and_b32 s{sT0}, s{sT0}, 31")
        e(f"s_lshl_b32 s{sFlagBit}, 1, s{sT0}")
        e(f"s_and_b32 s{sT0}, s2, 31")
        e(f"s_lshl_b32 s79, 1, s{sT0}")
    else:
        e(f"s_and_b32 s{sT0}, s2, 3")
        e(f"s_lshl_b32 s{sT0}, s{sT0}, 3")
        e(f"s_lshl_b32 s{sFlagBit}, 1, s{sT0}")
    srd(S_OUT, 54, 16384*2)
    srd(S_DBG, 56, 256)
    srd(S_WS, 58, 256*32768)

    def w_tr(slot):
        buf = WST + (slot % NWB) * 8192
        base = vWtr if buf < 65536 else vWtrH
        off = buf if buf < 65536 else buf - 65536
        for s in range(2):
            for t in range(2):
                E.dsop(f"ds_read_b64_tr_b16 {wreg(slot, s*4 + t*2, 2)}, {'v%d' % base} offset:{off + s*4096 + t*1024}", ("Wtr", slot))
    def misc_loads():
        e(f"v_lshlrev_b32 v{vT}, 4, v{vLane}")
        e(f"s_cmp_lt_u32 s{sW}, 2")
        e(f"s_cselect_b32 s{S_MISC}, s40, s48")
        e(f"s_cselect_b32 s{S_MISC+1}, s41, s49")
        e(f"s_mov_b32 s{S_MISC+2}, 256")
        e(f"s_cselect_b32 s{S_MISC+2}, {16384*26}, s{S_MISC+2}")
        e(f"s_cmp_eq_u32 s{sW}, 3")
        e(f"s_cselect_b32 s{S_MISC}, s50, s{S_MISC}")
        e(f"s_cselect_b32 s{S_MISC+1}, s51, s{S_MISC+1}")
        e(f"s_and_b32 s{S_MISC+1}, s{S_MISC+1}, 0xffff")
        e(f"s_mov_b32 s{S_MISC+3}, 0x20000")
        e(f"s_mul_i32 s{sT0}, s{sKeepRow}, 26")
        e(f"s_add_u32 s{sT0}, s{sT0}, s{sW1024}")
        e(f"s_cmp_lt_u32 s{sW}, 2")
        e(f"s_cselect_b32 s{sT0}, s{sT0}, 0")
        e(f"s_add_u32 m0, s{sW1024}, {XW}")
        e("s_nop 0")
        E.vmem(f"buffer_load_dwordx4 v{vT}, s[{S_MISC}:{S_MISC+3}], s{sT0} offen lds", "misc")
        e(f"v_lshlrev_b32 v{vSm}, 1, v{vLane}")
        for n, (p, size) in enumerate(((42, 26), (44, 2), (52, 2))):
            srd(S_SM, p, size)
            E.vmem(f"buffer_load_ushort v{vSm+1+n}, v{vSm}, s[{S_SM}:{S_SM+3}], 0 offen", "small")
            e("s_nop 0")
    vSm = X + 24

    colreg = {"S": sColS, "K": sColK}
    def idx_read(sub, pair, dst, tmp):
        e(f"v_add_u32 v{tmp}, s{colreg[sub]}, v{vIdxB}")
        E.dsop(f"ds_read_b64 v[{dst}:{dst+1}], v{tmp} offset:{13312 if sub == 'K' else 0}", ("idx", sub, pair))
        c = colreg[sub]
        e(f"s_add_u32 s{c}, s{c}, 8")
        e(f"s_cmp_ge_u32 s{c}, 200")
        e(f"s_cselect_b32 s{c}, 0, s{c}")
    def g_issue(i, reg):
        slot = RING0 + aslot(i)
        e(f"v_lshl_add_u32 v{reg}, v{reg}, 6, v{vPiece}")
        e(f"s_add_u32 m0, s{sW1024}, {slot}")
        e("s_nop 0")
        E.vmem(f"buffer_load_dwordx4 v{reg}, s[{S_TAB}:{S_TAB+3}], 0 offen lds", ("G", i))

    ngrp = (50 + wgrp - 1) // wgrp
    groups = [list(range(g * wgrp, min(50, (g + 1) * wgrp))) for g in range(ngrp)]
    nxt_w = NWB
    misc_at = 2
    tb = X + 0
    early_done = False
    for g, grp in enumerate(groups):
        E.wait_vm([("W", j) for j in grp])
        if g > 0: E.wait_ds([("Wtr", j) for j in groups[g-1]])
        e("s_barrier")
        if g == 0 and not probe: stamp()
        if g > 0:
            for _ in groups[g-1]:
                if nxt_w < 50:
                    w_dma(nxt_w); nxt_w += 1
        if g == misc_at: misc_loads()
        if nxt_w >= 50 and not early_done:
            early_done = True
            E.wait_vm(["idxS"])
            for n in range(gearly // 2):
                idx_read("S", n, tb + 2 * n, vT)
            E.wait_ds([("idx", "S", gearly // 2 - 1)])
            for i in range(gearly):
                assert aslot_wbufs(i) is None
                g_issue(i, tb + i)
            if not probe: stamp()
        for j in grp: w_tr(j)
    assert early_done
    E.wait_vm(["small"])
    for n in range(3):
        e(f"v_lshlrev_b32 v{vSm+1+n}, 16, v{vSm+1+n}")
    e("s_nop 0")
    for j in range(13):
        e(f"v_readlane_b32 s{sWW+j}, v{vSm+1}, {j}")
    e(f"v_readlane_b32 s{sBW}, v{vSm+2}, 0")
    e(f"v_readlane_b32 s{sB2}, v{vSm+3}, 0")
    e(f"v_lshrrev_b32 v{vT}, 5, v{vLane}")
    e(f"v_lshlrev_b32 v{vT}, 3, v{vT}")
    e(f"s_lshl_b32 s{sT0}, s{sW}, 6")
    e(f"v_add_u32 v{vT}, s{sT0}, v{vT}")
    e(f"v_add_u32 v{vT}, {B1}, v{vT}")
    a = vACC["K"]
    for q in range(4):
        E.dsop(f"ds_read_b64 v[{a+16+2*q}:{a+17+2*q}], v{vT} offset:{16*q}", "b1")
    E.drain_ds()
    for q in range(4):
        s0 = a + 16 + 2 * q
        e(f"v_lshlrev_b32 v{a+4*q}, 16, v{s0}")
        e(f"v_and_b32 v{a+4*q+1}, 0xffff0000, v{s0}")
        e(f"v_lshlrev_b32 v{a+4*q+2}, 16, v{s0+1}")
        e(f"v_and_b32 v{a+4*q+3}, 0xffff0000, v{s0+1}")
    for r in range(16):
        e(f"v_mov_b32 v{a+16+r}, v{a+r}")
    e("s_barrier")
    for n in range(gearly // 2, DG // 2):
        idx_read("S", n, tb + 2 * (n - gearly // 2), vT)
    E.drain_ds()
    for i in range(gearly, DG):
        g_issue(i, tb + (i - gearly))
    if not probe: stamp()
    pair_state = {"S": None, "K": None}
    nxt_pair = {"S": DG // 2, "K": 0}
    assert DG % 2 == 0 and gearly % 2 == 0

    def ensure_pair(sub, pair):
        if pair_state[sub] != pair and pair < 25:
            assert pair == nxt_pair[sub], (sub, pair, nxt_pair)
            idx_read(sub, pair, vI[sub], vT2)
            pair_state[sub] = pair
            nxt_pair[sub] = pair + 1
    def e_reads(i):
        buf = vEB + (i % 2) * 16
        slot = aslot(i)
        for s in range(2):
            for rb in range(2):
                d = buf + (s * 2 + rb) * 4
                E.dsop(f"ds_read_b128 v[{d}:{d+3}], v{vE1 if s else vE0} offset:{slot + rb*2048}", ("E", i))

    sig_step = lastS + 1 + sig_delay
    sig_step += sig_step & 1
    part_ok = max(last_use[j] for j in range(6)) + 1
    load_step = max(part_ok, 100 - poll_lead + 4, sig_step + 5)
    poll_step = load_step - 4
    w2_step = max(part_ok, 70)
    add_step = 98
    vW2 = 144
    vWide = 160
    assert last_use[6] < w2_step and last_use[7] < w2_step

    for t in range(-2, 100):
        if t % 2 == 0:
            need = [("G", i) for i in (t + 1, t + 2) if 0 <= i < 100]
            if t == sig_step: need.append("Pst")
            if t == -2: need.append("idxK")
            if need: E.wait_vm(need)
            e("s_barrier")
            if t == sig_step:
                if hdiag:
                    e(f"s_lshr_b32 s{sT1}, s2, 5")
                    e(f"s_lshl_b32 s{sT1}, s{sT1}, 2")
                    e(f"v_mov_b32 v{vT}, s{sT1}")
                    e(f"v_mov_b32 v{vFlag}, s79")
                else:
                    e(f"s_and_b32 s{sT1}, s2, 0xfc")
                    e(f"v_mov_b32 v{vT}, s{sT1}")
                    e(f"v_mov_b32 v{vFlag}, s{sFlagBit}")
                e(f"s_cmp_eq_u32 s{sW}, 0")
                e(f"s_cselect_b32 s{sT0}, 1, 0")
                e(f"s_mov_b32 exec_hi, 0")
                e(f"s_mov_b32 exec_lo, s{sT0}")
                E.vmem(f"buffer_atomic_add v{vFlag}, v{vT}, s[{S_DBG}:{S_DBG+3}], 0 offen", "sig")
                e("s_mov_b64 exec, -1")
                e("s_nop 3")
        mf = []
        if t >= 0:
            sub, j = items[t]
            buf = vEB + (t % 2) * 16
            a = vACC[sub]
            E.wait_ds([("E", t)])
            for s in range(2):
                for rb in range(2):
                    c = f"v[{a+rb*16}:{a+rb*16+15}]"
                    src = "0" if (sub == "S" and j == 0 and s == 0) else c
                    mf.append(f"v_mfma_f32_32x32x16_bf16 {c}, {wreg(j, s*4, 4)}, v[{buf+(s*2+rb)*4}:{buf+(s*2+rb)*4+3}], {src}")
        def mfma(n):
            if n < len(mf) and not nomfma: e(mf[n])
        mfma(0)
        if 0 <= t + 1 < 100: e_reads(t + 1)
        mfma(1)
        gi = t + DG
        if DG <= gi < 100 and t >= 0:
            sub2, j2 = items[gi]
            assert pair_state[sub2] == (j2 >> 1), (t, gi, sub2, j2, pair_state)
            E.wait_ds([("idx", sub2, j2 >> 1)])
            g_issue(gi, vI[sub2] + (j2 & 1))
            if j2 & 1: pair_state[sub2] = None
        mfma(2)
        mfma(3)
        for look in (t + 1 + DG, t + 2 + DG):
            if DG <= look < 100 and t >= -1:
                sub3, j3 = items[look]
                if pair_state[sub3] is None and (j3 & 1) == 0:
                    ensure_pair(sub3, j3 >> 1)
        if t == lastS:
            e("s_nop 15")
            a = vACC["S"]
            e(f"v_lshlrev_b32 v{vT}, 4, v{vLane}")
            e(f"s_add_u32 s{sT0}, s{sMyOff}, 4096")
            for q in range(8):
                so = sMyOff if q < 4 else sT0
                E.vmem(f"buffer_store_dwordx4 v[{a+4*q}:{a+4*q+3}], v{vT}, s[{S_WS}:{S_WS+3}], s{so} offen offset:{(q%4)*1024} sc1", "Pst")
            stamp()
            stamp(cyc=True)
        if t == w2_step:
            e(f"v_lshrrev_b32 v{vT}, 5, v{vLane}")
            e(f"v_lshlrev_b32 v{vT}, 3, v{vT}")
            e(f"s_lshl_b32 s{sT0}, s{sW}, 6")
            e(f"v_add_u32 v{vT}, s{sT0}, v{vT}")
            e(f"v_add_u32 v{vT}, {W2}, v{vT}")
            for q in range(4):
                E.dsop(f"ds_read_b64 v[{112+2*q}:{112+2*q+1}], v{vT} offset:{16*q}", "w2")
            e(f"v_mul_u32_u24 v{vT}, 26, v{vLane}")
            e(f"v_add_u32 v{vT}, {XW}, v{vT}")
            for j in range(13):
                E.dsop(f"ds_read_u16 v{120+j}, v{vT} offset:{2*j}", "xw")
        if t == w2_step + 1:
            E.wait_ds(["xw"])
            for q in range(4):
                s0 = 112 + 2 * q
                e(f"v_lshlrev_b32 v{vW2+4*q}, 16, v{s0}")
                e(f"v_and_b32 v{vW2+4*q+1}, 0xffff0000, v{s0}")
                e(f"v_lshlrev_b32 v{vW2+4*q+2}, 16, v{s0+1}")
                e(f"v_and_b32 v{vW2+4*q+3}, 0xffff0000, v{s0+1}")
            e(f"v_mov_b32 v{vWide}, s{sBW}")
            for j in range(13):
                e(f"v_lshlrev_b32 v{120+j}, 16, v{120+j}")
                e(f"v_fmac_f32 v{vWide}, s{sWW+j}, v{120+j}")
            e(f"v_add_f32 v{vWide}, s{sB2}, v{vWide}")
        if t == poll_step:
            E.vmem(f"buffer_load_dword v{vFlag}, v{vFlagOff}, s[{S_DBG}:{S_DBG+3}], 0 offen sc1", "poll")
        if t == load_step:
            E.wait_vm(["poll"])
            e(f"v_readfirstlane_b32 s{sT0}, v{vFlag}")
            e("s_nop 1")
            e(f"s_and_b32 s{sT0}, s{sT0}, s{sFlagBit}")
            e("s_cbranch_scc0 L_spin")
            e("L_spin_done:")
            e(f"v_lshlrev_b32 v{vT}, 4, v{vLane}")
            e(f"s_add_u32 s{sT0}, s{sPartOff}, 4096")
            for q in range(8):
                so = sPartOff if q < 4 else sT0
                E.vmem(f"buffer_load_dwordx4 v[{112+4*q}:{112+4*q+3}], v{vT}, s[{S_WS}:{S_WS+3}], s{so} offen offset:{(q%4)*1024} sc1", "Pld")
    assert w2_step + 1 < load_step
    stamp()
    stamp(cyc=True)
    e(f"v_lshrrev_b32 v{vT}, 5, v{vLane}")
    e(f"v_lshlrev_b32 v{vT}, 8, v{vT}")
    e(f"v_and_b32 v{vT2}, 31, v{vLane}")
    e(f"v_lshl_add_u32 v{vT}, v{vT2}, 2, v{vT}")
    e(f"s_lshl_b32 s{sT0}, s{sW}, 9")
    e(f"v_add_u32 v{vT}, s{sT0}, v{vT}")
    a = vACC["K"]
    R = vEB
    for rb in range(2):
        e(f"v_mov_b32 v{R+rb}, 0")
        e(f"v_mov_b32 v{R+2+rb}, 0")
    E.wait_vm(["Pld"])
    e("s_nop 7")
    for rb in range(2):
        for r in range(16):
            x = a + rb * 16 + r
            e(f"v_add_f32 v{x}, v{x}, v{112+rb*16+r}")
        for r in range(16):
            x = a + rb * 16 + r
            e(f"v_max_f32 v{x}, 0, v{x}")
        for r in range(16):
            x = a + rb * 16 + r
            e(f"v_fmac_f32 v{R+rb+2*(r&1)}, v{x}, v{vW2+r}")
        e(f"v_add_f32 v{R+rb}, v{R+rb}, v{R+rb+2}")
        E.dsop(f"ds_write_b32 v{vT}, v{R+rb} offset:{RED+128*rb}", "red")
    E.drain_ds()
    e("s_barrier")
    e(f"s_cmp_lg_u32 s{sW}, 0")
    e("s_cbranch_scc1 L_end")
    e(f"v_lshlrev_b32 v{vT}, 2, v{vLane}")
    Y = vEB + 12
    for kk in range(8):
        e(f"ds_read_b32 v{Y+kk}, v{vT} offset:{RED + kk*256}")
    e(f"s_lshl_b32 s{sT0}, s{sKeepRow}, 1")
    e(f"v_lshlrev_b32 v{vT}, 1, v{vLane}")
    e("s_waitcnt lgkmcnt(0)")
    e(f"v_add_f32 v{Y}, v{Y}, v{Y+1}")
    e(f"v_add_f32 v{Y+2}, v{Y+2}, v{Y+3}")
    e(f"v_add_f32 v{Y+4}, v{Y+4}, v{Y+5}")
    e(f"v_add_f32 v{Y+6}, v{Y+6}, v{Y+7}")
    e(f"v_add_f32 v{Y}, v{Y}, v{Y+2}")
    e(f"v_add_f32 v{Y+4}, v{Y+4}, v{Y+6}")
    e(f"v_add_f32 v{Y}, v{Y}, v{vWide}")
    e(f"v_add_f32 v{Y}, v{Y}, v{Y+4}")
    e(f"v_mul_f32 v{Y}, 0xbfb8aa3b, v{Y}")
    e(f"v_exp_f32 v{Y}, v{Y}")
    e("s_nop 0")
    e(f"v_add_f32 v{Y}, 1.0, v{Y}")
    e(f"v_rcp_f32 v{Y}, v{Y}")
    e("s_nop 0")
    e(f"v_cvt_pk_bf16_f32 v{Y}, v{Y}, v{Y}")
    e(f"buffer_store_short v{Y}, v{vT}, s[{S_OUT}:{S_OUT+3}], s{sT0} offen")
    if diag and hdiag:
        e(f"s_memrealtime s[{sTS+2}:{sTS+3}]")
        e("s_waitcnt lgkmcnt(0)")
        e(f"s_not_b32 s{sT0}, s{sTS}")
        e(f"v_writelane_b32 v0, s{sT0}, 0")
        e(f"v_writelane_b32 v0, s{sTS+2}, 1")
        e(f"v_mov_b32 v{vT}, 0x100")
        for lane, slot in ((0, 8), (1, 9), (4, 10), (6, 11), (8, 12), (10, 13), (12, 14), (16, 15)):
            e(f"s_mov_b32 s{sT0}, {4*slot}")
            e(f"v_writelane_b32 v{vT}, s{sT0}, {lane}")
        e(f"buffer_atomic_umax v0, v{vT}, s[{S_DBG}:{S_DBG+3}], 0 offen")
    elif diag:
        e(f"s_memrealtime s[{sTS+2}:{sTS+3}]")
        e("s_waitcnt lgkmcnt(0)")
        for n, r in enumerate((sTS, sTS+1, sTS+2, sTS+3)):
            e(f"v_writelane_b32 v0, s{r}, {n}")
        e(f"v_writelane_b32 v0, s{sTS}, 63")
        e(f"s_add_u32 s{S_SM}, s58, {16<<20}")
        e(f"s_addc_u32 s{S_SM+1}, s59, 0")
        e(f"s_and_b32 s{S_SM+1}, s{S_SM+1}, 0xffff")
        e(f"s_mov_b32 s{S_SM+2}, 65536")
        e(f"s_mov_b32 s{S_SM+3}, 0x20000")
        e(f"s_lshl_b32 s{sT0}, s2, 8")
        e(f"v_lshlrev_b32 v{vT}, 2, v{vLane}")
        e(f"buffer_store_dword v0, v{vT}, s[{S_SM}:{S_SM+3}], s{sT0} offen")
    e("s_endpgm")
    e("L_spin:")
    e(f"s_mov_b32 s{sSpin}, {1<<17}")
    e("L_spin_loop:")
    e(f"buffer_load_dword v{vFlag}, v{vFlagOff}, s[{S_DBG}:{S_DBG+3}], 0 offen sc1")
    e("s_waitcnt vmcnt(0)")
    e(f"v_readfirstlane_b32 s{sT0}, v{vFlag}")
    e("s_nop 1")
    e(f"s_and_b32 s{sT0}, s{sT0}, s{sFlagBit}")
    e("s_cbranch_scc1 L_spin_done")
    e(f"s_sub_u32 s{sSpin}, s{sSpin}, 1")
    e(f"s_cmp_lg_u32 s{sSpin}, 0")
    e("s_cbranch_scc1 L_spin_loop")
    e("s_branch L_spin_done")
    e("L_end:")
    e("s_endpgm")
    body = "\n".join(E.L)
    out = HEADER
    out += "; Override launch geometry by editing the next line (default: block=256,\n"
    out += f"; @launch grid=(256,1,1) block=(256,1,1) lds={LDS_TOTAL}\n"
    out += f""".amdgcn_target "amdgcn-amd-amdhsa--gfx950"
.text
.globl {NAME}_kernel
.p2align 8
.type {NAME}_kernel,@function
{NAME}_kernel:
{body}
.section .rodata,"a"
.p2align 6
.amdhsa_kernel {NAME}_kernel
  .amdhsa_next_free_vgpr 512
  .amdhsa_next_free_sgpr 102
  .amdhsa_accum_offset 256
  .amdhsa_group_segment_fixed_size 0
  .amdhsa_kernarg_size 96
  .amdhsa_user_sgpr_count 2
  .amdhsa_user_sgpr_kernarg_segment_ptr 1
  .amdhsa_system_sgpr_workgroup_id_x 1
  .amdhsa_float_denorm_mode_32 3
.end_amdhsa_kernel
"""
    if diag:
        out = out.replace("; @launch", f"; STAMPS nst={stamp_next[0]}\n; @launch", 1)
    return out

if __name__ == "__main__":
    kw = {}
    path = None
    for a in sys.argv[1:]:
        if a.endswith(".s"): path = a
        elif a == "diag": kw["diag"] = True
        elif "=" in a:
            n, v = a.split("="); kw[n] = int(v) if v.lstrip("-").isdigit() else v
    s = gen(**kw)
    open(path or "cdna_kernels/" + NAME + ".s", "w").write(s)
```

```python
import sys
from gen_s2 import Em, NAME, HEADER


def gen(diag=False, NWB=12, NA=16, tlbwarm=True, poll_lead=10, sig_delay=8, nomfma=0, gearly=8, order="SK", wgrp=2, probe=0, hdiag=0, spindbg=0):
    E = Em(); e = E.e
    DG = NA - 2
    NAD = 8
    WST = 0
    ADED = WST + NWB * 8192
    RING0 = ADED + NAD * 4096 - NA * 4096
    IDX = ADED + NAD * 4096
    XW = IDX + 26624
    B1 = XW + 2048
    W2 = B1 + 1024
    LDS_TOTAL = W2 + 1024
    RED = WST
    assert LDS_TOTAL <= 163840, LDS_TOTAL
    assert NA * 4096 <= 65536 and RING0 >= 0
    def aslot(i):
        r = i % NA
        return (NA - NAD) * 4096 + r * 4096 if r < NAD else (r - NAD) * 4096
    def aslot_wbufs(i):
        a = RING0 + aslot(i)
        return None if a >= ADED else (a - WST) // 8192
    S_IDX, S_TAB, S_W1, S_MISC, S_OUT, S_SM, S_WS, S_DBG = 8, 12, 16, 20, 24, 28, 32, 60
    sW, sKh, sColS, sColK, sColW, sW2048, sW1024, sT0, sT1, sWbase, sFoff = 64, 65, 66, 67, 68, 69, 70, 71, 72, 73, 74
    sKeepRow, sPartOff, sMyOff, sFlagBit = 75, 76, 77, 78
    sWW, sBW, sB2 = 80, 93, 94
    sSpin = 95
    sTS = 96
    stamp_next = [2]
    def stamp(cyc=False):
        if diag:
            n = stamp_next[0]; stamp_next[0] += 1
            e(f"s_memtime s[6:7]" if cyc else "s_memrealtime s[6:7]")
            E.drain_ds()
            e(f"v_writelane_b32 v0, s6, {2*n}")
            e(f"v_writelane_b32 v0, s7, {2*n+1}")
    vLane, vPiece, vWoff, vIdxB, vE0, vE1, vWtr = 1, 2, 3, 4, 5, 6, 7
    vI = {"S": 8, "K": 10}
    vT, vT2, vFlagOff, vFlag = 12, 13, 14, 15
    vEB = 16
    vACC = {"S": 48, "K": 80}
    def wreg(slot, lo, n):
        if slot < 18:
            b = 112 + slot * 8 + lo
            return f"v[{b}:{b+n-1}]"
        b = (slot - 18) * 8 + lo
        return f"a[{b}:{b+n-1}]"

    items = [("S", j) for j in range(50)] + [("K", j) for j in range(50)]
    last_use = {}
    for t, (sub, j) in enumerate(items): last_use[j] = t
    lastS = 49

    e("s_cmp_ge_u32 s2, 256")
    e("s_cbranch_scc1 L_end")
    if diag: e(f"s_memrealtime s[{sTS}:{sTS+1}]")
    e("s_load_dwordx16 s[36:51], s[0:1], 0")
    e("s_load_dwordx4 s[52:55], s[0:1], 64")
    e("s_load_dwordx4 s[56:59], s[0:1], 80")
    e(f"v_and_b32 v{vLane}, 63, v0")
    e(f"v_lshrrev_b32 v{vT}, 6, v0")
    e("s_nop 0")
    e(f"v_readfirstlane_b32 s{sW}, v{vT}")
    if diag: e("v_mov_b32 v0, 0")
    X = vEB
    vQ = X + 20
    for i in range(4):
        e(f"v_add_u32 v{X}, {64*i}, v{vLane}")
        e(f"v_mul_u32_u24 v{X+1}, 5042, v{X}")
        e(f"v_lshrrev_b32 v{X+1}, 16, v{X+1}")
        e(f"v_mul_u32_u24 v{X+2}, 13, v{X+1}")
        e(f"v_sub_u32 v{X+2}, v{X}, v{X+2}")
        e(f"v_mul_u32_u24 v{X+1}, 400, v{X+1}")
        e(f"v_lshl_add_u32 v{vQ+i}, v{X+2}, 4, v{X+1}")
        if i: e(f"v_subrev_u32 v{vQ+i}, {1024*i}, v{vQ+i}")
    e(f"s_lshr_b32 s{sKh}, s2, 3")
    e(f"s_and_b32 s{sKh}, s{sKh}, 1")
    e(f"s_lshr_b32 s{sT0}, s2, 4")
    e(f"s_lshl_b32 s{sT1}, s{sT0}, 3")
    e(f"s_and_b32 s{sKeepRow}, s2, 7")
    e(f"s_add_u32 s{sT1}, s{sT1}, s{sKeepRow}")
    e(f"s_lshl_b32 s{sT1}, s{sT1}, 7")
    e(f"s_lshl_b32 s{sKeepRow}, s{sKh}, 6")
    e(f"s_add_u32 s{sKeepRow}, s{sKeepRow}, s{sT1}")
    e(f"s_mul_i32 s{sT0}, s{sT0}, 25")
    e(f"s_lshr_b32 s{sT0}, s{sT0}, 4")
    e(f"s_lshl_b32 s{sColS}, s{sT0}, 3")
    e(f"s_mov_b32 s{sColK}, s{sColS}")
    e(f"s_lshl_b32 s{sColW}, s{sT0}, 14")
    e(f"s_lshl_b32 s{sW2048}, s{sW}, 11")
    e(f"s_lshl_b32 s{sW1024}, s{sW}, 10")
    e(f"s_mul_i32 s{sWbase}, s{sKh}, {50*8192}")
    e(f"s_add_u32 s{sWbase}, s{sWbase}, s{sW2048}")
    e(f"s_xor_b32 s{sT0}, s{sKeepRow}, 64")
    e(f"s_lshl_b32 s{sT1}, s{sW}, 4")
    e(f"s_add_u32 s{sT0}, s{sT0}, s{sT1}")
    e(f"s_mul_i32 s{sT0}, s{sT0}, 400")
    e(f"s_mul_i32 s{sFoff}, s{sKh}, 192")
    e(f"s_add_u32 s{sT0}, s{sT0}, s{sFoff}")
    e(f"s_mul_i32 s{sT1}, s{sW}, 3328")
    E.drain_ds()
    def srd(d, p, size):
        e(f"s_mov_b32 s{d}, s{p}")
        e(f"s_and_b32 s{d+1}, s{p+1}, 0xffff")
        e(f"s_mov_b32 s{d+2}, {size}")
        e(f"s_mov_b32 s{d+3}, 0x20000")
    srd(S_IDX, 36, 16384*400)
    def idx_dma(ldsbase, tag):
        e(f"s_add_u32 m0, s{sT1}, {ldsbase}")
        e("s_nop 0")
        for i in range(3):
            E.vmem(f"buffer_load_dwordx4 v{vQ+i}, s[{S_IDX}:{S_IDX+3}], s{sT0} offen offset:{i*1024} lds", tag)
        e("s_mov_b64 exec, 0xffff")
        E.vmem(f"buffer_load_dwordx4 v{vQ+3}, s[{S_IDX}:{S_IDX+3}], s{sT0} offen offset:3072 lds", tag)
        e("s_mov_b64 exec, -1")
    if probe: stamp()
    idx_dma(IDX, "idxS")
    if probe:
        E.drain_vm(); stamp()
    e(f"s_lshl_b32 s{sFoff}, s{sKh}, 1")
    e(f"s_sub_u32 s{sFoff}, s{sFoff}, 1")
    e(f"s_mul_i32 s{sFoff}, s{sFoff}, {64*400}")
    e(f"s_add_u32 s{sT0}, s{sT0}, s{sFoff}")
    idx_dma(IDX + 13312, "idxK")
    if probe:
        E.drain_vm(); stamp()
    srd(S_W1, 46, 3200*256)
    e(f"v_bfe_u32 v{X+1}, v{vLane}, 4, 2")
    e(f"v_and_b32 v{X}, 15, v{vLane}")
    e(f"v_lshlrev_b32 v{X+2}, 2, v{X+1}")
    e(f"v_xor_b32 v{X}, v{X}, v{X+2}")
    e(f"v_lshlrev_b32 v{X}, 4, v{X}")
    e(f"v_lshl_add_u32 v{vWoff}, v{X+1}, 8, v{X}")
    def w_dma(slot):
        buf = WST + (slot % NWB) * 8192
        e(f"s_add_u32 m0, s{sW2048}, {buf}")
        e(f"s_add_u32 s{sFoff}, s{sColW}, s{sWbase}")
        for q in range(2):
            E.vmem(f"buffer_load_dwordx4 v{vWoff}, s[{S_W1}:{S_W1+3}], s{sFoff} offen offset:{q*1024} lds", ("W", slot))
        e(f"s_add_u32 s{sColW}, s{sColW}, 8192")
        e(f"s_cmp_ge_u32 s{sColW}, {50*8192}")
        e(f"s_cselect_b32 s{sColW}, 0, s{sColW}")
    srd(S_TAB, 38, 100000*64)
    if tlbwarm:
        e("s_load_dword s4, s[38:39], 0")
        for a in (0x200000, 0x400000, 0x600000):
            e(f"s_mov_b32 s5, {a}")
            e("s_load_dword s4, s[38:39], s5")
    for j in range(NWB):
        w_dma(j)
        if probe and j == 1:
            E.drain_vm(); stamp()
    if not probe: stamp()
    e(f"v_and_b32 v{X}, 3, v{vLane}")
    e(f"v_bfe_u32 v{X+1}, v{vLane}, 4, 2")
    e(f"v_xor_b32 v{X}, v{X}, v{X+1}")
    e(f"v_lshlrev_b32 v{vPiece}, 4, v{X}")
    e(f"v_lshrrev_b32 v{X}, 2, v{vLane}")
    e(f"v_mul_u32_u24 v{vIdxB}, 208, v{X}")
    e(f"s_lshl_b32 s{sT0}, s{sKh}, 3")
    e(f"s_add_u32 s{sT0}, s{sT0}, s{sT1}")
    e(f"s_add_u32 s{sT0}, s{sT0}, {IDX}")
    e(f"v_add_u32 v{vIdxB}, s{sT0}, v{vIdxB}")
    e(f"v_and_b32 v{X}, 31, v{vLane}")
    e(f"v_lshlrev_b32 v{X}, 6, v{X}")
    e(f"v_add_u32 v{X}, {RING0}, v{X}")
    e(f"v_lshrrev_b32 v{X+1}, 5, v{vLane}")
    e(f"v_bfe_u32 v{X+2}, v{vLane}, 2, 2")
    e(f"v_xor_b32 v{X+3}, v{X+1}, v{X+2}")
    e(f"v_lshl_add_u32 v{vE0}, v{X+3}, 4, v{X}")
    e(f"v_xor_b32 v{X+3}, 2, v{X+3}")
    e(f"v_lshl_add_u32 v{vE1}, v{X+3}, 4, v{X}")
    e(f"v_lshl_add_u32 v{X+3}, v{X+1}, 3, v{X+2}")
    e(f"v_lshlrev_b32 v{X+3}, 8, v{X+3}")
    e(f"v_bfe_u32 v{X+4}, v{vLane}, 4, 1")
    e(f"v_lshlrev_b32 v{X+4}, 1, v{X+4}")
    e(f"v_bfe_u32 v{X+5}, v{vLane}, 1, 1")
    e(f"v_add_u32 v{X+4}, v{X+4}, v{X+5}")
    e(f"s_lshl_b32 s{sT0}, s{sW}, 2")
    e(f"v_add_u32 v{X+4}, s{sT0}, v{X+4}")
    e(f"v_lshlrev_b32 v{X+2}, 2, v{X+2}")
    e(f"v_xor_b32 v{X+4}, v{X+4}, v{X+2}")
    e(f"v_and_b32 v{X+5}, 1, v{vLane}")
    e(f"v_lshlrev_b32 v{X+5}, 3, v{X+5}")
    e(f"v_add_u32 v{X+3}, v{X+3}, v{X+5}")
    e(f"v_lshl_add_u32 v{vWtr}, v{X+4}, 4, v{X+3}")
    e(f"v_add_u32 v{vT2}, 65536, v{vWtr}")
    vWtrH = vT2
    e(f"s_lshl_b32 s{sMyOff}, s2, 15")
    e(f"s_xor_b32 s{sT0}, s2, 8")
    e(f"s_lshl_b32 s{sPartOff}, s{sT0}, 15")
    if hdiag:
        e(f"s_lshr_b32 s{sT0}, s{sT0}, 5")
        e(f"s_lshl_b32 s{sT0}, s{sT0}, 2")
    else:
        e(f"s_and_b32 s{sT0}, s{sT0}, 0xfc")
    e(f"v_mov_b32 v{vFlagOff}, s{sT0}")
    e(f"s_lshl_b32 s{sT0}, s{sW}, 13")
    e(f"s_add_u32 s{sMyOff}, s{sMyOff}, s{sT0}")
    e(f"s_add_u32 s{sPartOff}, s{sPartOff}, s{sT0}")
    if hdiag:
        e(f"s_xor_b32 s{sT0}, s2, 8")
        e(f"s_and_b32 s{sT0}, s{sT0}, 31")
        e(f"s_lshl_b32 s{sFlagBit}, 1, s{sT0}")
        e(f"s_and_b32 s{sT0}, s2, 31")
        e(f"s_lshl_b32 s79, 1, s{sT0}")
    else:
        e(f"s_and_b32 s{sT0}, s2, 3")
        e(f"s_lshl_b32 s{sT0}, s{sT0}, 3")
        e(f"s_lshl_b32 s{sFlagBit}, 1, s{sT0}")
    srd(S_OUT, 54, 16384*2)
    srd(S_DBG, 56, 256)
    srd(S_WS, 58, 256*32768)

    def w_tr(slot):
        buf = WST + (slot % NWB) * 8192
        base = vWtr if buf < 65536 else vWtrH
        off = buf if buf < 65536 else buf - 65536
        for s in range(2):
            for t in range(2):
                E.dsop(f"ds_read_b64_tr_b16 {wreg(slot, s*4 + t*2, 2)}, {'v%d' % base} offset:{off + s*4096 + t*1024}", ("Wtr", slot))
    def misc_loads():
        e(f"v_lshlrev_b32 v{vT}, 4, v{vLane}")
        e(f"s_cmp_lt_u32 s{sW}, 2")
        e(f"s_cselect_b32 s{S_MISC}, s40, s48")
        e(f"s_cselect_b32 s{S_MISC+1}, s41, s49")
        e(f"s_mov_b32 s{S_MISC+2}, 256")
        e(f"s_cselect_b32 s{S_MISC+2}, {16384*26}, s{S_MISC+2}")
        e(f"s_cmp_eq_u32 s{sW}, 3")
        e(f"s_cselect_b32 s{S_MISC}, s50, s{S_MISC}")
        e(f"s_cselect_b32 s{S_MISC+1}, s51, s{S_MISC+1}")
        e(f"s_and_b32 s{S_MISC+1}, s{S_MISC+1}, 0xffff")
        e(f"s_mov_b32 s{S_MISC+3}, 0x20000")
        e(f"s_mul_i32 s{sT0}, s{sKeepRow}, 26")
        e(f"s_add_u32 s{sT0}, s{sT0}, s{sW1024}")
        e(f"s_cmp_lt_u32 s{sW}, 2")
        e(f"s_cselect_b32 s{sT0}, s{sT0}, 0")
        e(f"s_add_u32 m0, s{sW1024}, {XW}")
        e("s_nop 0")
        E.vmem(f"buffer_load_dwordx4 v{vT}, s[{S_MISC}:{S_MISC+3}], s{sT0} offen lds", "misc")
        e(f"v_lshlrev_b32 v{vSm}, 1, v{vLane}")
        for n, (p, size) in enumerate(((42, 26), (44, 2), (52, 2))):
            srd(S_SM, p, size)
            E.vmem(f"buffer_load_ushort v{vSm+1+n}, v{vSm}, s[{S_SM}:{S_SM+3}], 0 offen", "small")
            e("s_nop 0")
    vSm = X + 24

    colreg = {"S": sColS, "K": sColK}
    def idx_read(sub, pair, dst, tmp):
        e(f"v_add_u32 v{tmp}, s{colreg[sub]}, v{vIdxB}")
        E.dsop(f"ds_read_b64 v[{dst}:{dst+1}], v{tmp} offset:{13312 if sub == 'K' else 0}", ("idx", sub, pair))
        c = colreg[sub]
        e(f"s_add_u32 s{c}, s{c}, 8")
        e(f"s_cmp_ge_u32 s{c}, 200")
        e(f"s_cselect_b32 s{c}, 0, s{c}")
    def g_issue(i, reg):
        slot = RING0 + aslot(i)
        e(f"v_lshl_add_u32 v{reg}, v{reg}, 6, v{vPiece}")
        e(f"s_add_u32 m0, s{sW1024}, {slot}")
        e("s_nop 0")
        E.vmem(f"buffer_load_dwordx4 v{reg}, s[{S_TAB}:{S_TAB+3}], 0 offen lds", ("G", i))

    ngrp = (50 + wgrp - 1) // wgrp
    groups = [list(range(g * wgrp, min(50, (g + 1) * wgrp))) for g in range(ngrp)]
    nxt_w = NWB
    misc_at = 2
    tb = X + 0
    early_done = False
    for g, grp in enumerate(groups):
        E.wait_vm([("W", j) for j in grp])
        if g > 0: E.wait_ds([("Wtr", j) for j in groups[g-1]])
        e("s_barrier")
        if g == 0 and not probe: stamp()
        if g > 0:
            for _ in groups[g-1]:
                if nxt_w < 50:
                    w_dma(nxt_w); nxt_w += 1
        if g == misc_at: misc_loads()
        if nxt_w >= 50 and not early_done:
            early_done = True
            E.wait_vm(["idxS"])
            for n in range(gearly // 2):
                idx_read("S", n, tb + 2 * n, vT)
            E.wait_ds([("idx", "S", gearly // 2 - 1)])
            for i in range(gearly):
                assert aslot_wbufs(i) is None
                g_issue(i, tb + i)
            if not probe: stamp()
        for j in grp: w_tr(j)
    assert early_done
    E.wait_vm(["small"])
    for n in range(3):
        e(f"v_lshlrev_b32 v{vSm+1+n}, 16, v{vSm+1+n}")
    e("s_nop 0")
    for j in range(13):
        e(f"v_readlane_b32 s{sWW+j}, v{vSm+1}, {j}")
    e(f"v_readlane_b32 s{sBW}, v{vSm+2}, 0")
    e(f"v_readlane_b32 s{sB2}, v{vSm+3}, 0")
    e(f"v_lshrrev_b32 v{vT}, 5, v{vLane}")
    e(f"v_lshlrev_b32 v{vT}, 3, v{vT}")
    e(f"s_lshl_b32 s{sT0}, s{sW}, 6")
    e(f"v_add_u32 v{vT}, s{sT0}, v{vT}")
    e(f"v_add_u32 v{vT}, {B1}, v{vT}")
    a = vACC["K"]
    for q in range(4):
        E.dsop(f"ds_read_b64 v[{a+16+2*q}:{a+17+2*q}], v{vT} offset:{16*q}", "b1")
    E.drain_ds()
    for q in range(4):
        s0 = a + 16 + 2 * q
        e(f"v_lshlrev_b32 v{a+4*q}, 16, v{s0}")
        e(f"v_and_b32 v{a+4*q+1}, 0xffff0000, v{s0}")
        e(f"v_lshlrev_b32 v{a+4*q+2}, 16, v{s0+1}")
        e(f"v_and_b32 v{a+4*q+3}, 0xffff0000, v{s0+1}")
    for r in range(16):
        e(f"v_mov_b32 v{a+16+r}, v{a+r}")
    e("s_barrier")
    for n in range(gearly // 2, DG // 2):
        idx_read("S", n, tb + 2 * (n - gearly // 2), vT)
    E.drain_ds()
    for i in range(gearly, DG):
        g_issue(i, tb + (i - gearly))
    if not probe: stamp()
    pair_state = {"S": None, "K": None}
    nxt_pair = {"S": DG // 2, "K": 0}
    assert DG % 2 == 0 and gearly % 2 == 0

    def ensure_pair(sub, pair):
        if pair_state[sub] != pair and pair < 25:
            assert pair == nxt_pair[sub], (sub, pair, nxt_pair)
            idx_read(sub, pair, vI[sub], vT2)
            pair_state[sub] = pair
            nxt_pair[sub] = pair + 1
    def e_reads(i):
        buf = vEB + (i % 2) * 16
        slot = aslot(i)
        for s in range(2):
            for rb in range(2):
                d = buf + (s * 2 + rb) * 4
                E.dsop(f"ds_read_b128 v[{d}:{d+3}], v{vE1 if s else vE0} offset:{slot + rb*2048}", ("E", i))

    sig_step = lastS + 1 + sig_delay
    sig_step += sig_step & 1
    part_ok = max(last_use[j] for j in range(6)) + 1
    load_step = max(part_ok, 100 - poll_lead + 4, sig_step + 5)
    poll_step = load_step - 4
    w2_step = max(part_ok, 70)
    add_step = 98
    vW2 = 144
    vWide = 160
    assert last_use[6] < w2_step and last_use[7] < w2_step

    for t in range(-2, 100):
        if t % 2 == 0:
            need = [("G", i) for i in (t + 1, t + 2) if 0 <= i < 100]
            if t == sig_step: need.append("Pst")
            if t == -2: need.append("idxK")
            if need: E.wait_vm(need)
            e("s_barrier")
            if t == sig_step:
                if hdiag:
                    e(f"s_lshr_b32 s{sT1}, s2, 5")
                    e(f"s_lshl_b32 s{sT1}, s{sT1}, 2")
                    e(f"v_mov_b32 v{vT}, s{sT1}")
                    e(f"v_mov_b32 v{vFlag}, s79")
                else:
                    e(f"s_and_b32 s{sT1}, s2, 0xfc")
                    e(f"v_mov_b32 v{vT}, s{sT1}")
                    e(f"v_mov_b32 v{vFlag}, s{sFlagBit}")
                e(f"s_cmp_eq_u32 s{sW}, 0")
                e(f"s_cselect_b32 s{sT0}, 1, 0")
                e(f"s_mov_b32 exec_hi, 0")
                e(f"s_mov_b32 exec_lo, s{sT0}")
                E.vmem(f"buffer_atomic_add v{vFlag}, v{vT}, s[{S_DBG}:{S_DBG+3}], 0 offen", "sig")
                e("s_mov_b64 exec, -1")
                e("s_nop 3")
        mf = []
        if t >= 0:
            sub, j = items[t]
            buf = vEB + (t % 2) * 16
            a = vACC[sub]
            E.wait_ds([("E", t)])
            for s in range(2):
                for rb in range(2):
                    c = f"v[{a+rb*16}:{a+rb*16+15}]"
                    src = "0" if (sub == "S" and j == 0 and s == 0) else c
                    mf.append(f"v_mfma_f32_32x32x16_bf16 {c}, {wreg(j, s*4, 4)}, v[{buf+(s*2+rb)*4}:{buf+(s*2+rb)*4+3}], {src}")
        def mfma(n):
            if n < len(mf) and not nomfma: e(mf[n])
        mfma(0)
        if 0 <= t + 1 < 100: e_reads(t + 1)
        mfma(1)
        gi = t + DG
        if DG <= gi < 100 and t >= 0:
            sub2, j2 = items[gi]
            assert pair_state[sub2] == (j2 >> 1), (t, gi, sub2, j2, pair_state)
            E.wait_ds([("idx", sub2, j2 >> 1)])
            g_issue(gi, vI[sub2] + (j2 & 1))
            if j2 & 1: pair_state[sub2] = None
        mfma(2)
        mfma(3)
        for look in (t + 1 + DG, t + 2 + DG):
            if DG <= look < 100 and t >= -1:
                sub3, j3 = items[look]
                if pair_state[sub3] is None and (j3 & 1) == 0:
                    ensure_pair(sub3, j3 >> 1)
        if t == lastS:
            e("s_nop 15")
            a = vACC["S"]
            e(f"v_lshlrev_b32 v{vT}, 4, v{vLane}")
            e(f"s_add_u32 s{sT0}, s{sMyOff}, 4096")
            for q in range(8):
                so = sMyOff if q < 4 else sT0
                E.vmem(f"buffer_store_dwordx4 v[{a+4*q}:{a+4*q+3}], v{vT}, s[{S_WS}:{S_WS+3}], s{so} offen offset:{(q%4)*1024} sc1", "Pst")
            stamp()
            stamp(cyc=True)
        if t == w2_step:
            e(f"v_lshrrev_b32 v{vT}, 5, v{vLane}")
            e(f"v_lshlrev_b32 v{vT}, 3, v{vT}")
            e(f"s_lshl_b32 s{sT0}, s{sW}, 6")
            e(f"v_add_u32 v{vT}, s{sT0}, v{vT}")
            e(f"v_add_u32 v{vT}, {W2}, v{vT}")
            for q in range(4):
                E.dsop(f"ds_read_b64 v[{112+2*q}:{112+2*q+1}], v{vT} offset:{16*q}", "w2")
            e(f"v_mul_u32_u24 v{vT}, 26, v{vLane}")
            e(f"v_add_u32 v{vT}, {XW}, v{vT}")
            for j in range(13):
                E.dsop(f"ds_read_u16 v{120+j}, v{vT} offset:{2*j}", "xw")
        if t == w2_step + 1:
            E.wait_ds(["xw"])
            for q in range(4):
                s0 = 112 + 2 * q
                e(f"v_lshlrev_b32 v{vW2+4*q}, 16, v{s0}")
                e(f"v_and_b32 v{vW2+4*q+1}, 0xffff0000, v{s0}")
                e(f"v_lshlrev_b32 v{vW2+4*q+2}, 16, v{s0+1}")
                e(f"v_and_b32 v{vW2+4*q+3}, 0xffff0000, v{s0+1}")
            e(f"v_mov_b32 v{vWide}, s{sBW}")
            for j in range(13):
                e(f"v_lshlrev_b32 v{120+j}, 16, v{120+j}")
                e(f"v_fmac_f32 v{vWide}, s{sWW+j}, v{120+j}")
            e(f"v_add_f32 v{vWide}, s{sB2}, v{vWide}")
        if t == poll_step:
            E.vmem(f"buffer_load_dword v{vFlag}, v{vFlagOff}, s[{S_DBG}:{S_DBG+3}], 0 offen sc1", "poll")
        if t == load_step:
            E.wait_vm(["poll"])
            e(f"v_readfirstlane_b32 s{sT0}, v{vFlag}")
            e("s_nop 1")
            e(f"s_and_b32 s{sT0}, s{sT0}, s{sFlagBit}")
            e("s_cbranch_scc0 L_spin")
            e("L_spin_done:")
            e(f"v_lshlrev_b32 v{vT}, 4, v{vLane}")
            e(f"s_add_u32 s{sT0}, s{sPartOff}, 4096")
            for q in range(8):
                so = sPartOff if q < 4 else sT0
                E.vmem(f"buffer_load_dwordx4 v[{112+4*q}:{112+4*q+3}], v{vT}, s[{S_WS}:{S_WS+3}], s{so} offen offset:{(q%4)*1024} sc1", "Pld")
    assert w2_step + 1 < load_step
    stamp()
    stamp(cyc=True)
    e(f"v_lshrrev_b32 v{vT}, 5, v{vLane}")
    e(f"v_lshlrev_b32 v{vT}, 8, v{vT}")
    e(f"v_and_b32 v{vT2}, 31, v{vLane}")
    e(f"v_lshl_add_u32 v{vT}, v{vT2}, 2, v{vT}")
    e(f"s_lshl_b32 s{sT0}, s{sW}, 9")
    e(f"v_add_u32 v{vT}, s{sT0}, v{vT}")
    a = vACC["K"]
    R = vEB
    for rb in range(2):
        e(f"v_mov_b32 v{R+rb}, 0")
        e(f"v_mov_b32 v{R+2+rb}, 0")
    E.wait_vm(["Pld"])
    e("s_nop 7")
    for rb in range(2):
        for r in range(16):
            x = a + rb * 16 + r
            e(f"v_add_f32 v{x}, v{x}, v{112+rb*16+r}")
        for r in range(16):
            x = a + rb * 16 + r
            e(f"v_max_f32 v{x}, 0, v{x}")
        for r in range(16):
            x = a + rb * 16 + r
            e(f"v_fmac_f32 v{R+rb+2*(r&1)}, v{x}, v{vW2+r}")
        e(f"v_add_f32 v{R+rb}, v{R+rb}, v{R+rb+2}")
        E.dsop(f"ds_write_b32 v{vT}, v{R+rb} offset:{RED+128*rb}", "red")
    E.drain_ds()
    e("s_barrier")
    e(f"s_cmp_lg_u32 s{sW}, 0")
    e("s_cbranch_scc1 L_end")
    e(f"v_lshlrev_b32 v{vT}, 2, v{vLane}")
    Y = vEB + 12
    for kk in range(8):
        e(f"ds_read_b32 v{Y+kk}, v{vT} offset:{RED + kk*256}")
    e(f"s_lshl_b32 s{sT0}, s{sKeepRow}, 1")
    e(f"v_lshlrev_b32 v{vT}, 1, v{vLane}")
    e("s_waitcnt lgkmcnt(0)")
    e(f"v_add_f32 v{Y}, v{Y}, v{Y+1}")
    e(f"v_add_f32 v{Y+2}, v{Y+2}, v{Y+3}")
    e(f"v_add_f32 v{Y+4}, v{Y+4}, v{Y+5}")
    e(f"v_add_f32 v{Y+6}, v{Y+6}, v{Y+7}")
    e(f"v_add_f32 v{Y}, v{Y}, v{Y+2}")
    e(f"v_add_f32 v{Y+4}, v{Y+4}, v{Y+6}")
    e(f"v_add_f32 v{Y}, v{Y}, v{vWide}")
    e(f"v_add_f32 v{Y}, v{Y}, v{Y+4}")
    e(f"v_mul_f32 v{Y}, 0xbfb8aa3b, v{Y}")
    e(f"v_exp_f32 v{Y}, v{Y}")
    e("s_nop 0")
    e(f"v_add_f32 v{Y}, 1.0, v{Y}")
    e(f"v_rcp_f32 v{Y}, v{Y}")
    e("s_nop 0")
    e(f"v_cvt_pk_bf16_f32 v{Y}, v{Y}, v{Y}")
    e(f"buffer_store_short v{Y}, v{vT}, s[{S_OUT}:{S_OUT+3}], s{sT0} offen")
    if diag and hdiag:
        e(f"s_memrealtime s[{sTS+2}:{sTS+3}]")
        e("s_waitcnt lgkmcnt(0)")
        e(f"s_not_b32 s{sT0}, s{sTS}")
        e(f"v_writelane_b32 v0, s{sT0}, 0")
        e(f"v_writelane_b32 v0, s{sTS+2}, 1")
        e(f"v_mov_b32 v{vT}, 0x100")
        for lane, slot in ((0, 8), (1, 9), (4, 10), (6, 11), (8, 12), (10, 13), (12, 14), (16, 15)):
            e(f"s_mov_b32 s{sT0}, {4*slot}")
            e(f"v_writelane_b32 v{vT}, s{sT0}, {lane}")
        e(f"buffer_atomic_umax v0, v{vT}, s[{S_DBG}:{S_DBG+3}], 0 offen")
    elif diag:
        e(f"s_memrealtime s[{sTS+2}:{sTS+3}]")
        e("s_waitcnt lgkmcnt(0)")
        for n, r in enumerate((sTS, sTS+1, sTS+2, sTS+3)):
            e(f"v_writelane_b32 v0, s{r}, {n}")
        e(f"v_writelane_b32 v0, s{sTS}, 63")
        e(f"s_add_u32 s{S_SM}, s58, {16<<20}")
        e(f"s_addc_u32 s{S_SM+1}, s59, 0")
        e(f"s_and_b32 s{S_SM+1}, s{S_SM+1}, 0xffff")
        e(f"s_mov_b32 s{S_SM+2}, 65536")
        e(f"s_mov_b32 s{S_SM+3}, 0x20000")
        e(f"s_lshl_b32 s{sT0}, s2, 8")
        e(f"v_lshlrev_b32 v{vT}, 2, v{vLane}")
        e(f"buffer_store_dword v0, v{vT}, s[{S_SM}:{S_SM+3}], s{sT0} offen")
    e("s_endpgm")
    e("L_spin:")
    e(f"s_mov_b32 s{sSpin}, {1<<17}")
    e("L_spin_loop:")
    e(f"buffer_load_dword v{vFlag}, v{vFlagOff}, s[{S_DBG}:{S_DBG+3}], 0 offen sc1")
    e("s_waitcnt vmcnt(0)")
    e(f"v_readfirstlane_b32 s{sT0}, v{vFlag}")
    e("s_nop 1")
    e(f"s_and_b32 s{sT0}, s{sT0}, s{sFlagBit}")
    e("s_cbranch_scc1 L_spin_done" if not spindbg else "s_cbranch_scc1 L_spin_rep")
    e(f"s_sub_u32 s{sSpin}, s{sSpin}, 1")
    e(f"s_cmp_lg_u32 s{sSpin}, 0")
    e("s_cbranch_scc1 L_spin_loop")
    e("s_branch L_spin_done")
    if spindbg:
        e("L_spin_rep:")
        e(f"s_sub_u32 s{sT0}, {1<<17}, s{sSpin}")
        e(f"s_min_u32 s{sT0}, s{sT0}, 7")
        e(f"s_lshl_b32 s{sT0}, s{sT0}, 4")
        e(f"s_cmp_eq_u32 s{sW}, 0")
        e(f"s_cselect_b32 s{sT0}, s{sT0}, 0")
        e(f"s_add_u32 s{sT0}, s{sT0}, 2")
        e(f"s_and_b32 s{sT1}, s2, 3")
        e(f"s_lshl_b32 s{sT1}, s{sT1}, 3")
        e(f"s_lshl_b32 s{sT0}, s{sT0}, s{sT1}")
        e(f"v_mov_b32 v{vFlag}, s{sT0}")
        e(f"s_and_b32 s{sT1}, s2, 0xfc")
        e(f"v_mov_b32 v{vT}, s{sT1}")
        e("s_mov_b64 exec, 1")
        e(f"buffer_atomic_add v{vFlag}, v{vT}, s[{S_DBG}:{S_DBG+3}], 0 offen")
        e("s_mov_b64 exec, -1")
        e("s_waitcnt vmcnt(0)")
        e("s_branch L_spin_done")
    e("L_end:")
    e("s_endpgm")
    body = "\n".join(E.L)
    out = HEADER
    out += "; Override launch geometry by editing the next line (default: block=256,\n"
    out += f"; @launch grid=(256,1,1) block=(256,1,1) lds={LDS_TOTAL}\n"
    out += f""".amdgcn_target "amdgcn-amd-amdhsa--gfx950"
.text
.globl {NAME}_kernel
.p2align 8
.type {NAME}_kernel,@function
{NAME}_kernel:
{body}
.section .rodata,"a"
.p2align 6
.amdhsa_kernel {NAME}_kernel
  .amdhsa_next_free_vgpr 512
  .amdhsa_next_free_sgpr 102
  .amdhsa_accum_offset 256
  .amdhsa_group_segment_fixed_size 0
  .amdhsa_kernarg_size 96
  .amdhsa_user_sgpr_count 2
  .amdhsa_user_sgpr_kernarg_segment_ptr 1
  .amdhsa_system_sgpr_workgroup_id_x 1
  .amdhsa_float_denorm_mode_32 3
.end_amdhsa_kernel
"""
    if diag:
        out = out.replace("; @launch", f"; STAMPS nst={stamp_next[0]}\n; @launch", 1)
    return out

if __name__ == "__main__":
    kw = {}
    path = None
    for a in sys.argv[1:]:
        if a.endswith(".s"): path = a
        elif a == "diag": kw["diag"] = True
        elif "=" in a:
            n, v = a.split("="); kw[n] = int(v) if v.lstrip("-").isdigit() else v
    s = gen(**kw)
    open(path or "cdna_kernels/" + NAME + ".s", "w").write(s)
```

```python
import sys
from gen_s2 import Em, NAME, HEADER


def gen(diag=False, NWB=12, NA=16, tlbwarm=True, poll_lead=10, sig_delay=8, nomfma=0, gearly=8, order="SK", wgrp=2, probe=0, hdiag=0, spindbg=0, halftab=0, pf=0, bfx=1, unp_at=97):
    E = Em(); e = E.e
    DG = NA - 2
    NAD = 8
    WST = 0
    ADED = WST + NWB * 8192
    RING0 = ADED + NAD * 4096 - NA * 4096
    IDX = ADED + NAD * 4096
    XW = IDX + 26624
    B1 = XW + 2048
    W2 = B1 + 1024
    LDS_TOTAL = W2 + 1024
    RED = WST
    assert LDS_TOTAL <= 163840, LDS_TOTAL
    assert NA * 4096 <= 65536 and RING0 >= 0
    def aslot(i):
        r = i % NA
        return (NA - NAD) * 4096 + r * 4096 if r < NAD else (r - NAD) * 4096
    def aslot_wbufs(i):
        a = RING0 + aslot(i)
        return None if a >= ADED else (a - WST) // 8192
    S_IDX, S_TAB, S_W1, S_MISC, S_OUT, S_SM, S_WS, S_DBG = 8, 12, 16, 20, 24, 28, 32, 60
    sW, sKh, sColS, sColK, sColW, sW2048, sW1024, sT0, sT1, sWbase, sFoff = 64, 65, 66, 67, 68, 69, 70, 71, 72, 73, 74
    sKeepRow, sPartOff, sMyOff, sFlagBit = 75, 76, 77, 78
    sWW, sBW, sB2 = 80, 93, 94
    sSpin = 95
    sTS = 96
    stamp_next = [2]
    def stamp(cyc=False):
        if diag:
            n = stamp_next[0]; stamp_next[0] += 1
            e(f"s_memtime s[6:7]" if cyc else "s_memrealtime s[6:7]")
            E.drain_ds()
            e(f"v_writelane_b32 v0, s6, {2*n}")
            e(f"v_writelane_b32 v0, s7, {2*n+1}")
    vLane, vPiece, vWoff, vIdxB, vE0, vE1, vWtr = 1, 2, 3, 4, 5, 6, 7
    vI = {"S": 8, "K": 10}
    vT, vT2, vFlagOff, vFlag = 12, 13, 14, 15
    vEB = 16
    vACC = {"S": 48, "K": 80}
    def wreg(slot, lo, n):
        if slot < 18:
            b = 112 + slot * 8 + lo
            return f"v[{b}:{b+n-1}]"
        b = (slot - 18) * 8 + lo
        return f"a[{b}:{b+n-1}]"

    items = [("S", j) for j in range(50)] + [("K", j) for j in range(50)]
    last_use = {}
    for t, (sub, j) in enumerate(items): last_use[j] = t
    lastS = 49

    e("s_cmp_ge_u32 s2, 256")
    e("s_cbranch_scc1 L_end")
    if diag: e(f"s_memrealtime s[{sTS}:{sTS+1}]")
    e("s_load_dwordx16 s[36:51], s[0:1], 0")
    e("s_load_dwordx4 s[52:55], s[0:1], 64")
    e("s_load_dwordx4 s[56:59], s[0:1], 80")
    e(f"v_and_b32 v{vLane}, 63, v0")
    e(f"v_lshrrev_b32 v{vT}, 6, v0")
    e("s_nop 0")
    e(f"v_readfirstlane_b32 s{sW}, v{vT}")
    if diag: e("v_mov_b32 v0, 0")
    X = vEB
    vQ = X + 20
    for i in range(4):
        e(f"v_add_u32 v{X}, {64*i}, v{vLane}")
        e(f"v_mul_u32_u24 v{X+1}, 5042, v{X}")
        e(f"v_lshrrev_b32 v{X+1}, 16, v{X+1}")
        e(f"v_mul_u32_u24 v{X+2}, 13, v{X+1}")
        e(f"v_sub_u32 v{X+2}, v{X}, v{X+2}")
        e(f"v_mul_u32_u24 v{X+1}, 400, v{X+1}")
        e(f"v_lshl_add_u32 v{vQ+i}, v{X+2}, 4, v{X+1}")
        if i: e(f"v_subrev_u32 v{vQ+i}, {1024*i}, v{vQ+i}")
    e(f"s_lshr_b32 s{sKh}, s2, 3")
    e(f"s_and_b32 s{sKh}, s{sKh}, 1")
    e(f"s_lshr_b32 s{sT0}, s2, 4")
    e(f"s_lshl_b32 s{sT1}, s{sT0}, 3")
    e(f"s_and_b32 s{sKeepRow}, s2, 7")
    e(f"s_add_u32 s{sT1}, s{sT1}, s{sKeepRow}")
    e(f"s_lshl_b32 s{sT1}, s{sT1}, 7")
    e(f"s_lshl_b32 s{sKeepRow}, s{sKh}, 6")
    e(f"s_add_u32 s{sKeepRow}, s{sKeepRow}, s{sT1}")
    e(f"s_mul_i32 s{sT0}, s{sT0}, 25")
    e(f"s_lshr_b32 s{sT0}, s{sT0}, 4")
    e(f"s_lshl_b32 s{sColS}, s{sT0}, 3")
    e(f"s_mov_b32 s{sColK}, s{sColS}")
    e(f"s_lshl_b32 s{sColW}, s{sT0}, 14")
    e(f"s_lshl_b32 s{sW2048}, s{sW}, 11")
    e(f"s_lshl_b32 s{sW1024}, s{sW}, 10")
    e(f"s_mul_i32 s{sWbase}, s{sKh}, {50*8192}")
    e(f"s_add_u32 s{sWbase}, s{sWbase}, s{sW2048}")
    e(f"s_xor_b32 s{sT0}, s{sKeepRow}, 64")
    e(f"s_lshl_b32 s{sT1}, s{sW}, 4")
    e(f"s_add_u32 s{sT0}, s{sT0}, s{sT1}")
    e(f"s_mul_i32 s{sT0}, s{sT0}, 400")
    e(f"s_mul_i32 s{sFoff}, s{sKh}, 192")
    e(f"s_add_u32 s{sT0}, s{sT0}, s{sFoff}")
    e(f"s_mul_i32 s{sT1}, s{sW}, 3328")
    E.drain_ds()
    def srd(d, p, size):
        e(f"s_mov_b32 s{d}, s{p}")
        e(f"s_and_b32 s{d+1}, s{p+1}, 0xffff")
        e(f"s_mov_b32 s{d+2}, {size}")
        e(f"s_mov_b32 s{d+3}, 0x20000")
    srd(S_IDX, 36, 16384*400)
    def idx_dma(ldsbase, tag):
        e(f"s_add_u32 m0, s{sT1}, {ldsbase}")
        e("s_nop 0")
        for i in range(3):
            E.vmem(f"buffer_load_dwordx4 v{vQ+i}, s[{S_IDX}:{S_IDX+3}], s{sT0} offen offset:{i*1024} lds", tag)
        e("s_mov_b64 exec, 0xffff")
        E.vmem(f"buffer_load_dwordx4 v{vQ+3}, s[{S_IDX}:{S_IDX+3}], s{sT0} offen offset:3072 lds", tag)
        e("s_mov_b64 exec, -1")
    if probe: stamp()
    idx_dma(IDX, "idxS")
    if probe:
        E.drain_vm(); stamp()
    e(f"s_lshl_b32 s{sFoff}, s{sKh}, 1")
    e(f"s_sub_u32 s{sFoff}, s{sFoff}, 1")
    e(f"s_mul_i32 s{sFoff}, s{sFoff}, {64*400}")
    e(f"s_add_u32 s{sT0}, s{sT0}, s{sFoff}")
    idx_dma(IDX + 13312, "idxK")
    if probe:
        E.drain_vm(); stamp()
    srd(S_W1, 46, 3200*256)
    e(f"v_bfe_u32 v{X+1}, v{vLane}, 4, 2")
    e(f"v_and_b32 v{X}, 15, v{vLane}")
    e(f"v_lshlrev_b32 v{X+2}, 2, v{X+1}")
    e(f"v_xor_b32 v{X}, v{X}, v{X+2}")
    e(f"v_lshlrev_b32 v{X}, 4, v{X}")
    e(f"v_lshl_add_u32 v{vWoff}, v{X+1}, 8, v{X}")
    def w_dma(slot):
        buf = WST + (slot % NWB) * 8192
        e(f"s_add_u32 m0, s{sW2048}, {buf}")
        e(f"s_add_u32 s{sFoff}, s{sColW}, s{sWbase}")
        for q in range(2):
            E.vmem(f"buffer_load_dwordx4 v{vWoff}, s[{S_W1}:{S_W1+3}], s{sFoff} offen offset:{q*1024} lds", ("W", slot))
        e(f"s_add_u32 s{sColW}, s{sColW}, 8192")
        e(f"s_cmp_ge_u32 s{sColW}, {50*8192}")
        e(f"s_cselect_b32 s{sColW}, 0, s{sColW}")
    srd(S_TAB, 38, (50000 if halftab else 100000)*64)
    if tlbwarm:
        e("s_load_dword s4, s[38:39], 0")
        for a in (0x200000, 0x400000, 0x600000):
            e(f"s_mov_b32 s5, {a}")
            e("s_load_dword s4, s[38:39], s5")
    if pf:
        e(f"s_lshr_b32 s{sT0}, s2, 3")
        e(f"s_mul_i32 s{sT0}, s{sT0}, 102400")
        e(f"s_mul_i32 s{sFoff}, s{sW}, 25600")
        e(f"s_add_u32 s{sT0}, s{sT0}, s{sFoff}")
        e(f"v_lshlrev_b32 v{vT}, 4, v{vLane}")
        e(f"s_add_u32 m0, s{sW1024}, {ADED}")
        for q in range(25):
            E.vmem(f"buffer_load_dwordx4 v{vT}, s[{S_TAB}:{S_TAB+3}], s{sT0} offen lds", "pf")
            e(f"s_add_u32 s{sT0}, s{sT0}, 1024")
    for j in range(NWB):
        w_dma(j)
        if probe and j == 1:
            E.drain_vm(); stamp()
    if not probe: stamp()
    e(f"v_and_b32 v{X}, 3, v{vLane}")
    e(f"v_bfe_u32 v{X+1}, v{vLane}, 4, 2")
    e(f"v_xor_b32 v{X}, v{X}, v{X+1}")
    e(f"v_lshlrev_b32 v{vPiece}, 4, v{X}")
    e(f"v_lshrrev_b32 v{X}, 2, v{vLane}")
    e(f"v_mul_u32_u24 v{vIdxB}, 208, v{X}")
    e(f"s_lshl_b32 s{sT0}, s{sKh}, 3")
    e(f"s_add_u32 s{sT0}, s{sT0}, s{sT1}")
    e(f"s_add_u32 s{sT0}, s{sT0}, {IDX}")
    e(f"v_add_u32 v{vIdxB}, s{sT0}, v{vIdxB}")
    e(f"v_and_b32 v{X}, 31, v{vLane}")
    e(f"v_lshlrev_b32 v{X}, 6, v{X}")
    e(f"v_add_u32 v{X}, {RING0}, v{X}")
    e(f"v_lshrrev_b32 v{X+1}, 5, v{vLane}")
    e(f"v_bfe_u32 v{X+2}, v{vLane}, 2, 2")
    e(f"v_xor_b32 v{X+3}, v{X+1}, v{X+2}")
    e(f"v_lshl_add_u32 v{vE0}, v{X+3}, 4, v{X}")
    e(f"v_xor_b32 v{X+3}, 2, v{X+3}")
    e(f"v_lshl_add_u32 v{vE1}, v{X+3}, 4, v{X}")
    e(f"v_lshl_add_u32 v{X+3}, v{X+1}, 3, v{X+2}")
    e(f"v_lshlrev_b32 v{X+3}, 8, v{X+3}")
    e(f"v_bfe_u32 v{X+4}, v{vLane}, 4, 1")
    e(f"v_lshlrev_b32 v{X+4}, 1, v{X+4}")
    e(f"v_bfe_u32 v{X+5}, v{vLane}, 1, 1")
    e(f"v_add_u32 v{X+4}, v{X+4}, v{X+5}")
    e(f"s_lshl_b32 s{sT0}, s{sW}, 2")
    e(f"v_add_u32 v{X+4}, s{sT0}, v{X+4}")
    e(f"v_lshlrev_b32 v{X+2}, 2, v{X+2}")
    e(f"v_xor_b32 v{X+4}, v{X+4}, v{X+2}")
    e(f"v_and_b32 v{X+5}, 1, v{vLane}")
    e(f"v_lshlrev_b32 v{X+5}, 3, v{X+5}")
    e(f"v_add_u32 v{X+3}, v{X+3}, v{X+5}")
    e(f"v_lshl_add_u32 v{vWtr}, v{X+4}, 4, v{X+3}")
    e(f"v_add_u32 v{vT2}, 65536, v{vWtr}")
    vWtrH = vT2
    e(f"s_lshl_b32 s{sMyOff}, s2, {14 if bfx else 15}")
    e(f"s_xor_b32 s{sT0}, s2, 8")
    e(f"s_lshl_b32 s{sPartOff}, s{sT0}, {14 if bfx else 15}")
    if hdiag:
        e(f"s_lshr_b32 s{sT0}, s{sT0}, 5")
        e(f"s_lshl_b32 s{sT0}, s{sT0}, 2")
    else:
        e(f"s_and_b32 s{sT0}, s{sT0}, 0xfc")
    e(f"v_mov_b32 v{vFlagOff}, s{sT0}")
    e(f"s_lshl_b32 s{sT0}, s{sW}, {12 if bfx else 13}")
    e(f"s_add_u32 s{sMyOff}, s{sMyOff}, s{sT0}")
    e(f"s_add_u32 s{sPartOff}, s{sPartOff}, s{sT0}")
    if hdiag:
        e(f"s_xor_b32 s{sT0}, s2, 8")
        e(f"s_and_b32 s{sT0}, s{sT0}, 31")
        e(f"s_lshl_b32 s{sFlagBit}, 1, s{sT0}")
        e(f"s_and_b32 s{sT0}, s2, 31")
        e(f"s_lshl_b32 s79, 1, s{sT0}")
    else:
        e(f"s_and_b32 s{sT0}, s2, 3")
        e(f"s_lshl_b32 s{sT0}, s{sT0}, 3")
        e(f"s_lshl_b32 s{sFlagBit}, 1, s{sT0}")
    srd(S_OUT, 54, 16384*2)
    srd(S_DBG, 56, 256)
    srd(S_WS, 58, 256*(16384 if bfx else 32768))

    def w_tr(slot):
        buf = WST + (slot % NWB) * 8192
        base = vWtr if buf < 65536 else vWtrH
        off = buf if buf < 65536 else buf - 65536
        for s in range(2):
            for t in range(2):
                E.dsop(f"ds_read_b64_tr_b16 {wreg(slot, s*4 + t*2, 2)}, {'v%d' % base} offset:{off + s*4096 + t*1024}", ("Wtr", slot))
    def misc_loads():
        e(f"v_lshlrev_b32 v{vT}, 4, v{vLane}")
        e(f"s_cmp_lt_u32 s{sW}, 2")
        e(f"s_cselect_b32 s{S_MISC}, s40, s48")
        e(f"s_cselect_b32 s{S_MISC+1}, s41, s49")
        e(f"s_mov_b32 s{S_MISC+2}, 256")
        e(f"s_cselect_b32 s{S_MISC+2}, {16384*26}, s{S_MISC+2}")
        e(f"s_cmp_eq_u32 s{sW}, 3")
        e(f"s_cselect_b32 s{S_MISC}, s50, s{S_MISC}")
        e(f"s_cselect_b32 s{S_MISC+1}, s51, s{S_MISC+1}")
        e(f"s_and_b32 s{S_MISC+1}, s{S_MISC+1}, 0xffff")
        e(f"s_mov_b32 s{S_MISC+3}, 0x20000")
        e(f"s_mul_i32 s{sT0}, s{sKeepRow}, 26")
        e(f"s_add_u32 s{sT0}, s{sT0}, s{sW1024}")
        e(f"s_cmp_lt_u32 s{sW}, 2")
        e(f"s_cselect_b32 s{sT0}, s{sT0}, 0")
        e(f"s_add_u32 m0, s{sW1024}, {XW}")
        e("s_nop 0")
        E.vmem(f"buffer_load_dwordx4 v{vT}, s[{S_MISC}:{S_MISC+3}], s{sT0} offen lds", "misc")
        e(f"v_lshlrev_b32 v{vSm}, 1, v{vLane}")
        for n, (p, size) in enumerate(((42, 26), (44, 2), (52, 2))):
            srd(S_SM, p, size)
            E.vmem(f"buffer_load_ushort v{vSm+1+n}, v{vSm}, s[{S_SM}:{S_SM+3}], 0 offen", "small")
            e("s_nop 0")
    vSm = X + 24

    colreg = {"S": sColS, "K": sColK}
    def idx_read(sub, pair, dst, tmp):
        e(f"v_add_u32 v{tmp}, s{colreg[sub]}, v{vIdxB}")
        E.dsop(f"ds_read_b64 v[{dst}:{dst+1}], v{tmp} offset:{13312 if sub == 'K' else 0}", ("idx", sub, pair))
        c = colreg[sub]
        e(f"s_add_u32 s{c}, s{c}, 8")
        e(f"s_cmp_ge_u32 s{c}, 200")
        e(f"s_cselect_b32 s{c}, 0, s{c}")
    def g_issue(i, reg):
        slot = RING0 + aslot(i)
        e(f"v_lshl_add_u32 v{reg}, v{reg}, 6, v{vPiece}")
        e(f"s_add_u32 m0, s{sW1024}, {slot}")
        e("s_nop 0")
        E.vmem(f"buffer_load_dwordx4 v{reg}, s[{S_TAB}:{S_TAB+3}], 0 offen lds", ("G", i))

    ngrp = (50 + wgrp - 1) // wgrp
    groups = [list(range(g * wgrp, min(50, (g + 1) * wgrp))) for g in range(ngrp)]
    nxt_w = NWB
    misc_at = 2
    tb = X + 0
    early_done = False
    for g, grp in enumerate(groups):
        E.wait_vm([("W", j) for j in grp])
        if g > 0: E.wait_ds([("Wtr", j) for j in groups[g-1]])
        e("s_barrier")
        if g == 0 and not probe: stamp()
        if g > 0:
            for _ in groups[g-1]:
                if nxt_w < 50:
                    w_dma(nxt_w); nxt_w += 1
        if g == misc_at: misc_loads()
        if nxt_w >= 50 and not early_done:
            early_done = True
            E.wait_vm(["idxS"])
            for n in range(gearly // 2):
                idx_read("S", n, tb + 2 * n, vT)
            E.wait_ds([("idx", "S", gearly // 2 - 1)])
            for i in range(gearly):
                assert aslot_wbufs(i) is None
                g_issue(i, tb + i)
            if not probe: stamp()
        for j in grp: w_tr(j)
    assert early_done
    E.wait_vm(["small"])
    for n in range(3):
        e(f"v_lshlrev_b32 v{vSm+1+n}, 16, v{vSm+1+n}")
    e("s_nop 0")
    for j in range(13):
        e(f"v_readlane_b32 s{sWW+j}, v{vSm+1}, {j}")
    e(f"v_readlane_b32 s{sBW}, v{vSm+2}, 0")
    e(f"v_readlane_b32 s{sB2}, v{vSm+3}, 0")
    e(f"v_lshrrev_b32 v{vT}, 5, v{vLane}")
    e(f"v_lshlrev_b32 v{vT}, 3, v{vT}")
    e(f"s_lshl_b32 s{sT0}, s{sW}, 6")
    e(f"v_add_u32 v{vT}, s{sT0}, v{vT}")
    e(f"v_add_u32 v{vT}, {B1}, v{vT}")
    a = vACC["K"]
    for q in range(4):
        E.dsop(f"ds_read_b64 v[{a+16+2*q}:{a+17+2*q}], v{vT} offset:{16*q}", "b1")
    E.drain_ds()
    for q in range(4):
        s0 = a + 16 + 2 * q
        e(f"v_lshlrev_b32 v{a+4*q}, 16, v{s0}")
        e(f"v_and_b32 v{a+4*q+1}, 0xffff0000, v{s0}")
        e(f"v_lshlrev_b32 v{a+4*q+2}, 16, v{s0+1}")
        e(f"v_and_b32 v{a+4*q+3}, 0xffff0000, v{s0+1}")
    for r in range(16):
        e(f"v_mov_b32 v{a+16+r}, v{a+r}")
    e("s_barrier")
    for n in range(gearly // 2, DG // 2):
        idx_read("S", n, tb + 2 * (n - gearly // 2), vT)
    E.drain_ds()
    for i in range(gearly, DG):
        g_issue(i, tb + (i - gearly))
    if not probe: stamp()
    pair_state = {"S": None, "K": None}
    nxt_pair = {"S": DG // 2, "K": 0}
    assert DG % 2 == 0 and gearly % 2 == 0

    def ensure_pair(sub, pair):
        if pair_state[sub] != pair and pair < 25:
            assert pair == nxt_pair[sub], (sub, pair, nxt_pair)
            idx_read(sub, pair, vI[sub], vT2)
            pair_state[sub] = pair
            nxt_pair[sub] = pair + 1
    def e_reads(i):
        buf = vEB + (i % 2) * 16
        slot = aslot(i)
        for s in range(2):
            for rb in range(2):
                d = buf + (s * 2 + rb) * 4
                E.dsop(f"ds_read_b128 v[{d}:{d+3}], v{vE1 if s else vE0} offset:{slot + rb*2048}", ("E", i))

    sig_step = lastS + 1 + sig_delay
    sig_step += sig_step & 1
    part_ok = max(last_use[j] for j in range(6)) + 1
    load_step = max(part_ok, 100 - poll_lead + 4, sig_step + 5)
    poll_step = load_step - 4
    w2_step = max(part_ok, 70)
    add_step = 98
    vW2 = 144
    vWide = 160
    assert last_use[6] < w2_step and last_use[7] < w2_step

    for t in range(-2, 100):
        if t % 2 == 0:
            need = [("G", i) for i in (t + 1, t + 2) if 0 <= i < 100]
            if t == sig_step: need.append("Pst")
            if t == -2: need.append("idxK")
            if need: E.wait_vm(need)
            e("s_barrier")
            if t == sig_step:
                if hdiag:
                    e(f"s_lshr_b32 s{sT1}, s2, 5")
                    e(f"s_lshl_b32 s{sT1}, s{sT1}, 2")
                    e(f"v_mov_b32 v{vT}, s{sT1}")
                    e(f"v_mov_b32 v{vFlag}, s79")
                else:
                    e(f"s_and_b32 s{sT1}, s2, 0xfc")
                    e(f"v_mov_b32 v{vT}, s{sT1}")
                    e(f"v_mov_b32 v{vFlag}, s{sFlagBit}")
                e(f"s_cmp_eq_u32 s{sW}, 0")
                e(f"s_cselect_b32 s{sT0}, 1, 0")
                e(f"s_mov_b32 exec_hi, 0")
                e(f"s_mov_b32 exec_lo, s{sT0}")
                E.vmem(f"buffer_atomic_add v{vFlag}, v{vT}, s[{S_DBG}:{S_DBG+3}], 0 offen", "sig")
                e("s_mov_b64 exec, -1")
                e("s_nop 3")
        mf = []
        if t >= 0:
            sub, j = items[t]
            buf = vEB + (t % 2) * 16
            a = vACC[sub]
            E.wait_ds([("E", t)])
            for s in range(2):
                for rb in range(2):
                    c = f"v[{a+rb*16}:{a+rb*16+15}]"
                    src = "0" if (sub == "S" and j == 0 and s == 0) else c
                    mf.append(f"v_mfma_f32_32x32x16_bf16 {c}, {wreg(j, s*4, 4)}, v[{buf+(s*2+rb)*4}:{buf+(s*2+rb)*4+3}], {src}")
        def mfma(n):
            if n < len(mf) and not nomfma: e(mf[n])
        mfma(0)
        if 0 <= t + 1 < 100: e_reads(t + 1)
        mfma(1)
        gi = t + DG
        if DG <= gi < 100 and t >= 0:
            sub2, j2 = items[gi]
            assert pair_state[sub2] == (j2 >> 1), (t, gi, sub2, j2, pair_state)
            E.wait_ds([("idx", sub2, j2 >> 1)])
            g_issue(gi, vI[sub2] + (j2 & 1))
            if j2 & 1: pair_state[sub2] = None
        mfma(2)
        mfma(3)
        for look in (t + 1 + DG, t + 2 + DG):
            if DG <= look < 100 and t >= -1:
                sub3, j3 = items[look]
                if pair_state[sub3] is None and (j3 & 1) == 0:
                    ensure_pair(sub3, j3 >> 1)
        if t == lastS:
            e("s_nop 15")
            a = vACC["S"]
            e(f"v_lshlrev_b32 v{vT}, 4, v{vLane}")
            if bfx:
                for r in range(16):
                    e(f"v_cvt_pk_bf16_f32 v{a+r}, v{a+2*r}, v{a+2*r+1}")
                for q in range(4):
                    E.vmem(f"buffer_store_dwordx4 v[{a+4*q}:{a+4*q+3}], v{vT}, s[{S_WS}:{S_WS+3}], s{sMyOff} offen offset:{q*1024} sc1", "Pst")
            else:
                e(f"s_add_u32 s{sT0}, s{sMyOff}, 4096")
                for q in range(8):
                    so = sMyOff if q < 4 else sT0
                    E.vmem(f"buffer_store_dwordx4 v[{a+4*q}:{a+4*q+3}], v{vT}, s[{S_WS}:{S_WS+3}], s{so} offen offset:{(q%4)*1024} sc1", "Pst")
            stamp()
            stamp(cyc=True)
        if t == w2_step:
            e(f"v_lshrrev_b32 v{vT}, 5, v{vLane}")
            e(f"v_lshlrev_b32 v{vT}, 3, v{vT}")
            e(f"s_lshl_b32 s{sT0}, s{sW}, 6")
            e(f"v_add_u32 v{vT}, s{sT0}, v{vT}")
            e(f"v_add_u32 v{vT}, {W2}, v{vT}")
            for q in range(4):
                E.dsop(f"ds_read_b64 v[{112+2*q}:{112+2*q+1}], v{vT} offset:{16*q}", "w2")
            e(f"v_mul_u32_u24 v{vT}, 26, v{vLane}")
            e(f"v_add_u32 v{vT}, {XW}, v{vT}")
            for j in range(13):
                E.dsop(f"ds_read_u16 v{120+j}, v{vT} offset:{2*j}", "xw")
        if t == w2_step + 1:
            E.wait_ds(["xw"])
            for q in range(4):
                s0 = 112 + 2 * q
                e(f"v_lshlrev_b32 v{vW2+4*q}, 16, v{s0}")
                e(f"v_and_b32 v{vW2+4*q+1}, 0xffff0000, v{s0}")
                e(f"v_lshlrev_b32 v{vW2+4*q+2}, 16, v{s0+1}")
                e(f"v_and_b32 v{vW2+4*q+3}, 0xffff0000, v{s0+1}")
            e(f"v_mov_b32 v{vWide}, s{sBW}")
            for j in range(13):
                e(f"v_lshlrev_b32 v{120+j}, 16, v{120+j}")
                e(f"v_fmac_f32 v{vWide}, s{sWW+j}, v{120+j}")
            e(f"v_add_f32 v{vWide}, s{sB2}, v{vWide}")
        if t == poll_step:
            E.vmem(f"buffer_load_dword v{vFlag}, v{vFlagOff}, s[{S_DBG}:{S_DBG+3}], 0 offen sc1", "poll")
        if t == load_step:
            E.wait_vm(["poll"])
            e(f"v_readfirstlane_b32 s{sT0}, v{vFlag}")
            e("s_nop 1")
            e(f"s_and_b32 s{sT0}, s{sT0}, s{sFlagBit}")
            e("s_cbranch_scc0 L_spin")
            e("L_spin_done:")
            e(f"v_lshlrev_b32 v{vT}, 4, v{vLane}")
            if bfx:
                for q in range(4):
                    E.vmem(f"buffer_load_dwordx4 v[{164+4*q}:{164+4*q+3}], v{vT}, s[{S_WS}:{S_WS+3}], s{sPartOff} offen offset:{q*1024} sc1", "Pld")
            else:
                e(f"s_add_u32 s{sT0}, s{sPartOff}, 4096")
                for q in range(8):
                    so = sPartOff if q < 4 else sT0
                    E.vmem(f"buffer_load_dwordx4 v[{112+4*q}:{112+4*q+3}], v{vT}, s[{S_WS}:{S_WS+3}], s{so} offen offset:{(q%4)*1024} sc1", "Pld")
        if bfx and t == unp_at:
            E.wait_vm(["Pld"])
            for r in range(16):
                e(f"v_lshlrev_b32 v{112+2*r}, 16, v{164+r}")
                e(f"v_and_b32 v{113+2*r}, 0xffff0000, v{164+r}")
    assert w2_step + 1 < load_step < unp_at and max(last_use[j] for j in range(9)) < load_step
    stamp()
    stamp(cyc=True)
    e(f"v_lshrrev_b32 v{vT}, 5, v{vLane}")
    e(f"v_lshlrev_b32 v{vT}, 8, v{vT}")
    e(f"v_and_b32 v{vT2}, 31, v{vLane}")
    e(f"v_lshl_add_u32 v{vT}, v{vT2}, 2, v{vT}")
    e(f"s_lshl_b32 s{sT0}, s{sW}, 9")
    e(f"v_add_u32 v{vT}, s{sT0}, v{vT}")
    a = vACC["K"]
    R = vEB
    for rb in range(2):
        e(f"v_mov_b32 v{R+rb}, 0")
        e(f"v_mov_b32 v{R+2+rb}, 0")
    E.wait_vm(["Pld"])
    e("s_nop 7")
    for rb in range(2):
        for r in range(16):
            x = a + rb * 16 + r
            e(f"v_add_f32 v{x}, v{x}, v{112+rb*16+r}")
        for r in range(16):
            x = a + rb * 16 + r
            e(f"v_max_f32 v{x}, 0, v{x}")
        for r in range(16):
            x = a + rb * 16 + r
            e(f"v_fmac_f32 v{R+rb+2*(r&1)}, v{x}, v{vW2+r}")
        e(f"v_add_f32 v{R+rb}, v{R+rb}, v{R+rb+2}")
        E.dsop(f"ds_write_b32 v{vT}, v{R+rb} offset:{RED+128*rb}", "red")
    E.drain_ds()
    e("s_barrier")
    e(f"s_cmp_lg_u32 s{sW}, 0")
    e("s_cbranch_scc1 L_end")
    e(f"v_lshlrev_b32 v{vT}, 2, v{vLane}")
    Y = vEB + 12
    for kk in range(8):
        e(f"ds_read_b32 v{Y+kk}, v{vT} offset:{RED + kk*256}")
    e(f"s_lshl_b32 s{sT0}, s{sKeepRow}, 1")
    e(f"v_lshlrev_b32 v{vT}, 1, v{vLane}")
    e("s_waitcnt lgkmcnt(0)")
    e(f"v_add_f32 v{Y}, v{Y}, v{Y+1}")
    e(f"v_add_f32 v{Y+2}, v{Y+2}, v{Y+3}")
    e(f"v_add_f32 v{Y+4}, v{Y+4}, v{Y+5}")
    e(f"v_add_f32 v{Y+6}, v{Y+6}, v{Y+7}")
    e(f"v_add_f32 v{Y}, v{Y}, v{Y+2}")
    e(f"v_add_f32 v{Y+4}, v{Y+4}, v{Y+6}")
    e(f"v_add_f32 v{Y}, v{Y}, v{vWide}")
    e(f"v_add_f32 v{Y}, v{Y}, v{Y+4}")
    e(f"v_mul_f32 v{Y}, 0xbfb8aa3b, v{Y}")
    e(f"v_exp_f32 v{Y}, v{Y}")
    e("s_nop 0")
    e(f"v_add_f32 v{Y}, 1.0, v{Y}")
    e(f"v_rcp_f32 v{Y}, v{Y}")
    e("s_nop 0")
    e(f"v_cvt_pk_bf16_f32 v{Y}, v{Y}, v{Y}")
    e(f"buffer_store_short v{Y}, v{vT}, s[{S_OUT}:{S_OUT+3}], s{sT0} offen")
    if diag and hdiag:
        e(f"s_memrealtime s[{sTS+2}:{sTS+3}]")
        e("s_waitcnt lgkmcnt(0)")
        e(f"s_not_b32 s{sT0}, s{sTS}")
        e(f"v_writelane_b32 v0, s{sT0}, 0")
        e(f"v_writelane_b32 v0, s{sTS+2}, 1")
        e(f"v_mov_b32 v{vT}, 0x100")
        for lane, slot in ((0, 8), (1, 9), (4, 10), (6, 11), (8, 12), (10, 13), (12, 14), (16, 15)):
            e(f"s_mov_b32 s{sT0}, {4*slot}")
            e(f"v_writelane_b32 v{vT}, s{sT0}, {lane}")
        e(f"buffer_atomic_umax v0, v{vT}, s[{S_DBG}:{S_DBG+3}], 0 offen")
    elif diag:
        e(f"s_memrealtime s[{sTS+2}:{sTS+3}]")
        e("s_waitcnt lgkmcnt(0)")
        for n, r in enumerate((sTS, sTS+1, sTS+2, sTS+3)):
            e(f"v_writelane_b32 v0, s{r}, {n}")
        e(f"v_writelane_b32 v0, s{sTS}, 63")
        e(f"s_add_u32 s{S_SM}, s58, {16<<20}")
        e(f"s_addc_u32 s{S_SM+1}, s59, 0")
        e(f"s_and_b32 s{S_SM+1}, s{S_SM+1}, 0xffff")
        e(f"s_mov_b32 s{S_SM+2}, 65536")
        e(f"s_mov_b32 s{S_SM+3}, 0x20000")
        e(f"s_lshl_b32 s{sT0}, s2, 8")
        e(f"v_lshlrev_b32 v{vT}, 2, v{vLane}")
        e(f"buffer_store_dword v0, v{vT}, s[{S_SM}:{S_SM+3}], s{sT0} offen")
    e("s_endpgm")
    e("L_spin:")
    e(f"s_mov_b32 s{sSpin}, {1<<17}")
    e("L_spin_loop:")
    e(f"buffer_load_dword v{vFlag}, v{vFlagOff}, s[{S_DBG}:{S_DBG+3}], 0 offen sc1")
    e("s_waitcnt vmcnt(0)")
    e(f"v_readfirstlane_b32 s{sT0}, v{vFlag}")
    e("s_nop 1")
    e(f"s_and_b32 s{sT0}, s{sT0}, s{sFlagBit}")
    e("s_cbranch_scc1 L_spin_done" if not spindbg else "s_cbranch_scc1 L_spin_rep")
    e(f"s_sub_u32 s{sSpin}, s{sSpin}, 1")
    e(f"s_cmp_lg_u32 s{sSpin}, 0")
    e("s_cbranch_scc1 L_spin_loop")
    e("s_branch L_spin_done")
    if spindbg:
        e("L_spin_rep:")
        e(f"s_sub_u32 s{sT0}, {1<<17}, s{sSpin}")
        e(f"s_min_u32 s{sT0}, s{sT0}, 7")
        e(f"s_lshl_b32 s{sT0}, s{sT0}, 4")
        e(f"s_cmp_eq_u32 s{sW}, 0")
        e(f"s_cselect_b32 s{sT0}, s{sT0}, 0")
        e(f"s_add_u32 s{sT0}, s{sT0}, 2")
        e(f"s_and_b32 s{sT1}, s2, 3")
        e(f"s_lshl_b32 s{sT1}, s{sT1}, 3")
        e(f"s_lshl_b32 s{sT0}, s{sT0}, s{sT1}")
        e(f"v_mov_b32 v{vFlag}, s{sT0}")
        e(f"s_and_b32 s{sT1}, s2, 0xfc")
        e(f"v_mov_b32 v{vT}, s{sT1}")
        e("s_mov_b64 exec, 1")
        e(f"buffer_atomic_add v{vFlag}, v{vT}, s[{S_DBG}:{S_DBG+3}], 0 offen")
        e("s_mov_b64 exec, -1")
        e("s_waitcnt vmcnt(0)")
        e("s_branch L_spin_done")
    e("L_end:")
    e("s_endpgm")
    body = "\n".join(E.L)
    out = HEADER
    out += "; Override launch geometry by editing the next line (default: block=256,\n"
    out += f"; @launch grid=(256,1,1) block=(256,1,1) lds={LDS_TOTAL}\n"
    out += f""".amdgcn_target "amdgcn-amd-amdhsa--gfx950"
.text
.globl {NAME}_kernel
.p2align 8
.type {NAME}_kernel,@function
{NAME}_kernel:
{body}
.section .rodata,"a"
.p2align 6
.amdhsa_kernel {NAME}_kernel
  .amdhsa_next_free_vgpr 512
  .amdhsa_next_free_sgpr 102
  .amdhsa_accum_offset 256
  .amdhsa_group_segment_fixed_size 0
  .amdhsa_kernarg_size 96
  .amdhsa_user_sgpr_count 2
  .amdhsa_user_sgpr_kernarg_segment_ptr 1
  .amdhsa_system_sgpr_workgroup_id_x 1
  .amdhsa_float_denorm_mode_32 3
.end_amdhsa_kernel
"""
    if diag:
        out = out.replace("; @launch", f"; STAMPS nst={stamp_next[0]}\n; @launch", 1)
    return out

if __name__ == "__main__":
    kw = {}
    path = None
    for a in sys.argv[1:]:
        if a.endswith(".s"): path = a
        elif a == "diag": kw["diag"] = True
        elif "=" in a:
            n, v = a.split("="); kw[n] = int(v) if v.lstrip("-").isdigit() else v
    s = gen(**kw)
    open(path or "cdna_kernels/" + NAME + ".s", "w").write(s)
```

```python
import sys
from gen_s2 import Em, NAME, HEADER


def gen(diag=False, NWB=12, NA=16, tlbwarm=True, poll_lead=10, sig_delay=8, nomfma=0, gearly=8, order="SK", wgrp=2, probe=0, hdiag=0, spindbg=0, halftab=0, pf=0, bfx=1, unp_at=97, misc_early=1, touch=1):
    E = Em(); e = E.e
    DG = NA - 2
    NAD = 8
    WST = 0
    ADED = WST + NWB * 8192
    RING0 = ADED + NAD * 4096 - NA * 4096
    IDX = ADED + NAD * 4096
    XW = IDX + 26624
    B1 = XW + 2048
    W2 = B1 + 1024
    LDS_TOTAL = W2 + 1024
    RED = WST
    assert LDS_TOTAL <= 163840, LDS_TOTAL
    assert NA * 4096 <= 65536 and RING0 >= 0
    def aslot(i):
        r = i % NA
        return (NA - NAD) * 4096 + r * 4096 if r < NAD else (r - NAD) * 4096
    def aslot_wbufs(i):
        a = RING0 + aslot(i)
        return None if a >= ADED else (a - WST) // 8192
    S_IDX, S_TAB, S_W1, S_MISC, S_OUT, S_SM, S_WS, S_DBG = 8, 12, 16, 20, 24, 28, 32, 60
    sW, sKh, sColS, sColK, sColW, sW2048, sW1024, sT0, sT1, sWbase, sFoff = 64, 65, 66, 67, 68, 69, 70, 71, 72, 73, 74
    sKeepRow, sPartOff, sMyOff, sFlagBit = 75, 76, 77, 78
    sWW, sBW, sB2 = 80, 93, 94
    sSpin = 95
    sTS = 96
    stamp_next = [2]
    def stamp(cyc=False):
        if diag:
            n = stamp_next[0]; stamp_next[0] += 1
            e(f"s_memtime s[6:7]" if cyc else "s_memrealtime s[6:7]")
            E.drain_ds()
            e(f"v_writelane_b32 v0, s6, {2*n}")
            e(f"v_writelane_b32 v0, s7, {2*n+1}")
    vLane, vPiece, vWoff, vIdxB, vE0, vE1, vWtr = 1, 2, 3, 4, 5, 6, 7
    vI = {"S": 8, "K": 10}
    vT, vT2, vFlagOff, vFlag = 12, 13, 14, 15
    vEB = 16
    vACC = {"S": 48, "K": 80}
    def wreg(slot, lo, n):
        if slot < 18:
            b = 112 + slot * 8 + lo
            return f"v[{b}:{b+n-1}]"
        b = (slot - 18) * 8 + lo
        return f"a[{b}:{b+n-1}]"

    items = [("S", j) for j in range(50)] + [("K", j) for j in range(50)]
    last_use = {}
    for t, (sub, j) in enumerate(items): last_use[j] = t
    lastS = 49

    e("s_cmp_ge_u32 s2, 256")
    e("s_cbranch_scc1 L_end")
    if diag: e(f"s_memrealtime s[{sTS}:{sTS+1}]")
    e("s_load_dwordx16 s[36:51], s[0:1], 0")
    e("s_load_dwordx4 s[52:55], s[0:1], 64")
    e("s_load_dwordx4 s[56:59], s[0:1], 80")
    e(f"v_and_b32 v{vLane}, 63, v0")
    e(f"v_lshrrev_b32 v{vT}, 6, v0")
    e("s_nop 0")
    e(f"v_readfirstlane_b32 s{sW}, v{vT}")
    if diag: e("v_mov_b32 v0, 0")
    X = vEB
    vQ = X + 20
    for i in range(4):
        e(f"v_add_u32 v{X}, {64*i}, v{vLane}")
        e(f"v_mul_u32_u24 v{X+1}, 5042, v{X}")
        e(f"v_lshrrev_b32 v{X+1}, 16, v{X+1}")
        e(f"v_mul_u32_u24 v{X+2}, 13, v{X+1}")
        e(f"v_sub_u32 v{X+2}, v{X}, v{X+2}")
        e(f"v_mul_u32_u24 v{X+1}, 400, v{X+1}")
        e(f"v_lshl_add_u32 v{vQ+i}, v{X+2}, 4, v{X+1}")
        if i: e(f"v_subrev_u32 v{vQ+i}, {1024*i}, v{vQ+i}")
    e(f"s_lshr_b32 s{sKh}, s2, 3")
    e(f"s_and_b32 s{sKh}, s{sKh}, 1")
    e(f"s_lshr_b32 s{sT0}, s2, 4")
    e(f"s_lshl_b32 s{sT1}, s{sT0}, 3")
    e(f"s_and_b32 s{sKeepRow}, s2, 7")
    e(f"s_add_u32 s{sT1}, s{sT1}, s{sKeepRow}")
    e(f"s_lshl_b32 s{sT1}, s{sT1}, 7")
    e(f"s_lshl_b32 s{sKeepRow}, s{sKh}, 6")
    e(f"s_add_u32 s{sKeepRow}, s{sKeepRow}, s{sT1}")
    e(f"s_mul_i32 s{sT0}, s{sT0}, 25")
    e(f"s_lshr_b32 s{sT0}, s{sT0}, 4")
    e(f"s_lshl_b32 s{sColS}, s{sT0}, 3")
    e(f"s_mov_b32 s{sColK}, s{sColS}")
    e(f"s_lshl_b32 s{sColW}, s{sT0}, 14")
    e(f"s_lshl_b32 s{sW2048}, s{sW}, 11")
    e(f"s_lshl_b32 s{sW1024}, s{sW}, 10")
    e(f"s_mul_i32 s{sWbase}, s{sKh}, {50*8192}")
    e(f"s_add_u32 s{sWbase}, s{sWbase}, s{sW2048}")
    e(f"s_xor_b32 s{sT0}, s{sKeepRow}, 64")
    e(f"s_lshl_b32 s{sT1}, s{sW}, 4")
    e(f"s_add_u32 s{sT0}, s{sT0}, s{sT1}")
    e(f"s_mul_i32 s{sT0}, s{sT0}, 400")
    e(f"s_mul_i32 s{sFoff}, s{sKh}, 192")
    e(f"s_add_u32 s{sT0}, s{sT0}, s{sFoff}")
    e(f"s_mul_i32 s{sT1}, s{sW}, 3328")
    E.drain_ds()
    def srd(d, p, size):
        e(f"s_mov_b32 s{d}, s{p}")
        e(f"s_and_b32 s{d+1}, s{p+1}, 0xffff")
        e(f"s_mov_b32 s{d+2}, {size}")
        e(f"s_mov_b32 s{d+3}, 0x20000")
    srd(S_IDX, 36, 16384*400)
    def idx_dma(ldsbase, tag):
        e(f"s_add_u32 m0, s{sT1}, {ldsbase}")
        e("s_nop 0")
        for i in range(3):
            E.vmem(f"buffer_load_dwordx4 v{vQ+i}, s[{S_IDX}:{S_IDX+3}], s{sT0} offen offset:{i*1024} lds", tag)
        e("s_mov_b64 exec, 0xffff")
        E.vmem(f"buffer_load_dwordx4 v{vQ+3}, s[{S_IDX}:{S_IDX+3}], s{sT0} offen offset:3072 lds", tag)
        e("s_mov_b64 exec, -1")
    if probe: stamp()
    idx_dma(IDX, "idxS")
    if probe:
        E.drain_vm(); stamp()
    e(f"s_lshl_b32 s{sFoff}, s{sKh}, 1")
    e(f"s_sub_u32 s{sFoff}, s{sFoff}, 1")
    e(f"s_mul_i32 s{sFoff}, s{sFoff}, {64*400}")
    e(f"s_add_u32 s{sT0}, s{sT0}, s{sFoff}")
    idx_dma(IDX + 13312, "idxK")
    if probe:
        E.drain_vm(); stamp()
    vSm = X + 24
    def misc_loads():
        e(f"v_lshlrev_b32 v{vT}, 4, v{vLane}")
        e(f"s_cmp_lt_u32 s{sW}, 2")
        e(f"s_cselect_b32 s{S_MISC}, s40, s48")
        e(f"s_cselect_b32 s{S_MISC+1}, s41, s49")
        e(f"s_mov_b32 s{S_MISC+2}, 256")
        e(f"s_cselect_b32 s{S_MISC+2}, {16384*26}, s{S_MISC+2}")
        e(f"s_cmp_eq_u32 s{sW}, 3")
        e(f"s_cselect_b32 s{S_MISC}, s50, s{S_MISC}")
        e(f"s_cselect_b32 s{S_MISC+1}, s51, s{S_MISC+1}")
        e(f"s_and_b32 s{S_MISC+1}, s{S_MISC+1}, 0xffff")
        e(f"s_mov_b32 s{S_MISC+3}, 0x20000")
        e(f"s_mul_i32 s{sT0}, s{sKeepRow}, 26")
        e(f"s_add_u32 s{sT0}, s{sT0}, s{sW1024}")
        e(f"s_cmp_lt_u32 s{sW}, 2")
        e(f"s_cselect_b32 s{sT0}, s{sT0}, 0")
        e(f"s_add_u32 m0, s{sW1024}, {XW}")
        e("s_nop 0")
        E.vmem(f"buffer_load_dwordx4 v{vT}, s[{S_MISC}:{S_MISC+3}], s{sT0} offen lds", "misc")
        e(f"v_lshlrev_b32 v{vSm}, 1, v{vLane}")
        for n, (p, size) in enumerate(((42, 26), (44, 2), (52, 2))):
            srd(S_SM, p, size)
            E.vmem(f"buffer_load_ushort v{vSm+1+n}, v{vSm}, s[{S_SM}:{S_SM+3}], 0 offen", "small")
            e("s_nop 0")
    if misc_early: misc_loads()
    if touch:
        e("s_load_dword s4, s[54:55], 0")
        e("s_load_dword s4, s[56:57], 0")
        e("s_load_dword s4, s[58:59], 0")
        e("s_mov_b32 s5, 0x200000")
        e("s_load_dword s4, s[58:59], s5")
    srd(S_W1, 46, 3200*256)
    e(f"v_bfe_u32 v{X+1}, v{vLane}, 4, 2")
    e(f"v_and_b32 v{X}, 15, v{vLane}")
    e(f"v_lshlrev_b32 v{X+2}, 2, v{X+1}")
    e(f"v_xor_b32 v{X}, v{X}, v{X+2}")
    e(f"v_lshlrev_b32 v{X}, 4, v{X}")
    e(f"v_lshl_add_u32 v{vWoff}, v{X+1}, 8, v{X}")
    def w_dma(slot):
        buf = WST + (slot % NWB) * 8192
        e(f"s_add_u32 m0, s{sW2048}, {buf}")
        e(f"s_add_u32 s{sFoff}, s{sColW}, s{sWbase}")
        for q in range(2):
            E.vmem(f"buffer_load_dwordx4 v{vWoff}, s[{S_W1}:{S_W1+3}], s{sFoff} offen offset:{q*1024} lds", ("W", slot))
        e(f"s_add_u32 s{sColW}, s{sColW}, 8192")
        e(f"s_cmp_ge_u32 s{sColW}, {50*8192}")
        e(f"s_cselect_b32 s{sColW}, 0, s{sColW}")
    srd(S_TAB, 38, (50000 if halftab else 100000)*64)
    if tlbwarm:
        e("s_load_dword s4, s[38:39], 0")
        for a in (0x200000, 0x400000, 0x600000):
            e(f"s_mov_b32 s5, {a}")
            e("s_load_dword s4, s[38:39], s5")
    if pf:
        e(f"s_lshr_b32 s{sT0}, s2, 3")
        e(f"s_mul_i32 s{sT0}, s{sT0}, 102400")
        e(f"s_mul_i32 s{sFoff}, s{sW}, 25600")
        e(f"s_add_u32 s{sT0}, s{sT0}, s{sFoff}")
        e(f"v_lshlrev_b32 v{vT}, 4, v{vLane}")
        e(f"s_add_u32 m0, s{sW1024}, {ADED}")
        for q in range(25):
            E.vmem(f"buffer_load_dwordx4 v{vT}, s[{S_TAB}:{S_TAB+3}], s{sT0} offen lds", "pf")
            e(f"s_add_u32 s{sT0}, s{sT0}, 1024")
    for j in range(NWB):
        w_dma(j)
        if probe and j == 1:
            E.drain_vm(); stamp()
    if not probe: stamp()
    e(f"v_and_b32 v{X}, 3, v{vLane}")
    e(f"v_bfe_u32 v{X+1}, v{vLane}, 4, 2")
    e(f"v_xor_b32 v{X}, v{X}, v{X+1}")
    e(f"v_lshlrev_b32 v{vPiece}, 4, v{X}")
    e(f"v_lshrrev_b32 v{X}, 2, v{vLane}")
    e(f"v_mul_u32_u24 v{vIdxB}, 208, v{X}")
    e(f"s_lshl_b32 s{sT0}, s{sKh}, 3")
    e(f"s_add_u32 s{sT0}, s{sT0}, s{sT1}")
    e(f"s_add_u32 s{sT0}, s{sT0}, {IDX}")
    e(f"v_add_u32 v{vIdxB}, s{sT0}, v{vIdxB}")
    e(f"v_and_b32 v{X}, 31, v{vLane}")
    e(f"v_lshlrev_b32 v{X}, 6, v{X}")
    e(f"v_add_u32 v{X}, {RING0}, v{X}")
    e(f"v_lshrrev_b32 v{X+1}, 5, v{vLane}")
    e(f"v_bfe_u32 v{X+2}, v{vLane}, 2, 2")
    e(f"v_xor_b32 v{X+3}, v{X+1}, v{X+2}")
    e(f"v_lshl_add_u32 v{vE0}, v{X+3}, 4, v{X}")
    e(f"v_xor_b32 v{X+3}, 2, v{X+3}")
    e(f"v_lshl_add_u32 v{vE1}, v{X+3}, 4, v{X}")
    e(f"v_lshl_add_u32 v{X+3}, v{X+1}, 3, v{X+2}")
    e(f"v_lshlrev_b32 v{X+3}, 8, v{X+3}")
    e(f"v_bfe_u32 v{X+4}, v{vLane}, 4, 1")
    e(f"v_lshlrev_b32 v{X+4}, 1, v{X+4}")
    e(f"v_bfe_u32 v{X+5}, v{vLane}, 1, 1")
    e(f"v_add_u32 v{X+4}, v{X+4}, v{X+5}")
    e(f"s_lshl_b32 s{sT0}, s{sW}, 2")
    e(f"v_add_u32 v{X+4}, s{sT0}, v{X+4}")
    e(f"v_lshlrev_b32 v{X+2}, 2, v{X+2}")
    e(f"v_xor_b32 v{X+4}, v{X+4}, v{X+2}")
    e(f"v_and_b32 v{X+5}, 1, v{vLane}")
    e(f"v_lshlrev_b32 v{X+5}, 3, v{X+5}")
    e(f"v_add_u32 v{X+3}, v{X+3}, v{X+5}")
    e(f"v_lshl_add_u32 v{vWtr}, v{X+4}, 4, v{X+3}")
    e(f"v_add_u32 v{vT2}, 65536, v{vWtr}")
    vWtrH = vT2
    e(f"s_lshl_b32 s{sMyOff}, s2, {14 if bfx else 15}")
    e(f"s_xor_b32 s{sT0}, s2, 8")
    e(f"s_lshl_b32 s{sPartOff}, s{sT0}, {14 if bfx else 15}")
    if hdiag:
        e(f"s_lshr_b32 s{sT0}, s{sT0}, 5")
        e(f"s_lshl_b32 s{sT0}, s{sT0}, 2")
    else:
        e(f"s_and_b32 s{sT0}, s{sT0}, 0xfc")
    e(f"v_mov_b32 v{vFlagOff}, s{sT0}")
    e(f"s_lshl_b32 s{sT0}, s{sW}, {12 if bfx else 13}")
    e(f"s_add_u32 s{sMyOff}, s{sMyOff}, s{sT0}")
    e(f"s_add_u32 s{sPartOff}, s{sPartOff}, s{sT0}")
    if hdiag:
        e(f"s_xor_b32 s{sT0}, s2, 8")
        e(f"s_and_b32 s{sT0}, s{sT0}, 31")
        e(f"s_lshl_b32 s{sFlagBit}, 1, s{sT0}")
        e(f"s_and_b32 s{sT0}, s2, 31")
        e(f"s_lshl_b32 s79, 1, s{sT0}")
    else:
        e(f"s_and_b32 s{sT0}, s2, 3")
        e(f"s_lshl_b32 s{sT0}, s{sT0}, 3")
        e(f"s_lshl_b32 s{sFlagBit}, 1, s{sT0}")
    srd(S_OUT, 54, 16384*2)
    srd(S_DBG, 56, 256)
    srd(S_WS, 58, 256*(16384 if bfx else 32768))

    def w_tr(slot):
        buf = WST + (slot % NWB) * 8192
        base = vWtr if buf < 65536 else vWtrH
        off = buf if buf < 65536 else buf - 65536
        for s in range(2):
            for t in range(2):
                E.dsop(f"ds_read_b64_tr_b16 {wreg(slot, s*4 + t*2, 2)}, {'v%d' % base} offset:{off + s*4096 + t*1024}", ("Wtr", slot))

    colreg = {"S": sColS, "K": sColK}
    def idx_read(sub, pair, dst, tmp):
        e(f"v_add_u32 v{tmp}, s{colreg[sub]}, v{vIdxB}")
        E.dsop(f"ds_read_b64 v[{dst}:{dst+1}], v{tmp} offset:{13312 if sub == 'K' else 0}", ("idx", sub, pair))
        c = colreg[sub]
        e(f"s_add_u32 s{c}, s{c}, 8")
        e(f"s_cmp_ge_u32 s{c}, 200")
        e(f"s_cselect_b32 s{c}, 0, s{c}")
    def g_issue(i, reg):
        slot = RING0 + aslot(i)
        e(f"v_lshl_add_u32 v{reg}, v{reg}, 6, v{vPiece}")
        e(f"s_add_u32 m0, s{sW1024}, {slot}")
        e("s_nop 0")
        E.vmem(f"buffer_load_dwordx4 v{reg}, s[{S_TAB}:{S_TAB+3}], 0 offen lds", ("G", i))

    ngrp = (50 + wgrp - 1) // wgrp
    groups = [list(range(g * wgrp, min(50, (g + 1) * wgrp))) for g in range(ngrp)]
    nxt_w = NWB
    misc_at = 2
    tb = X + 0
    early_done = False
    for g, grp in enumerate(groups):
        E.wait_vm([("W", j) for j in grp])
        if g > 0: E.wait_ds([("Wtr", j) for j in groups[g-1]])
        e("s_barrier")
        if g == 0 and not probe: stamp()
        if g > 0:
            for _ in groups[g-1]:
                if nxt_w < 50:
                    w_dma(nxt_w); nxt_w += 1
        if g == misc_at and not misc_early: misc_loads()
        if nxt_w >= 50 and not early_done:
            early_done = True
            E.wait_vm(["idxS"])
            for n in range(gearly // 2):
                idx_read("S", n, tb + 2 * n, vT)
            E.wait_ds([("idx", "S", gearly // 2 - 1)])
            for i in range(gearly):
                assert aslot_wbufs(i) is None
                g_issue(i, tb + i)
            if not probe: stamp()
        for j in grp: w_tr(j)
    assert early_done
    E.wait_vm(["small"])
    for n in range(3):
        e(f"v_lshlrev_b32 v{vSm+1+n}, 16, v{vSm+1+n}")
    e("s_nop 0")
    for j in range(13):
        e(f"v_readlane_b32 s{sWW+j}, v{vSm+1}, {j}")
    e(f"v_readlane_b32 s{sBW}, v{vSm+2}, 0")
    e(f"v_readlane_b32 s{sB2}, v{vSm+3}, 0")
    e(f"v_lshrrev_b32 v{vT}, 5, v{vLane}")
    e(f"v_lshlrev_b32 v{vT}, 3, v{vT}")
    e(f"s_lshl_b32 s{sT0}, s{sW}, 6")
    e(f"v_add_u32 v{vT}, s{sT0}, v{vT}")
    e(f"v_add_u32 v{vT}, {B1}, v{vT}")
    a = vACC["K"]
    for q in range(4):
        E.dsop(f"ds_read_b64 v[{a+16+2*q}:{a+17+2*q}], v{vT} offset:{16*q}", "b1")
    E.drain_ds()
    for q in range(4):
        s0 = a + 16 + 2 * q
        e(f"v_lshlrev_b32 v{a+4*q}, 16, v{s0}")
        e(f"v_and_b32 v{a+4*q+1}, 0xffff0000, v{s0}")
        e(f"v_lshlrev_b32 v{a+4*q+2}, 16, v{s0+1}")
        e(f"v_and_b32 v{a+4*q+3}, 0xffff0000, v{s0+1}")
    for r in range(16):
        e(f"v_mov_b32 v{a+16+r}, v{a+r}")
    e("s_barrier")
    for n in range(gearly // 2, DG // 2):
        idx_read("S", n, tb + 2 * (n - gearly // 2), vT)
    E.drain_ds()
    for i in range(gearly, DG):
        g_issue(i, tb + (i - gearly))
    if not probe: stamp()
    pair_state = {"S": None, "K": None}
    nxt_pair = {"S": DG // 2, "K": 0}
    assert DG % 2 == 0 and gearly % 2 == 0

    def ensure_pair(sub, pair):
        if pair_state[sub] != pair and pair < 25:
            assert pair == nxt_pair[sub], (sub, pair, nxt_pair)
            idx_read(sub, pair, vI[sub], vT2)
            pair_state[sub] = pair
            nxt_pair[sub] = pair + 1
    def e_reads(i):
        buf = vEB + (i % 2) * 16
        slot = aslot(i)
        for s in range(2):
            for rb in range(2):
                d = buf + (s * 2 + rb) * 4
                E.dsop(f"ds_read_b128 v[{d}:{d+3}], v{vE1 if s else vE0} offset:{slot + rb*2048}", ("E", i))

    sig_step = lastS + 1 + sig_delay
    sig_step += sig_step & 1
    part_ok = max(last_use[j] for j in range(6)) + 1
    load_step = max(part_ok, 100 - poll_lead + 4, sig_step + 5)
    poll_step = load_step - 4
    w2_step = max(part_ok, 70)
    add_step = 98
    vW2 = 144
    vWide = 160
    assert last_use[6] < w2_step and last_use[7] < w2_step

    for t in range(-2, 100):
        if t % 2 == 0:
            need = [("G", i) for i in (t + 1, t + 2) if 0 <= i < 100]
            if t == sig_step: need.append("Pst")
            if t == -2: need.append("idxK")
            if need: E.wait_vm(need)
            e("s_barrier")
            if t == sig_step:
                if hdiag:
                    e(f"s_lshr_b32 s{sT1}, s2, 5")
                    e(f"s_lshl_b32 s{sT1}, s{sT1}, 2")
                    e(f"v_mov_b32 v{vT}, s{sT1}")
                    e(f"v_mov_b32 v{vFlag}, s79")
                else:
                    e(f"s_and_b32 s{sT1}, s2, 0xfc")
                    e(f"v_mov_b32 v{vT}, s{sT1}")
                    e(f"v_mov_b32 v{vFlag}, s{sFlagBit}")
                e(f"s_cmp_eq_u32 s{sW}, 0")
                e(f"s_cselect_b32 s{sT0}, 1, 0")
                e(f"s_mov_b32 exec_hi, 0")
                e(f"s_mov_b32 exec_lo, s{sT0}")
                E.vmem(f"buffer_atomic_add v{vFlag}, v{vT}, s[{S_DBG}:{S_DBG+3}], 0 offen", "sig")
                e("s_mov_b64 exec, -1")
                e("s_nop 3")
        mf = []
        if t >= 0:
            sub, j = items[t]
            buf = vEB + (t % 2) * 16
            a = vACC[sub]
            E.wait_ds([("E", t)])
            for s in range(2):
                for rb in range(2):
                    c = f"v[{a+rb*16}:{a+rb*16+15}]"
                    src = "0" if (sub == "S" and j == 0 and s == 0) else c
                    mf.append(f"v_mfma_f32_32x32x16_bf16 {c}, {wreg(j, s*4, 4)}, v[{buf+(s*2+rb)*4}:{buf+(s*2+rb)*4+3}], {src}")
        def mfma(n):
            if n < len(mf) and not nomfma: e(mf[n])
        mfma(0)
        if 0 <= t + 1 < 100: e_reads(t + 1)
        mfma(1)
        gi = t + DG
        if DG <= gi < 100 and t >= 0:
            sub2, j2 = items[gi]
            assert pair_state[sub2] == (j2 >> 1), (t, gi, sub2, j2, pair_state)
            E.wait_ds([("idx", sub2, j2 >> 1)])
            g_issue(gi, vI[sub2] + (j2 & 1))
            if j2 & 1: pair_state[sub2] = None
        mfma(2)
        mfma(3)
        for look in (t + 1 + DG, t + 2 + DG):
            if DG <= look < 100 and t >= -1:
                sub3, j3 = items[look]
                if pair_state[sub3] is None and (j3 & 1) == 0:
                    ensure_pair(sub3, j3 >> 1)
        if t == lastS:
            e("s_nop 15")
            a = vACC["S"]
            e(f"v_lshlrev_b32 v{vT}, 4, v{vLane}")
            if bfx:
                for r in range(16):
                    e(f"v_cvt_pk_bf16_f32 v{a+r}, v{a+2*r}, v{a+2*r+1}")
                for q in range(4):
                    E.vmem(f"buffer_store_dwordx4 v[{a+4*q}:{a+4*q+3}], v{vT}, s[{S_WS}:{S_WS+3}], s{sMyOff} offen offset:{q*1024} sc1", "Pst")
            else:
                e(f"s_add_u32 s{sT0}, s{sMyOff}, 4096")
                for q in range(8):
                    so = sMyOff if q < 4 else sT0
                    E.vmem(f"buffer_store_dwordx4 v[{a+4*q}:{a+4*q+3}], v{vT}, s[{S_WS}:{S_WS+3}], s{so} offen offset:{(q%4)*1024} sc1", "Pst")
            stamp()
            stamp(cyc=True)
        if t == w2_step:
            e(f"v_lshrrev_b32 v{vT}, 5, v{vLane}")
            e(f"v_lshlrev_b32 v{vT}, 3, v{vT}")
            e(f"s_lshl_b32 s{sT0}, s{sW}, 6")
            e(f"v_add_u32 v{vT}, s{sT0}, v{vT}")
            e(f"v_add_u32 v{vT}, {W2}, v{vT}")
            for q in range(4):
                E.dsop(f"ds_read_b64 v[{112+2*q}:{112+2*q+1}], v{vT} offset:{16*q}", "w2")
            e(f"v_mul_u32_u24 v{vT}, 26, v{vLane}")
            e(f"v_add_u32 v{vT}, {XW}, v{vT}")
            for j in range(13):
                E.dsop(f"ds_read_u16 v{120+j}, v{vT} offset:{2*j}", "xw")
        if t == w2_step + 1:
            E.wait_ds(["xw"])
            for q in range(4):
                s0 = 112 + 2 * q
                e(f"v_lshlrev_b32 v{vW2+4*q}, 16, v{s0}")
                e(f"v_and_b32 v{vW2+4*q+1}, 0xffff0000, v{s0}")
                e(f"v_lshlrev_b32 v{vW2+4*q+2}, 16, v{s0+1}")
                e(f"v_and_b32 v{vW2+4*q+3}, 0xffff0000, v{s0+1}")
            e(f"v_mov_b32 v{vWide}, s{sBW}")
            for j in range(13):
                e(f"v_lshlrev_b32 v{120+j}, 16, v{120+j}")
                e(f"v_fmac_f32 v{vWide}, s{sWW+j}, v{120+j}")
            e(f"v_add_f32 v{vWide}, s{sB2}, v{vWide}")
        if t == poll_step:
            E.vmem(f"buffer_load_dword v{vFlag}, v{vFlagOff}, s[{S_DBG}:{S_DBG+3}], 0 offen sc1", "poll")
        if t == load_step:
            E.wait_vm(["poll"])
            e(f"v_readfirstlane_b32 s{sT0}, v{vFlag}")
            e("s_nop 1")
            e(f"s_and_b32 s{sT0}, s{sT0}, s{sFlagBit}")
            e("s_cbranch_scc0 L_spin")
            e("L_spin_done:")
            e(f"v_lshlrev_b32 v{vT}, 4, v{vLane}")
            if bfx:
                for q in range(4):
                    E.vmem(f"buffer_load_dwordx4 v[{164+4*q}:{164+4*q+3}], v{vT}, s[{S_WS}:{S_WS+3}], s{sPartOff} offen offset:{q*1024} sc1", "Pld")
            else:
                e(f"s_add_u32 s{sT0}, s{sPartOff}, 4096")
                for q in range(8):
                    so = sPartOff if q < 4 else sT0
                    E.vmem(f"buffer_load_dwordx4 v[{112+4*q}:{112+4*q+3}], v{vT}, s[{S_WS}:{S_WS+3}], s{so} offen offset:{(q%4)*1024} sc1", "Pld")
        if bfx and t == unp_at:
            E.wait_vm(["Pld"])
            for r in range(16):
                e(f"v_lshlrev_b32 v{112+2*r}, 16, v{164+r}")
                e(f"v_and_b32 v{113+2*r}, 0xffff0000, v{164+r}")
    assert w2_step + 1 < load_step < unp_at and max(last_use[j] for j in range(9)) < load_step
    stamp()
    stamp(cyc=True)
    e(f"v_lshrrev_b32 v{vT}, 5, v{vLane}")
    e(f"v_lshlrev_b32 v{vT}, 8, v{vT}")
    e(f"v_and_b32 v{vT2}, 31, v{vLane}")
    e(f"v_lshl_add_u32 v{vT}, v{vT2}, 2, v{vT}")
    e(f"s_lshl_b32 s{sT0}, s{sW}, 9")
    e(f"v_add_u32 v{vT}, s{sT0}, v{vT}")
    a = vACC["K"]
    R = vEB
    for rb in range(2):
        e(f"v_mov_b32 v{R+rb}, 0")
        e(f"v_mov_b32 v{R+2+rb}, 0")
    E.wait_vm(["Pld"])
    e("s_nop 7")
    for rb in range(2):
        for r in range(16):
            x = a + rb * 16 + r
            e(f"v_add_f32 v{x}, v{x}, v{112+rb*16+r}")
        for r in range(16):
            x = a + rb * 16 + r
            e(f"v_max_f32 v{x}, 0, v{x}")
        for r in range(16):
            x = a + rb * 16 + r
            e(f"v_fmac_f32 v{R+rb+2*(r&1)}, v{x}, v{vW2+r}")
        e(f"v_add_f32 v{R+rb}, v{R+rb}, v{R+rb+2}")
        E.dsop(f"ds_write_b32 v{vT}, v{R+rb} offset:{RED+128*rb}", "red")
    E.drain_ds()
    e("s_barrier")
    e(f"s_cmp_lg_u32 s{sW}, 0")
    e("s_cbranch_scc1 L_end")
    e(f"v_lshlrev_b32 v{vT}, 2, v{vLane}")
    Y = vEB + 12
    for kk in range(8):
        e(f"ds_read_b32 v{Y+kk}, v{vT} offset:{RED + kk*256}")
    e(f"s_lshl_b32 s{sT0}, s{sKeepRow}, 1")
    e(f"v_lshlrev_b32 v{vT}, 1, v{vLane}")
    e("s_waitcnt lgkmcnt(0)")
    e(f"v_add_f32 v{Y}, v{Y}, v{Y+1}")
    e(f"v_add_f32 v{Y+2}, v{Y+2}, v{Y+3}")
    e(f"v_add_f32 v{Y+4}, v{Y+4}, v{Y+5}")
    e(f"v_add_f32 v{Y+6}, v{Y+6}, v{Y+7}")
    e(f"v_add_f32 v{Y}, v{Y}, v{Y+2}")
    e(f"v_add_f32 v{Y+4}, v{Y+4}, v{Y+6}")
    e(f"v_add_f32 v{Y}, v{Y}, v{vWide}")
    e(f"v_add_f32 v{Y}, v{Y}, v{Y+4}")
    e(f"v_mul_f32 v{Y}, 0xbfb8aa3b, v{Y}")
    e(f"v_exp_f32 v{Y}, v{Y}")
    e("s_nop 0")
    e(f"v_add_f32 v{Y}, 1.0, v{Y}")
    e(f"v_rcp_f32 v{Y}, v{Y}")
    e("s_nop 0")
    e(f"v_cvt_pk_bf16_f32 v{Y}, v{Y}, v{Y}")
    e(f"buffer_store_short v{Y}, v{vT}, s[{S_OUT}:{S_OUT+3}], s{sT0} offen")
    if diag and hdiag:
        e(f"s_memrealtime s[{sTS+2}:{sTS+3}]")
        e("s_waitcnt lgkmcnt(0)")
        e(f"s_not_b32 s{sT0}, s{sTS}")
        e(f"v_writelane_b32 v0, s{sT0}, 0")
        e(f"v_writelane_b32 v0, s{sTS+2}, 1")
        e(f"v_mov_b32 v{vT}, 0x100")
        for lane, slot in ((0, 8), (1, 9), (4, 10), (6, 11), (8, 12), (10, 13), (12, 14), (16, 15)):
            e(f"s_mov_b32 s{sT0}, {4*slot}")
            e(f"v_writelane_b32 v{vT}, s{sT0}, {lane}")
        e(f"buffer_atomic_umax v0, v{vT}, s[{S_DBG}:{S_DBG+3}], 0 offen")
    elif diag:
        e(f"s_memrealtime s[{sTS+2}:{sTS+3}]")
        e("s_waitcnt lgkmcnt(0)")
        for n, r in enumerate((sTS, sTS+1, sTS+2, sTS+3)):
            e(f"v_writelane_b32 v0, s{r}, {n}")
        e(f"v_writelane_b32 v0, s{sTS}, 63")
        e(f"s_add_u32 s{S_SM}, s58, {16<<20}")
        e(f"s_addc_u32 s{S_SM+1}, s59, 0")
        e(f"s_and_b32 s{S_SM+1}, s{S_SM+1}, 0xffff")
        e(f"s_mov_b32 s{S_SM+2}, 65536")
        e(f"s_mov_b32 s{S_SM+3}, 0x20000")
        e(f"s_lshl_b32 s{sT0}, s2, 8")
        e(f"v_lshlrev_b32 v{vT}, 2, v{vLane}")
        e(f"buffer_store_dword v0, v{vT}, s[{S_SM}:{S_SM+3}], s{sT0} offen")
    e("s_endpgm")
    e("L_spin:")
    e(f"s_mov_b32 s{sSpin}, {1<<17}")
    e("L_spin_loop:")
    e(f"buffer_load_dword v{vFlag}, v{vFlagOff}, s[{S_DBG}:{S_DBG+3}], 0 offen sc1")
    e("s_waitcnt vmcnt(0)")
    e(f"v_readfirstlane_b32 s{sT0}, v{vFlag}")
    e("s_nop 1")
    e(f"s_and_b32 s{sT0}, s{sT0}, s{sFlagBit}")
    e("s_cbranch_scc1 L_spin_done" if not spindbg else "s_cbranch_scc1 L_spin_rep")
    e(f"s_sub_u32 s{sSpin}, s{sSpin}, 1")
    e(f"s_cmp_lg_u32 s{sSpin}, 0")
    e("s_cbranch_scc1 L_spin_loop")
    e("s_branch L_spin_done")
    if spindbg:
        e("L_spin_rep:")
        e(f"s_sub_u32 s{sT0}, {1<<17}, s{sSpin}")
        e(f"s_min_u32 s{sT0}, s{sT0}, 7")
        e(f"s_lshl_b32 s{sT0}, s{sT0}, 4")
        e(f"s_cmp_eq_u32 s{sW}, 0")
        e(f"s_cselect_b32 s{sT0}, s{sT0}, 0")
        e(f"s_add_u32 s{sT0}, s{sT0}, 2")
        e(f"s_and_b32 s{sT1}, s2, 3")
        e(f"s_lshl_b32 s{sT1}, s{sT1}, 3")
        e(f"s_lshl_b32 s{sT0}, s{sT0}, s{sT1}")
        e(f"v_mov_b32 v{vFlag}, s{sT0}")
        e(f"s_and_b32 s{sT1}, s2, 0xfc")
        e(f"v_mov_b32 v{vT}, s{sT1}")
        e("s_mov_b64 exec, 1")
        e(f"buffer_atomic_add v{vFlag}, v{vT}, s[{S_DBG}:{S_DBG+3}], 0 offen")
        e("s_mov_b64 exec, -1")
        e("s_waitcnt vmcnt(0)")
        e("s_branch L_spin_done")
    e("L_end:")
    e("s_endpgm")
    body = "\n".join(E.L)
    out = HEADER
    out += "; Override launch geometry by editing the next line (default: block=256,\n"
    out += f"; @launch grid=(256,1,1) block=(256,1,1) lds={LDS_TOTAL}\n"
    out += f""".amdgcn_target "amdgcn-amd-amdhsa--gfx950"
.text
.globl {NAME}_kernel
.p2align 8
.type {NAME}_kernel,@function
{NAME}_kernel:
{body}
.section .rodata,"a"
.p2align 6
.amdhsa_kernel {NAME}_kernel
  .amdhsa_next_free_vgpr 512
  .amdhsa_next_free_sgpr 102
  .amdhsa_accum_offset 256
  .amdhsa_group_segment_fixed_size 0
  .amdhsa_kernarg_size 96
  .amdhsa_user_sgpr_count 2
  .amdhsa_user_sgpr_kernarg_segment_ptr 1
  .amdhsa_system_sgpr_workgroup_id_x 1
  .amdhsa_float_denorm_mode_32 3
.end_amdhsa_kernel
"""
    if diag:
        out = out.replace("; @launch", f"; STAMPS nst={stamp_next[0]}\n; @launch", 1)
    return out

if __name__ == "__main__":
    kw = {}
    path = None
    for a in sys.argv[1:]:
        if a.endswith(".s"): path = a
        elif a == "diag": kw["diag"] = True
        elif "=" in a:
            n, v = a.split("="); kw[n] = int(v) if v.lstrip("-").isdigit() else v
    s = gen(**kw)
    open(path or "cdna_kernels/" + NAME + ".s", "w").write(s)
```

```python
import sys
from gen_s2 import Em, NAME, HEADER


def gen(diag=False, steps=0, NWB=12, NA=12, tlbwarm=True, poll_lead=10, sig_delay=8, nomfma=0, gearly=8, order="SK", wgrp=2, probe=0, hdiag=0, spindbg=0, halftab=0, pf=0, bfx=1, unp_at=97, spread=2, st0=0, pub_at=6, tag_at=30):
    E = Em(); e = E.e
    DG = NA - 2
    NAD = 8
    WST = 0
    ADED = WST + NWB * 8192
    RING0 = ADED + NAD * 4096 - NA * 4096
    IDX = ADED + NAD * 4096
    XW = IDX + 26624
    B1 = XW + 2048
    W2 = B1 + 1024
    LDS_TOTAL = W2 + 1024
    RED = WST
    assert LDS_TOTAL <= 163840, LDS_TOTAL
    assert NA * 4096 <= 65536 and RING0 >= 0
    def aslot(i):
        r = i % NA
        return (NA - NAD) * 4096 + r * 4096 if r < NAD else (r - NAD) * 4096
    def aslot_wbufs(i):
        a = RING0 + aslot(i)
        return None if a >= ADED else (a - WST) // 8192
    S_IDX, S_TAB, S_W1, S_MISC, S_OUT, S_SM, S_WS, S_DBG = 8, 12, 16, 20, 24, 28, 32, 60
    sW, sKh, sColS, sColK, sColW, sW2048, sW1024, sT0, sT1, sWbase, sFoff = 64, 65, 66, 67, 68, 69, 70, 71, 72, 73, 74
    sKeepRow, sPartOff, sMyOff, sFlagBit = 75, 76, 77, 78
    sWW, sBW, sB2 = 80, 93, 94
    sSpin = 95
    sTS = 96
    stamp_next = [2]
    def stamp(cyc=False):
        if diag:
            n = stamp_next[0]; stamp_next[0] += 1
            e(f"s_memtime s[6:7]" if cyc else "s_memrealtime s[6:7]")
            E.drain_ds()
            e(f"v_writelane_b32 v0, s6, {2*n}")
            e(f"v_writelane_b32 v0, s7, {2*n+1}")
    vLane, vPiece, vWoff, vIdxB, vE0, vE1, vWtr = 1, 2, 3, 4, 5, 6, 7
    vI = {"S": 8, "K": 10}
    vT, vT2, vFlagOff, vFlag = 12, 13, 14, 15
    vEB = 16
    vACC = {"S": 48, "K": 80}
    def wreg(slot, lo, n):
        if slot < 18:
            b = 112 + slot * 8 + lo
            return f"v[{b}:{b+n-1}]"
        b = (slot - 18) * 8 + lo
        return f"a[{b}:{b+n-1}]"

    items = [("S", j) for j in range(50)] + [("K", j) for j in range(50)]
    last_use = {}
    for t, (sub, j) in enumerate(items): last_use[j] = t
    lastS = 49

    e("s_cmp_ge_u32 s2, 256")
    e("s_cbranch_scc1 L_end")
    if diag: e(f"s_memrealtime s[{sTS}:{sTS+1}]")
    e("s_load_dwordx16 s[36:51], s[0:1], 0")
    e("s_load_dwordx4 s[52:55], s[0:1], 64")
    e("s_load_dwordx4 s[56:59], s[0:1], 80")
    e(f"v_and_b32 v{vLane}, 63, v0")
    e(f"v_lshrrev_b32 v{vT}, 6, v0")
    e("s_nop 0")
    e(f"v_readfirstlane_b32 s{sW}, v{vT}")
    if diag: e("v_mov_b32 v0, 0")
    X = vEB
    vQ = X + 20
    for i in range(4):
        e(f"v_add_u32 v{X}, {64*i}, v{vLane}")
        e(f"v_mul_u32_u24 v{X+1}, 5042, v{X}")
        e(f"v_lshrrev_b32 v{X+1}, 16, v{X+1}")
        e(f"v_mul_u32_u24 v{X+2}, 13, v{X+1}")
        e(f"v_sub_u32 v{X+2}, v{X}, v{X+2}")
        e(f"v_mul_u32_u24 v{X+1}, 400, v{X+1}")
        e(f"v_lshl_add_u32 v{vQ+i}, v{X+2}, 4, v{X+1}")
        if i: e(f"v_subrev_u32 v{vQ+i}, {1024*i}, v{vQ+i}")
    e(f"s_lshr_b32 s{sKh}, s2, 3")
    e(f"s_and_b32 s{sKh}, s{sKh}, 1")
    e(f"s_lshr_b32 s{sT0}, s2, 4")
    e(f"s_lshl_b32 s{sT1}, s{sT0}, 3")
    e(f"s_and_b32 s{sKeepRow}, s2, 7")
    e(f"s_add_u32 s{sT1}, s{sT1}, s{sKeepRow}")
    e(f"s_lshl_b32 s{sT1}, s{sT1}, 7")
    e(f"s_lshl_b32 s{sKeepRow}, s{sKh}, 6")
    e(f"s_add_u32 s{sKeepRow}, s{sKeepRow}, s{sT1}")
    e(f"s_mul_i32 s{sT0}, s{sT0}, 25")
    e(f"s_lshr_b32 s{sT0}, s{sT0}, 4")
    e(f"s_lshl_b32 s{sColS}, s{sT0}, 3")
    e(f"s_mov_b32 s{sColK}, s{sColS}")
    e(f"s_lshl_b32 s{sColW}, s{sT0}, 14")
    e(f"s_lshl_b32 s{sW2048}, s{sW}, 11")
    e(f"s_lshl_b32 s{sW1024}, s{sW}, 10")
    e(f"s_mul_i32 s{sWbase}, s{sKh}, {50*8192}")
    e(f"s_add_u32 s{sWbase}, s{sWbase}, s{sW2048}")
    e(f"s_xor_b32 s{sT0}, s{sKeepRow}, 64")
    e(f"s_lshl_b32 s{sT1}, s{sW}, 4")
    e(f"s_add_u32 s{sT0}, s{sT0}, s{sT1}")
    e(f"s_mul_i32 s{sT0}, s{sT0}, 400")
    e(f"s_mul_i32 s{sFoff}, s{sKh}, 192")
    e(f"s_add_u32 s{sT0}, s{sT0}, s{sFoff}")
    e(f"s_mul_i32 s{sT1}, s{sW}, 3328")
    E.drain_ds()
    def srd(d, p, size):
        e(f"s_mov_b32 s{d}, s{p}")
        e(f"s_and_b32 s{d+1}, s{p+1}, 0xffff")
        e(f"s_mov_b32 s{d+2}, {size}")
        e(f"s_mov_b32 s{d+3}, 0x20000")
    srd(S_IDX, 36, 16384*400)
    def idx_dma(ldsbase, tag):
        e(f"s_add_u32 m0, s{sT1}, {ldsbase}")
        e("s_nop 0")
        for i in range(3):
            E.vmem(f"buffer_load_dwordx4 v{vQ+i}, s[{S_IDX}:{S_IDX+3}], s{sT0} offen offset:{i*1024} lds", tag)
        e("s_mov_b64 exec, 0xffff")
        E.vmem(f"buffer_load_dwordx4 v{vQ+3}, s[{S_IDX}:{S_IDX+3}], s{sT0} offen offset:3072 lds", tag)
        e("s_mov_b64 exec, -1")
    if probe: stamp()
    idx_dma(IDX, "idxS")
    if probe:
        E.drain_vm(); stamp()
    e(f"s_lshl_b32 s{sFoff}, s{sKh}, 1")
    e(f"s_sub_u32 s{sFoff}, s{sFoff}, 1")
    e(f"s_mul_i32 s{sFoff}, s{sFoff}, {64*400}")
    e(f"s_add_u32 s{sT0}, s{sT0}, s{sFoff}")
    idx_dma(IDX + 13312, "idxK")
    if probe:
        E.drain_vm(); stamp()
    srd(S_W1, 46, 3200*256)
    e(f"v_bfe_u32 v{X+1}, v{vLane}, 4, 2")
    e(f"v_and_b32 v{X}, 15, v{vLane}")
    e(f"v_lshlrev_b32 v{X+2}, 2, v{X+1}")
    e(f"v_xor_b32 v{X}, v{X}, v{X+2}")
    e(f"v_lshlrev_b32 v{X}, 4, v{X}")
    e(f"v_lshl_add_u32 v{vWoff}, v{X+1}, 8, v{X}")
    def w_dma(slot):
        buf = WST + (slot % NWB) * 8192
        e(f"s_add_u32 m0, s{sW2048}, {buf}")
        e(f"s_add_u32 s{sFoff}, s{sColW}, s{sWbase}")
        for q in range(2):
            E.vmem(f"buffer_load_dwordx4 v{vWoff}, s[{S_W1}:{S_W1+3}], s{sFoff} offen offset:{q*1024} lds", ("W", slot))
        e(f"s_add_u32 s{sColW}, s{sColW}, 8192")
        e(f"s_cmp_ge_u32 s{sColW}, {50*8192}")
        e(f"s_cselect_b32 s{sColW}, 0, s{sColW}")
    srd(S_TAB, 38, (50000 if halftab else 100000)*64)
    if tlbwarm:
        e("s_load_dword s4, s[38:39], 0")
        for a in (0x200000, 0x400000, 0x600000):
            e(f"s_mov_b32 s5, {a}")
            e("s_load_dword s4, s[38:39], s5")
    if pf:
        e(f"s_lshr_b32 s{sT0}, s2, 3")
        e(f"s_mul_i32 s{sT0}, s{sT0}, 102400")
        e(f"s_mul_i32 s{sFoff}, s{sW}, 25600")
        e(f"s_add_u32 s{sT0}, s{sT0}, s{sFoff}")
        e(f"v_lshlrev_b32 v{vT}, 4, v{vLane}")
        e(f"s_add_u32 m0, s{sW1024}, {ADED}")
        for q in range(25):
            E.vmem(f"buffer_load_dwordx4 v{vT}, s[{S_TAB}:{S_TAB+3}], s{sT0} offen lds", "pf")
            e(f"s_add_u32 s{sT0}, s{sT0}, 1024")
    for j in range(NWB):
        w_dma(j)
        if probe and j == 1:
            E.drain_vm(); stamp()
    if not probe: stamp()
    e(f"v_and_b32 v{X}, 3, v{vLane}")
    e(f"v_bfe_u32 v{X+1}, v{vLane}, 4, 2")
    e(f"v_xor_b32 v{X}, v{X}, v{X+1}")
    e(f"v_lshlrev_b32 v{vPiece}, 4, v{X}")
    e(f"v_lshrrev_b32 v{X}, 2, v{vLane}")
    e(f"v_mul_u32_u24 v{vIdxB}, 208, v{X}")
    e(f"s_lshl_b32 s{sT0}, s{sKh}, 3")
    e(f"s_add_u32 s{sT0}, s{sT0}, s{sT1}")
    e(f"s_add_u32 s{sT0}, s{sT0}, {IDX}")
    e(f"v_add_u32 v{vIdxB}, s{sT0}, v{vIdxB}")
    e(f"v_and_b32 v{X}, 31, v{vLane}")
    e(f"v_lshlrev_b32 v{X}, 6, v{X}")
    e(f"v_add_u32 v{X}, {RING0}, v{X}")
    e(f"v_lshrrev_b32 v{X+1}, 5, v{vLane}")
    e(f"v_bfe_u32 v{X+2}, v{vLane}, 2, 2")
    e(f"v_xor_b32 v{X+3}, v{X+1}, v{X+2}")
    e(f"v_lshl_add_u32 v{vE0}, v{X+3}, 4, v{X}")
    e(f"v_xor_b32 v{X+3}, 2, v{X+3}")
    e(f"v_lshl_add_u32 v{vE1}, v{X+3}, 4, v{X}")
    e(f"v_lshl_add_u32 v{X+3}, v{X+1}, 3, v{X+2}")
    e(f"v_lshlrev_b32 v{X+3}, 8, v{X+3}")
    e(f"v_bfe_u32 v{X+4}, v{vLane}, 4, 1")
    e(f"v_lshlrev_b32 v{X+4}, 1, v{X+4}")
    e(f"v_bfe_u32 v{X+5}, v{vLane}, 1, 1")
    e(f"v_add_u32 v{X+4}, v{X+4}, v{X+5}")
    e(f"s_lshl_b32 s{sT0}, s{sW}, 2")
    e(f"v_add_u32 v{X+4}, s{sT0}, v{X+4}")
    e(f"v_lshlrev_b32 v{X+2}, 2, v{X+2}")
    e(f"v_xor_b32 v{X+4}, v{X+4}, v{X+2}")
    e(f"v_and_b32 v{X+5}, 1, v{vLane}")
    e(f"v_lshlrev_b32 v{X+5}, 3, v{X+5}")
    e(f"v_add_u32 v{X+3}, v{X+3}, v{X+5}")
    e(f"v_lshl_add_u32 v{vWtr}, v{X+4}, 4, v{X+3}")
    e(f"v_add_u32 v{vT2}, 65536, v{vWtr}")
    vWtrH = vT2
    e(f"s_lshl_b32 s{sMyOff}, s2, {14 if bfx else 15}")
    e(f"s_xor_b32 s{sT0}, s2, 8")
    e(f"s_lshl_b32 s{sPartOff}, s{sT0}, {14 if bfx else 15}")
    if hdiag:
        e(f"s_lshr_b32 s{sT0}, s{sT0}, 5")
        e(f"s_lshl_b32 s{sT0}, s{sT0}, 2")
    else:
        e(f"s_and_b32 s{sT0}, s{sT0}, 0xfc")
    e(f"v_mov_b32 v{vFlagOff}, s{sT0}")
    e(f"s_lshl_b32 s{sT0}, s{sW}, {12 if bfx else 13}")
    e(f"s_add_u32 s{sMyOff}, s{sMyOff}, s{sT0}")
    e(f"s_add_u32 s{sPartOff}, s{sPartOff}, s{sT0}")
    if hdiag:
        e(f"s_xor_b32 s{sT0}, s2, 8")
        e(f"s_and_b32 s{sT0}, s{sT0}, 31")
        e(f"s_lshl_b32 s{sFlagBit}, 1, s{sT0}")
        e(f"s_and_b32 s{sT0}, s2, 31")
        e(f"s_lshl_b32 s79, 1, s{sT0}")
    else:
        e(f"s_and_b32 s{sT0}, s2, 3")
        e(f"s_lshl_b32 s{sFlagBit}, s{sT0}, 3")
    srd(S_OUT, 54, 16384*2)
    srd(S_DBG, 56, 256)
    assert bfx and not hdiag and not spindbg
    FLAGS = 256 * 16384
    srd(S_WS, 58, FLAGS + 256 * 128)
    sTag, sNext = 100, 79
    e(f"s_lshl_b32 s{sT0}, s2, 7")
    e(f"s_add_u32 s{sT0}, s{sT0}, {FLAGS}")
    e(f"v_mov_b32 v{vT}, 0")
    E.vmem(f"buffer_load_dword v{vFlag}, v{vT}, s[{S_WS}:{S_WS+3}], s{sT0} offen sc1", "fold")

    def w_tr(slot):
        buf = WST + (slot % NWB) * 8192
        base = vWtr if buf < 65536 else vWtrH
        off = buf if buf < 65536 else buf - 65536
        for s in range(2):
            for t in range(2):
                E.dsop(f"ds_read_b64_tr_b16 {wreg(slot, s*4 + t*2, 2)}, {'v%d' % base} offset:{off + s*4096 + t*1024}", ("Wtr", slot))
    def misc_loads():
        e(f"v_lshlrev_b32 v{vT}, 4, v{vLane}")
        e(f"s_cmp_lt_u32 s{sW}, 2")
        e(f"s_cselect_b32 s{S_MISC}, s40, s48")
        e(f"s_cselect_b32 s{S_MISC+1}, s41, s49")
        e(f"s_mov_b32 s{S_MISC+2}, 256")
        e(f"s_cselect_b32 s{S_MISC+2}, {16384*26}, s{S_MISC+2}")
        e(f"s_cmp_eq_u32 s{sW}, 3")
        e(f"s_cselect_b32 s{S_MISC}, s50, s{S_MISC}")
        e(f"s_cselect_b32 s{S_MISC+1}, s51, s{S_MISC+1}")
        e(f"s_and_b32 s{S_MISC+1}, s{S_MISC+1}, 0xffff")
        e(f"s_mov_b32 s{S_MISC+3}, 0x20000")
        e(f"s_mul_i32 s{sT0}, s{sKeepRow}, 26")
        e(f"s_add_u32 s{sT0}, s{sT0}, s{sW1024}")
        e(f"s_cmp_lt_u32 s{sW}, 2")
        e(f"s_cselect_b32 s{sT0}, s{sT0}, 0")
        e(f"s_add_u32 m0, s{sW1024}, {XW}")
        e("s_nop 0")
        E.vmem(f"buffer_load_dwordx4 v{vT}, s[{S_MISC}:{S_MISC+3}], s{sT0} offen lds", "misc")
        e(f"v_lshlrev_b32 v{vSm}, 1, v{vLane}")
        for n, (p, size) in enumerate(((42, 26), (44, 2), (52, 2))):
            srd(S_SM, p, size)
            E.vmem(f"buffer_load_ushort v{vSm+1+n}, v{vSm}, s[{S_SM}:{S_SM+3}], 0 offen", "small")
            e("s_nop 0")
    vSm = X + 24

    colreg = {"S": sColS, "K": sColK}
    def idx_read(sub, pair, dst, tmp):
        e(f"v_add_u32 v{tmp}, s{colreg[sub]}, v{vIdxB}")
        E.dsop(f"ds_read_b64 v[{dst}:{dst+1}], v{tmp} offset:{13312 if sub == 'K' else 0}", ("idx", sub, pair))
        c = colreg[sub]
        e(f"s_add_u32 s{c}, s{c}, 8")
        e(f"s_cmp_ge_u32 s{c}, 200")
        e(f"s_cselect_b32 s{c}, 0, s{c}")
    def g_issue(i, reg):
        slot = RING0 + aslot(i)
        e(f"v_lshl_add_u32 v{reg}, v{reg}, 6, v{vPiece}")
        e(f"s_add_u32 m0, s{sW1024}, {slot}")
        e("s_nop 0")
        E.vmem(f"buffer_load_dwordx4 v{reg}, s[{S_TAB}:{S_TAB+3}], 0 offen lds", ("G", i))

    ngrp = (50 + wgrp - 1) // wgrp
    groups = [list(range(g * wgrp, min(50, (g + 1) * wgrp))) for g in range(ngrp)]
    nxt_w = NWB
    misc_at = 2
    tb = X + 0
    early_done = False
    for g, grp in enumerate(groups):
        E.wait_vm([("W", j) for j in grp])
        if g > 0: E.wait_ds([("Wtr", j) for j in groups[g-1]])
        e("s_barrier")
        if g == 0 and not probe: stamp()
        if g > 0:
            for _ in groups[g-1]:
                if nxt_w < 50:
                    w_dma(nxt_w); nxt_w += 1
        if g == misc_at: misc_loads()
        if g == pub_at:
            E.wait_vm(["fold"])
            e(f"v_readfirstlane_b32 s{sNext}, v{vFlag}")
            e("s_nop 1")
            e(f"s_add_u32 s{sNext}, s{sNext}, 1")
            e(f"s_and_b32 s{sT0}, s{sNext}, 0x7f")
            e(f"s_or_b32 s{sT0}, s{sT0}, 0x80")
            e(f"s_and_b32 s{sFoff}, s2, 3")
            e(f"s_lshl_b32 s{sFoff}, s{sFoff}, 3")
            e(f"s_lshl_b32 s{sT0}, s{sT0}, s{sFoff}")
            e(f"v_mov_b32 v{vFlag}, s{sT0}")
            e(f"s_and_b32 s{sFoff}, s2, 0xfc")
            e(f"v_mov_b32 v{vT}, s{sFoff}")
            e(f"s_cmp_eq_u32 s{sW}, 0")
            e(f"s_cselect_b32 s{sT0}, 1, 0")
            e(f"s_mov_b32 exec_hi, 0")
            e(f"s_mov_b32 exec_lo, s{sT0}")
            E.vmem(f"buffer_atomic_add v{vFlag}, v{vT}, s[{S_DBG}:{S_DBG+3}], 0 offen", "pub")
            e("s_mov_b64 exec, -1")
        if nxt_w >= 50 and not early_done:
            early_done = True
            E.wait_vm(["idxS"])
            for n in range(gearly // 2):
                idx_read("S", n, tb + 2 * n, vT)
            E.wait_ds([("idx", "S", gearly // 2 - 1)])
            for i in range(gearly):
                assert aslot_wbufs(i) is None
                g_issue(i, tb + i)
            if not probe: stamp()
        for j in grp: w_tr(j)
    assert early_done
    E.wait_vm(["small"])
    for n in range(3):
        e(f"v_lshlrev_b32 v{vSm+1+n}, 16, v{vSm+1+n}")
    e("s_nop 0")
    for j in range(13):
        e(f"v_readlane_b32 s{sWW+j}, v{vSm+1}, {j}")
    e(f"v_readlane_b32 s{sBW}, v{vSm+2}, 0")
    e(f"v_readlane_b32 s{sB2}, v{vSm+3}, 0")
    e(f"v_lshrrev_b32 v{vT}, 5, v{vLane}")
    e(f"v_lshlrev_b32 v{vT}, 3, v{vT}")
    e(f"s_lshl_b32 s{sT0}, s{sW}, 6")
    e(f"v_add_u32 v{vT}, s{sT0}, v{vT}")
    e(f"v_add_u32 v{vT}, {B1}, v{vT}")
    a = vACC["K"]
    for q in range(4):
        E.dsop(f"ds_read_b64 v[{a+16+2*q}:{a+17+2*q}], v{vT} offset:{16*q}", "b1")
    E.drain_ds()
    for q in range(4):
        s0 = a + 16 + 2 * q
        e(f"v_lshlrev_b32 v{a+4*q}, 16, v{s0}")
        e(f"v_and_b32 v{a+4*q+1}, 0xffff0000, v{s0}")
        e(f"v_lshlrev_b32 v{a+4*q+2}, 16, v{s0+1}")
        e(f"v_and_b32 v{a+4*q+3}, 0xffff0000, v{s0+1}")
    for r in range(16):
        e(f"v_mov_b32 v{a+16+r}, v{a+r}")
    e("s_barrier")
    for n in range(gearly // 2, DG // 2):
        idx_read("S", n, tb + 2 * (n - gearly // 2), vT)
    E.drain_ds()
    for i in range(gearly, DG):
        g_issue(i, tb + (i - gearly))
    if not probe: stamp()
    pair_state = {"S": None, "K": None}
    nxt_pair = {"S": DG // 2, "K": 0}
    assert DG % 2 == 0 and gearly % 2 == 0

    def ensure_pair(sub, pair):
        if pair_state[sub] != pair and pair < 25:
            assert pair == nxt_pair[sub], (sub, pair, nxt_pair)
            idx_read(sub, pair, vI[sub], vT2)
            pair_state[sub] = pair
            nxt_pair[sub] = pair + 1
    def e_reads(i):
        buf = vEB + (i % 2) * 16
        slot = aslot(i)
        for s in range(2):
            for rb in range(2):
                d = buf + (s * 2 + rb) * 4
                E.dsop(f"ds_read_b128 v[{d}:{d+3}], v{vE1 if s else vE0} offset:{slot + rb*2048}", ("E", i))

    sig_step = lastS + 1 + sig_delay + (st0 + 3 * spread if spread else 0)
    sig_step += sig_step & 1
    part_ok = max(last_use[j] for j in range(6)) + 1
    load_step = max(part_ok, 100 - poll_lead + 4, sig_step + 5)
    poll_step = load_step - 4
    w2_step = max(part_ok, 70)
    add_step = 98
    vW2 = 144
    vWide = 160
    assert last_use[6] < w2_step and last_use[7] < w2_step

    for t in range(-2, 100):
        if t % 2 == 0:
            need = [("G", i) for i in (t + 1, t + 2) if 0 <= i < 100]
            if t == sig_step: need.append("Pst")
            if t == -2: need.append("idxK")
            if need: E.wait_vm(need)
            e("s_barrier")
            if t == sig_step:
                e(f"s_lshl_b32 s{sT1}, s2, 7")
                e(f"s_add_u32 s{sT1}, s{sT1}, {FLAGS}")
                e(f"v_mov_b32 v{vT}, 0")
                e(f"v_mov_b32 v{vFlag}, s{sNext}")
                e(f"s_cmp_eq_u32 s{sW}, 0")
                e(f"s_cselect_b32 s{sT0}, 1, 0")
                e(f"s_mov_b32 exec_hi, 0")
                e(f"s_mov_b32 exec_lo, s{sT0}")
                E.vmem(f"buffer_store_dword v{vFlag}, v{vT}, s[{S_WS}:{S_WS+3}], s{sT1} offen sc1", "sig")
                e("s_mov_b64 exec, -1")
                e("s_nop 3")
        if steps and t in (0, 10, 20, 30, 40, 46, 50, 52, 54, 56, 58, 60, 64, 70, 80, 90, 94, 96): stamp()
        mf = []
        if t >= 0:
            sub, j = items[t]
            buf = vEB + (t % 2) * 16
            a = vACC[sub]
            E.wait_ds([("E", t)])
            for s in range(2):
                for rb in range(2):
                    c = f"v[{a+rb*16}:{a+rb*16+15}]"
                    src = "0" if (sub == "S" and j == 0 and s == 0) else c
                    mf.append(f"v_mfma_f32_32x32x16_bf16 {c}, {wreg(j, s*4, 4)}, v[{buf+(s*2+rb)*4}:{buf+(s*2+rb)*4+3}], {src}")
        def mfma(n):
            if n < len(mf) and not nomfma: e(mf[n])
        mfma(0)
        if 0 <= t + 1 < 100: e_reads(t + 1)
        mfma(1)
        gi = t + DG
        if DG <= gi < 100 and t >= 0:
            sub2, j2 = items[gi]
            assert pair_state[sub2] == (j2 >> 1), (t, gi, sub2, j2, pair_state)
            E.wait_ds([("idx", sub2, j2 >> 1)])
            g_issue(gi, vI[sub2] + (j2 & 1))
            if j2 & 1: pair_state[sub2] = None
        mfma(2)
        mfma(3)
        for look in (t + 1 + DG, t + 2 + DG):
            if DG <= look < 100 and t >= -1:
                sub3, j3 = items[look]
                if pair_state[sub3] is None and (j3 & 1) == 0:
                    ensure_pair(sub3, j3 >> 1)
        if t == lastS:
            e("s_nop 15")
            a = vACC["S"]
            e(f"v_lshlrev_b32 v{vT}, 4, v{vLane}")
            if bfx:
                for r in range(16):
                    e(f"v_cvt_pk_bf16_f32 v{a+r}, v{a+2*r}, v{a+2*r+1}")
                if not spread:
                    for q in range(4):
                        E.vmem(f"buffer_store_dwordx4 v[{a+4*q}:{a+4*q+3}], v{vT}, s[{S_WS}:{S_WS+3}], s{sMyOff} offen offset:{q*1024} sc1", "Pst")
            else:
                e(f"s_add_u32 s{sT0}, s{sMyOff}, 4096")
                for q in range(8):
                    so = sMyOff if q < 4 else sT0
                    E.vmem(f"buffer_store_dwordx4 v[{a+4*q}:{a+4*q+3}], v{vT}, s[{S_WS}:{S_WS+3}], s{so} offen offset:{(q%4)*1024} sc1", "Pst")
            if not steps:
                stamp()
                stamp(cyc=True)
        if spread and bfx and lastS + st0 <= t < lastS + st0 + 4 * spread and (t - lastS - st0) % spread == 0:
            q = (t - lastS - st0) // spread
            a = vACC["S"]
            e(f"v_lshlrev_b32 v{vT}, 4, v{vLane}")
            E.vmem(f"buffer_store_dwordx4 v[{a+4*q}:{a+4*q+3}], v{vT}, s[{S_WS}:{S_WS+3}], s{sMyOff} offen offset:{q*1024} sc1", "Pst")
        if t == tag_at:
            E.vmem(f"buffer_load_dword v{vFlag}, v{vFlagOff}, s[{S_DBG}:{S_DBG+3}], 0 offen sc1", "tag")
        if t == tag_at + 8:
            E.wait_vm(["tag"])
            e(f"v_readfirstlane_b32 s{sTag}, v{vFlag}")
            e("s_nop 1")
            e(f"s_lshr_b32 s{sTag}, s{sTag}, s{sFlagBit}")
            e(f"s_bitcmp1_b32 s{sTag}, 7")
            e("s_cbranch_scc0 L_tagspin")
            e("L_tagspin_done:")
            e(f"s_and_b32 s{sTag}, s{sTag}, 0x7f")
            e(f"s_xor_b32 s{sT0}, s2, 8")
            e(f"s_lshl_b32 s{sT0}, s{sT0}, 7")
            e(f"s_add_u32 s{sT0}, s{sT0}, {FLAGS}")
            e(f"v_mov_b32 v{vFlagOff}, s{sT0}")
        if t == w2_step:
            e(f"v_lshrrev_b32 v{vT}, 5, v{vLane}")
            e(f"v_lshlrev_b32 v{vT}, 3, v{vT}")
            e(f"s_lshl_b32 s{sT0}, s{sW}, 6")
            e(f"v_add_u32 v{vT}, s{sT0}, v{vT}")
            e(f"v_add_u32 v{vT}, {W2}, v{vT}")
            for q in range(4):
                E.dsop(f"ds_read_b64 v[{112+2*q}:{112+2*q+1}], v{vT} offset:{16*q}", "w2")
            e(f"v_mul_u32_u24 v{vT}, 26, v{vLane}")
            e(f"v_add_u32 v{vT}, {XW}, v{vT}")
            for j in range(13):
                E.dsop(f"ds_read_u16 v{120+j}, v{vT} offset:{2*j}", "xw")
        if t == w2_step + 1:
            E.wait_ds(["xw"])
            for q in range(4):
                s0 = 112 + 2 * q
                e(f"v_lshlrev_b32 v{vW2+4*q}, 16, v{s0}")
                e(f"v_and_b32 v{vW2+4*q+1}, 0xffff0000, v{s0}")
                e(f"v_lshlrev_b32 v{vW2+4*q+2}, 16, v{s0+1}")
                e(f"v_and_b32 v{vW2+4*q+3}, 0xffff0000, v{s0+1}")
            e(f"v_mov_b32 v{vWide}, s{sBW}")
            for j in range(13):
                e(f"v_lshlrev_b32 v{120+j}, 16, v{120+j}")
                e(f"v_fmac_f32 v{vWide}, s{sWW+j}, v{120+j}")
            e(f"v_add_f32 v{vWide}, s{sB2}, v{vWide}")
        if t == poll_step:
            E.vmem(f"buffer_load_dword v{vFlag}, v{vFlagOff}, s[{S_WS}:{S_WS+3}], 0 offen sc1", "poll")
        if t == load_step:
            E.wait_vm(["poll"])
            e(f"v_readfirstlane_b32 s{sT0}, v{vFlag}")
            e("s_nop 1")
            e(f"s_and_b32 s{sT0}, s{sT0}, 0x7f")
            e(f"s_cmp_eq_u32 s{sT0}, s{sTag}")
            e("s_cbranch_scc0 L_spin")
            e("L_spin_done:")
            e(f"v_lshlrev_b32 v{vT}, 4, v{vLane}")
            if bfx:
                for q in range(4):
                    E.vmem(f"buffer_load_dwordx4 v[{164+4*q}:{164+4*q+3}], v{vT}, s[{S_WS}:{S_WS+3}], s{sPartOff} offen offset:{q*1024} sc1", "Pld")
            else:
                e(f"s_add_u32 s{sT0}, s{sPartOff}, 4096")
                for q in range(8):
                    so = sPartOff if q < 4 else sT0
                    E.vmem(f"buffer_load_dwordx4 v[{112+4*q}:{112+4*q+3}], v{vT}, s[{S_WS}:{S_WS+3}], s{so} offen offset:{(q%4)*1024} sc1", "Pld")
        if bfx and t == unp_at:
            E.wait_vm(["Pld"])
            for r in range(16):
                e(f"v_lshlrev_b32 v{112+2*r}, 16, v{164+r}")
                e(f"v_and_b32 v{113+2*r}, 0xffff0000, v{164+r}")
    assert tag_at + 8 < lastS and poll_step > sig_step
    assert w2_step + 1 < load_step < unp_at and max(last_use[j] for j in range(9)) < load_step
    stamp()
    if not steps: stamp(cyc=True)
    e(f"v_lshrrev_b32 v{vT}, 5, v{vLane}")
    e(f"v_lshlrev_b32 v{vT}, 8, v{vT}")
    e(f"v_and_b32 v{vT2}, 31, v{vLane}")
    e(f"v_lshl_add_u32 v{vT}, v{vT2}, 2, v{vT}")
    e(f"s_lshl_b32 s{sT0}, s{sW}, 9")
    e(f"v_add_u32 v{vT}, s{sT0}, v{vT}")
    a = vACC["K"]
    R = vEB
    for rb in range(2):
        e(f"v_mov_b32 v{R+rb}, 0")
        e(f"v_mov_b32 v{R+2+rb}, 0")
    E.wait_vm(["Pld"])
    e("s_nop 7")
    for rb in range(2):
        for r in range(16):
            x = a + rb * 16 + r
            e(f"v_add_f32 v{x}, v{x}, v{112+rb*16+r}")
        for r in range(16):
            x = a + rb * 16 + r
            e(f"v_max_f32 v{x}, 0, v{x}")
        for r in range(16):
            x = a + rb * 16 + r
            e(f"v_fmac_f32 v{R+rb+2*(r&1)}, v{x}, v{vW2+r}")
        e(f"v_add_f32 v{R+rb}, v{R+rb}, v{R+rb+2}")
        E.dsop(f"ds_write_b32 v{vT}, v{R+rb} offset:{RED+128*rb}", "red")
    E.drain_ds()
    e("s_barrier")
    e(f"s_cmp_lg_u32 s{sW}, 0")
    e("s_cbranch_scc1 L_end")
    e(f"v_lshlrev_b32 v{vT}, 2, v{vLane}")
    Y = vEB + 12
    for kk in range(8):
        e(f"ds_read_b32 v{Y+kk}, v{vT} offset:{RED + kk*256}")
    e(f"s_lshl_b32 s{sT0}, s{sKeepRow}, 1")
    e(f"v_lshlrev_b32 v{vT}, 1, v{vLane}")
    e("s_waitcnt lgkmcnt(0)")
    e(f"v_add_f32 v{Y}, v{Y}, v{Y+1}")
    e(f"v_add_f32 v{Y+2}, v{Y+2}, v{Y+3}")
    e(f"v_add_f32 v{Y+4}, v{Y+4}, v{Y+5}")
    e(f"v_add_f32 v{Y+6}, v{Y+6}, v{Y+7}")
    e(f"v_add_f32 v{Y}, v{Y}, v{Y+2}")
    e(f"v_add_f32 v{Y+4}, v{Y+4}, v{Y+6}")
    e(f"v_add_f32 v{Y}, v{Y}, v{vWide}")
    e(f"v_add_f32 v{Y}, v{Y}, v{Y+4}")
    e(f"v_mul_f32 v{Y}, 0xbfb8aa3b, v{Y}")
    e(f"v_exp_f32 v{Y}, v{Y}")
    e("s_nop 0")
    e(f"v_add_f32 v{Y}, 1.0, v{Y}")
    e(f"v_rcp_f32 v{Y}, v{Y}")
    e("s_nop 0")
    e(f"v_cvt_pk_bf16_f32 v{Y}, v{Y}, v{Y}")
    e(f"buffer_store_short v{Y}, v{vT}, s[{S_OUT}:{S_OUT+3}], s{sT0} offen")
    if diag and hdiag:
        e(f"s_memrealtime s[{sTS+2}:{sTS+3}]")
        e("s_waitcnt lgkmcnt(0)")
        e(f"s_not_b32 s{sT0}, s{sTS}")
        e(f"v_writelane_b32 v0, s{sT0}, 0")
        e(f"v_writelane_b32 v0, s{sTS+2}, 1")
        e(f"v_mov_b32 v{vT}, 0x100")
        for lane, slot in ((0, 8), (1, 9), (4, 10), (6, 11), (8, 12), (10, 13), (12, 14), (16, 15)):
            e(f"s_mov_b32 s{sT0}, {4*slot}")
            e(f"v_writelane_b32 v{vT}, s{sT0}, {lane}")
        e(f"buffer_atomic_umax v0, v{vT}, s[{S_DBG}:{S_DBG+3}], 0 offen")
    elif diag:
        e(f"s_memrealtime s[{sTS+2}:{sTS+3}]")
        e("s_waitcnt lgkmcnt(0)")
        for n, r in enumerate((sTS, sTS+1, sTS+2, sTS+3)):
            e(f"v_writelane_b32 v0, s{r}, {n}")
        e(f"v_writelane_b32 v0, s{sTS}, 63")
        e(f"s_add_u32 s{S_SM}, s58, {16<<20}")
        e(f"s_addc_u32 s{S_SM+1}, s59, 0")
        e(f"s_and_b32 s{S_SM+1}, s{S_SM+1}, 0xffff")
        e(f"s_mov_b32 s{S_SM+2}, 65536")
        e(f"s_mov_b32 s{S_SM+3}, 0x20000")
        e(f"s_lshl_b32 s{sT0}, s2, 8")
        e(f"v_lshlrev_b32 v{vT}, 2, v{vLane}")
        e(f"buffer_store_dword v0, v{vT}, s[{S_SM}:{S_SM+3}], s{sT0} offen")
    e("s_endpgm")
    e("L_spin:")
    e(f"s_mov_b32 s{sSpin}, {1<<17}")
    e("L_spin_loop:")
    e(f"buffer_load_dword v{vFlag}, v{vFlagOff}, s[{S_WS}:{S_WS+3}], 0 offen sc1")
    e("s_waitcnt vmcnt(0)")
    e(f"v_readfirstlane_b32 s{sT0}, v{vFlag}")
    e("s_nop 1")
    e(f"s_and_b32 s{sT0}, s{sT0}, 0x7f")
    e(f"s_cmp_eq_u32 s{sT0}, s{sTag}")
    e("s_cbranch_scc1 L_spin_done")
    e(f"s_sub_u32 s{sSpin}, s{sSpin}, 1")
    e(f"s_cmp_lg_u32 s{sSpin}, 0")
    e("s_cbranch_scc1 L_spin_loop")
    e("s_branch L_spin_done")
    e("L_tagspin:")
    e(f"s_mov_b32 s{sSpin}, {1<<17}")
    e("L_tagspin_loop:")
    e(f"buffer_load_dword v{vFlag}, v{vFlagOff}, s[{S_DBG}:{S_DBG+3}], 0 offen sc1")
    e("s_waitcnt vmcnt(0)")
    e(f"v_readfirstlane_b32 s{sTag}, v{vFlag}")
    e("s_nop 1")
    e(f"s_lshr_b32 s{sTag}, s{sTag}, s{sFlagBit}")
    e(f"s_bitcmp1_b32 s{sTag}, 7")
    e("s_cbranch_scc1 L_tagspin_done")
    e(f"s_sub_u32 s{sSpin}, s{sSpin}, 1")
    e(f"s_cmp_lg_u32 s{sSpin}, 0")
    e("s_cbranch_scc1 L_tagspin_loop")
    e("s_branch L_tagspin_done")
    e("L_end:")
    e("s_endpgm")
    body = "\n".join(E.L)
    out = HEADER
    out += "; Override launch geometry by editing the next line (default: block=256,\n"
    out += f"; @launch grid=(256,1,1) block=(256,1,1) lds={LDS_TOTAL}\n"
    out += f""".amdgcn_target "amdgcn-amd-amdhsa--gfx950"
.text
.globl {NAME}_kernel
.p2align 8
.type {NAME}_kernel,@function
{NAME}_kernel:
{body}
.section .rodata,"a"
.p2align 6
.amdhsa_kernel {NAME}_kernel
  .amdhsa_next_free_vgpr 512
  .amdhsa_next_free_sgpr 102
  .amdhsa_accum_offset 256
  .amdhsa_group_segment_fixed_size 0
  .amdhsa_kernarg_size 96
  .amdhsa_user_sgpr_count 2
  .amdhsa_user_sgpr_kernarg_segment_ptr 1
  .amdhsa_system_sgpr_workgroup_id_x 1
  .amdhsa_float_denorm_mode_32 3
.end_amdhsa_kernel
"""
    if diag:
        out = out.replace("; @launch", f"; STAMPS nst={stamp_next[0]}\n; @launch", 1)
    return out

if __name__ == "__main__":
    kw = {}
    path = None
    for a in sys.argv[1:]:
        if a.endswith(".s"): path = a
        elif a == "diag": kw["diag"] = True
        elif "=" in a:
            n, v = a.split("="); kw[n] = int(v) if v.lstrip("-").isdigit() else v
    s = gen(**kw)
    open(path or "cdna_kernels/" + NAME + ".s", "w").write(s)
```

```python
import sys
from gen_s2 import Em, NAME, HEADER


def gen(diag=False, steps=0, NWB=12, NA=12, tlbwarm=True, poll_lead=10, sig_delay=8, nomfma=0, gearly=8, order="SK", wgrp=2, probe=0, hdiag=0, spindbg=0, halftab=0, pf=0, bfx=1, unp_at=97, spread=4, st0=0, pub_at=12, tag_at=60, n_init=6, rmax=4, inter=1, misc_step=2, acc_at=20):
    E = Em(); e = E.e
    DG = NA - 2
    NAD = 8
    WST = 0
    ADED = WST + NWB * 8192
    RING0 = ADED + NAD * 4096 - NA * 4096
    IDX = ADED + NAD * 4096
    XW = IDX + 26624
    B1 = XW + 2048
    W2 = B1 + 1024
    LDS_TOTAL = W2 + 1024
    RED = WST
    assert LDS_TOTAL <= 163840, LDS_TOTAL
    assert NA * 4096 <= 65536 and RING0 >= 0
    def aslot(i):
        r = i % NA
        return (NA - NAD) * 4096 + r * 4096 if r < NAD else (r - NAD) * 4096
    def aslot_wbufs(i):
        a = RING0 + aslot(i)
        return None if a >= ADED else (a - WST) // 8192
    S_IDX, S_TAB, S_W1, S_MISC, S_OUT, S_SM, S_WS, S_DBG = 8, 12, 16, 20, 24, 28, 32, 60
    sW, sKh, sColS, sColK, sColW, sW2048, sW1024, sT0, sT1, sWbase, sFoff = 64, 65, 66, 67, 68, 69, 70, 71, 72, 73, 74
    sKeepRow, sPartOff, sMyOff, sFlagBit = 75, 76, 77, 78
    sWW, sBW, sB2 = 80, 93, 94
    sSpin = 95
    sTS = 96
    stamp_next = [2]
    def stamp(cyc=False):
        if diag:
            n = stamp_next[0]; stamp_next[0] += 1
            e(f"s_memtime s[6:7]" if cyc else "s_memrealtime s[6:7]")
            E.drain_ds()
            e(f"v_writelane_b32 v0, s6, {2*n}")
            e(f"v_writelane_b32 v0, s7, {2*n+1}")
    vLane, vPiece, vWoff, vIdxB, vE0, vE1, vWtr = 1, 2, 3, 4, 5, 6, 7
    vI = {"S": 8, "K": 10}
    vT, vT2, vFlagOff, vFlag = 12, 13, 14, 15
    vEB = 16
    vACC = {"S": 48, "K": 80}
    def wreg(slot, lo, n):
        if slot < 18:
            b = 112 + slot * 8 + lo
            return f"v[{b}:{b+n-1}]"
        b = (slot - 18) * 8 + lo
        return f"a[{b}:{b+n-1}]"

    items = [("S", j) for j in range(50)] + [("K", j) for j in range(50)]
    last_use = {}
    for t, (sub, j) in enumerate(items): last_use[j] = t
    lastS = 49

    e("s_cmp_ge_u32 s2, 256")
    e("s_cbranch_scc1 L_end")
    if diag: e(f"s_memrealtime s[{sTS}:{sTS+1}]")
    e("s_load_dwordx16 s[36:51], s[0:1], 0")
    e("s_load_dwordx4 s[52:55], s[0:1], 64")
    e("s_load_dwordx4 s[56:59], s[0:1], 80")
    e(f"v_and_b32 v{vLane}, 63, v0")
    e(f"v_lshrrev_b32 v{vT}, 6, v0")
    e("s_nop 0")
    e(f"v_readfirstlane_b32 s{sW}, v{vT}")
    if diag: e("v_mov_b32 v0, 0")
    X = vEB
    vQ = X + 20
    for i in range(4):
        e(f"v_add_u32 v{X}, {64*i}, v{vLane}")
        e(f"v_mul_u32_u24 v{X+1}, 5042, v{X}")
        e(f"v_lshrrev_b32 v{X+1}, 16, v{X+1}")
        e(f"v_mul_u32_u24 v{X+2}, 13, v{X+1}")
        e(f"v_sub_u32 v{X+2}, v{X}, v{X+2}")
        e(f"v_mul_u32_u24 v{X+1}, 400, v{X+1}")
        e(f"v_lshl_add_u32 v{vQ+i}, v{X+2}, 4, v{X+1}")
        if i: e(f"v_subrev_u32 v{vQ+i}, {1024*i}, v{vQ+i}")
    e(f"s_lshr_b32 s{sKh}, s2, 3")
    e(f"s_and_b32 s{sKh}, s{sKh}, 1")
    e(f"s_lshr_b32 s{sT0}, s2, 4")
    e(f"s_lshl_b32 s{sT1}, s{sT0}, 3")
    e(f"s_and_b32 s{sKeepRow}, s2, 7")
    e(f"s_add_u32 s{sT1}, s{sT1}, s{sKeepRow}")
    e(f"s_lshl_b32 s{sT1}, s{sT1}, 7")
    e(f"s_lshl_b32 s{sKeepRow}, s{sKh}, 6")
    e(f"s_add_u32 s{sKeepRow}, s{sKeepRow}, s{sT1}")
    e(f"s_mul_i32 s{sT0}, s{sT0}, 25")
    e(f"s_lshr_b32 s{sT0}, s{sT0}, 4")
    e(f"s_lshl_b32 s{sColS}, s{sT0}, 3")
    e(f"s_mov_b32 s{sColK}, s{sColS}")
    e(f"s_lshl_b32 s{sColW}, s{sT0}, 14")
    e(f"s_lshl_b32 s{sW2048}, s{sW}, 11")
    e(f"s_lshl_b32 s{sW1024}, s{sW}, 10")
    e(f"s_mul_i32 s{sWbase}, s{sKh}, {50*8192}")
    e(f"s_add_u32 s{sWbase}, s{sWbase}, s{sW2048}")
    e(f"s_xor_b32 s{sT0}, s{sKeepRow}, 64")
    e(f"s_lshl_b32 s{sT1}, s{sW}, 4")
    e(f"s_add_u32 s{sT0}, s{sT0}, s{sT1}")
    e(f"s_mul_i32 s{sT0}, s{sT0}, 400")
    e(f"s_mul_i32 s{sFoff}, s{sKh}, 192")
    e(f"s_add_u32 s{sT0}, s{sT0}, s{sFoff}")
    e(f"s_mul_i32 s{sT1}, s{sW}, 3328")
    E.drain_ds()
    def srd(d, p, size):
        e(f"s_mov_b32 s{d}, s{p}")
        e(f"s_and_b32 s{d+1}, s{p+1}, 0xffff")
        e(f"s_mov_b32 s{d+2}, {size}")
        e(f"s_mov_b32 s{d+3}, 0x20000")
    srd(S_IDX, 36, 16384*400)
    def idx_dma(ldsbase, tag):
        e(f"s_add_u32 m0, s{sT1}, {ldsbase}")
        e("s_nop 0")
        for i in range(3):
            E.vmem(f"buffer_load_dwordx4 v{vQ+i}, s[{S_IDX}:{S_IDX+3}], s{sT0} offen offset:{i*1024} lds", tag)
        e("s_mov_b64 exec, 0xffff")
        E.vmem(f"buffer_load_dwordx4 v{vQ+3}, s[{S_IDX}:{S_IDX+3}], s{sT0} offen offset:3072 lds", tag)
        e("s_mov_b64 exec, -1")
    if probe: stamp()
    idx_dma(IDX, "idxS")
    if probe:
        E.drain_vm(); stamp()
    e(f"s_lshl_b32 s{sFoff}, s{sKh}, 1")
    e(f"s_sub_u32 s{sFoff}, s{sFoff}, 1")
    e(f"s_mul_i32 s{sFoff}, s{sFoff}, {64*400}")
    e(f"s_add_u32 s{sT0}, s{sT0}, s{sFoff}")
    idx_dma(IDX + 13312, "idxK")
    if probe:
        E.drain_vm(); stamp()
    srd(S_W1, 46, 3200*256)
    e(f"v_bfe_u32 v{X+1}, v{vLane}, 4, 2")
    e(f"v_and_b32 v{X}, 15, v{vLane}")
    e(f"v_lshlrev_b32 v{X+2}, 2, v{X+1}")
    e(f"v_xor_b32 v{X}, v{X}, v{X+2}")
    e(f"v_lshlrev_b32 v{X}, 4, v{X}")
    e(f"v_lshl_add_u32 v{vWoff}, v{X+1}, 8, v{X}")
    def w_dma_half(slot, q):
        if q == 0:
            buf = WST + (slot % NWB) * 8192
            e(f"s_add_u32 m0, s{sW2048}, {buf}")
            e(f"s_add_u32 s{sFoff}, s{sColW}, s{sWbase}")
        E.vmem(f"buffer_load_dwordx4 v{vWoff}, s[{S_W1}:{S_W1+3}], s{sFoff} offen offset:{q*1024} lds", ("W", slot))
        if q == 1:
            e(f"s_add_u32 s{sColW}, s{sColW}, 8192")
            e(f"s_cmp_ge_u32 s{sColW}, {50*8192}")
            e(f"s_cselect_b32 s{sColW}, 0, s{sColW}")
    def w_dma(slot):
        w_dma_half(slot, 0); w_dma_half(slot, 1)
    srd(S_TAB, 38, (50000 if halftab else 100000)*64)
    if tlbwarm:
        e("s_load_dword s4, s[38:39], 0")
        for a in (0x200000, 0x400000, 0x600000):
            e(f"s_mov_b32 s5, {a}")
            e("s_load_dword s4, s[38:39], s5")
    if pf:
        e(f"s_lshr_b32 s{sT0}, s2, 3")
        e(f"s_mul_i32 s{sT0}, s{sT0}, 102400")
        e(f"s_mul_i32 s{sFoff}, s{sW}, 25600")
        e(f"s_add_u32 s{sT0}, s{sT0}, s{sFoff}")
        e(f"v_lshlrev_b32 v{vT}, 4, v{vLane}")
        e(f"s_add_u32 m0, s{sW1024}, {ADED}")
        for q in range(25):
            E.vmem(f"buffer_load_dwordx4 v{vT}, s[{S_TAB}:{S_TAB+3}], s{sT0} offen lds", "pf")
            e(f"s_add_u32 s{sT0}, s{sT0}, 1024")
    for j in range(n_init):
        w_dma(j)
        if probe and j == 1:
            E.drain_vm(); stamp()
    if not probe: stamp()
    e(f"v_and_b32 v{X}, 3, v{vLane}")
    e(f"v_bfe_u32 v{X+1}, v{vLane}, 4, 2")
    e(f"v_xor_b32 v{X}, v{X}, v{X+1}")
    e(f"v_lshlrev_b32 v{vPiece}, 4, v{X}")
    e(f"v_lshrrev_b32 v{X}, 2, v{vLane}")
    e(f"v_mul_u32_u24 v{vIdxB}, 208, v{X}")
    e(f"s_lshl_b32 s{sT0}, s{sKh}, 3")
    e(f"s_add_u32 s{sT0}, s{sT0}, s{sT1}")
    e(f"s_add_u32 s{sT0}, s{sT0}, {IDX}")
    e(f"v_add_u32 v{vIdxB}, s{sT0}, v{vIdxB}")
    e(f"v_and_b32 v{X}, 31, v{vLane}")
    e(f"v_lshlrev_b32 v{X}, 6, v{X}")
    e(f"v_add_u32 v{X}, {RING0}, v{X}")
    e(f"v_lshrrev_b32 v{X+1}, 5, v{vLane}")
    e(f"v_bfe_u32 v{X+2}, v{vLane}, 2, 2")
    e(f"v_xor_b32 v{X+3}, v{X+1}, v{X+2}")
    e(f"v_lshl_add_u32 v{vE0}, v{X+3}, 4, v{X}")
    e(f"v_xor_b32 v{X+3}, 2, v{X+3}")
    e(f"v_lshl_add_u32 v{vE1}, v{X+3}, 4, v{X}")
    e(f"v_lshl_add_u32 v{X+3}, v{X+1}, 3, v{X+2}")
    e(f"v_lshlrev_b32 v{X+3}, 8, v{X+3}")
    e(f"v_bfe_u32 v{X+4}, v{vLane}, 4, 1")
    e(f"v_lshlrev_b32 v{X+4}, 1, v{X+4}")
    e(f"v_bfe_u32 v{X+5}, v{vLane}, 1, 1")
    e(f"v_add_u32 v{X+4}, v{X+4}, v{X+5}")
    e(f"s_lshl_b32 s{sT0}, s{sW}, 2")
    e(f"v_add_u32 v{X+4}, s{sT0}, v{X+4}")
    e(f"v_lshlrev_b32 v{X+2}, 2, v{X+2}")
    e(f"v_xor_b32 v{X+4}, v{X+4}, v{X+2}")
    e(f"v_and_b32 v{X+5}, 1, v{vLane}")
    e(f"v_lshlrev_b32 v{X+5}, 3, v{X+5}")
    e(f"v_add_u32 v{X+3}, v{X+3}, v{X+5}")
    e(f"v_lshl_add_u32 v{vWtr}, v{X+4}, 4, v{X+3}")
    e(f"v_add_u32 v{vT2}, 65536, v{vWtr}")
    vWtrH = vT2
    e(f"s_lshl_b32 s{sMyOff}, s2, {14 if bfx else 15}")
    e(f"s_xor_b32 s{sT0}, s2, 8")
    e(f"s_lshl_b32 s{sPartOff}, s{sT0}, {14 if bfx else 15}")
    if hdiag:
        e(f"s_lshr_b32 s{sT0}, s{sT0}, 5")
        e(f"s_lshl_b32 s{sT0}, s{sT0}, 2")
    else:
        e(f"s_and_b32 s{sT0}, s{sT0}, 0xfc")
    e(f"v_mov_b32 v{vFlagOff}, s{sT0}")
    e(f"s_lshl_b32 s{sT0}, s{sW}, {12 if bfx else 13}")
    e(f"s_add_u32 s{sMyOff}, s{sMyOff}, s{sT0}")
    e(f"s_add_u32 s{sPartOff}, s{sPartOff}, s{sT0}")
    if hdiag:
        e(f"s_xor_b32 s{sT0}, s2, 8")
        e(f"s_and_b32 s{sT0}, s{sT0}, 31")
        e(f"s_lshl_b32 s{sFlagBit}, 1, s{sT0}")
        e(f"s_and_b32 s{sT0}, s2, 31")
        e(f"s_lshl_b32 s79, 1, s{sT0}")
    else:
        e(f"s_and_b32 s{sT0}, s2, 3")
        e(f"s_lshl_b32 s{sFlagBit}, s{sT0}, 3")
    srd(S_OUT, 54, 16384*2)
    srd(S_DBG, 56, 256)
    assert bfx and not hdiag and not spindbg
    FLAGS = 256 * 16384
    srd(S_WS, 58, FLAGS + 256 * 128)
    sTag, sNext = 100, 79


    def w_tr_piece(slot, s):
        buf = WST + (slot % NWB) * 8192
        base = vWtr if buf < 65536 else vWtrH
        off = buf if buf < 65536 else buf - 65536
        for t in range(2):
            E.dsop(f"ds_read_b64_tr_b16 {wreg(slot, s*4 + t*2, 2)}, {'v%d' % base} offset:{off + s*4096 + t*1024}", ("Wtr", slot))
    def w_tr(slot):
        w_tr_piece(slot, 0); w_tr_piece(slot, 1)
    def misc_loads():
        e(f"v_lshlrev_b32 v{vT}, 4, v{vLane}")
        e(f"s_cmp_lt_u32 s{sW}, 2")
        e(f"s_cselect_b32 s{S_MISC}, s40, s48")
        e(f"s_cselect_b32 s{S_MISC+1}, s41, s49")
        e(f"s_mov_b32 s{S_MISC+2}, 256")
        e(f"s_cselect_b32 s{S_MISC+2}, {16384*26}, s{S_MISC+2}")
        e(f"s_cmp_eq_u32 s{sW}, 3")
        e(f"s_cselect_b32 s{S_MISC}, s50, s{S_MISC}")
        e(f"s_cselect_b32 s{S_MISC+1}, s51, s{S_MISC+1}")
        e(f"s_and_b32 s{S_MISC+1}, s{S_MISC+1}, 0xffff")
        e(f"s_mov_b32 s{S_MISC+3}, 0x20000")
        e(f"s_mul_i32 s{sT0}, s{sKeepRow}, 26")
        e(f"s_add_u32 s{sT0}, s{sT0}, s{sW1024}")
        e(f"s_cmp_lt_u32 s{sW}, 2")
        e(f"s_cselect_b32 s{sT0}, s{sT0}, 0")
        e(f"s_add_u32 m0, s{sW1024}, {XW}")
        e("s_nop 0")
        E.vmem(f"buffer_load_dwordx4 v{vT}, s[{S_MISC}:{S_MISC+3}], s{sT0} offen lds", "misc")
        e(f"v_lshlrev_b32 v{vSm}, 1, v{vLane}")
        for n, (p, size) in enumerate(((42, 26), (44, 2), (52, 2))):
            srd(S_SM, p, size)
            E.vmem(f"buffer_load_ushort v{vSm+1+n}, v{vSm}, s[{S_SM}:{S_SM+3}], 0 offen", "small")
            e("s_nop 0")
    vSm = vACC['K'] + 8

    colreg = {"S": sColS, "K": sColK}
    def idx_read(sub, pair, dst, tmp):
        e(f"v_add_u32 v{tmp}, s{colreg[sub]}, v{vIdxB}")
        E.dsop(f"ds_read_b64 v[{dst}:{dst+1}], v{tmp} offset:{13312 if sub == 'K' else 0}", ("idx", sub, pair))
        c = colreg[sub]
        e(f"s_add_u32 s{c}, s{c}, 8")
        e(f"s_cmp_ge_u32 s{c}, 200")
        e(f"s_cselect_b32 s{c}, 0, s{c}")
    def g_issue(i, reg):
        slot = RING0 + aslot(i)
        e(f"v_lshl_add_u32 v{reg}, v{reg}, 6, v{vPiece}")
        e(f"s_add_u32 m0, s{sW1024}, {slot}")
        e("s_nop 0")
        E.vmem(f"buffer_load_dwordx4 v{reg}, s[{S_TAB}:{S_TAB+3}], 0 offen lds", ("G", i))

    rmax = max(rmax, wgrp)
    ngrp = (50 + wgrp - 1) // wgrp
    groups = [list(range(g * wgrp, min(50, (g + 1) * wgrp))) for g in range(ngrp)]
    nxt_w = n_init
    misc_at = 2
    tb = X + 0
    early_done = False
    for g, grp in enumerate(groups):
        E.wait_vm([("W", j) for j in grp])
        if g > 0: E.wait_ds([("Wtr", j) for j in groups[g-1]])
        e("s_barrier")
        if g == 0 and not probe: stamp()
        cnt = 0
        dmas = []
        while nxt_w < 50 and nxt_w < grp[0] + NWB and cnt < rmax:
            dmas += [(nxt_w, 0), (nxt_w, 1)]; nxt_w += 1; cnt += 1
        trs = [(j, sx) for j in grp for sx in range(2)] if inter else []
        while dmas or trs:
            if trs and inter == 1: w_tr_piece(*trs.pop(0))
            if dmas: w_dma_half(*dmas.pop(0))
            if trs and inter == 2: w_tr_piece(*trs.pop(0))
        if nxt_w >= 50 and not early_done:
            early_done = True
            E.wait_vm(["idxS"])
            for n in range(gearly // 2):
                idx_read("S", n, tb + 2 * n, vT)
            E.wait_ds([("idx", "S", gearly // 2 - 1)])
            for i in range(gearly):
                assert aslot_wbufs(i) is None
                g_issue(i, tb + i)
            if not probe: stamp()
        if not inter:
            for j in grp: w_tr(j)
    assert early_done
    def small_scalars():
        E.wait_vm(["small"])
        for n in range(3):
            e(f"v_lshlrev_b32 v{vSm+1+n}, 16, v{vSm+1+n}")
        e("s_nop 0")
        for j in range(13):
            e(f"v_readlane_b32 s{sWW+j}, v{vSm+1}, {j}")
        e(f"v_readlane_b32 s{sBW}, v{vSm+2}, 0")
        e(f"v_readlane_b32 s{sB2}, v{vSm+3}, 0")
    def init_accK():
        e(f"v_lshrrev_b32 v{vT}, 5, v{vLane}")
        e(f"v_lshlrev_b32 v{vT}, 3, v{vT}")
        e(f"s_lshl_b32 s{sT0}, s{sW}, 6")
        e(f"v_add_u32 v{vT}, s{sT0}, v{vT}")
        e(f"v_add_u32 v{vT}, {B1}, v{vT}")
        a = vACC["K"]
        for q in range(4):
            E.dsop(f"ds_read_b64 v[{a+16+2*q}:{a+17+2*q}], v{vT} offset:{16*q}", "b1")
        E.wait_ds(["b1"])
        for q in range(4):
            s0 = a + 16 + 2 * q
            e(f"v_lshlrev_b32 v{a+4*q}, 16, v{s0}")
            e(f"v_and_b32 v{a+4*q+1}, 0xffff0000, v{s0}")
            e(f"v_lshlrev_b32 v{a+4*q+2}, 16, v{s0+1}")
            e(f"v_and_b32 v{a+4*q+3}, 0xffff0000, v{s0+1}")
        for r in range(16):
            e(f"v_mov_b32 v{a+16+r}, v{a+r}")

    def fold_load():
        e(f"s_lshl_b32 s{sT0}, s2, 7")
        e(f"s_add_u32 s{sT0}, s{sT0}, {FLAGS}")
        e(f"v_mov_b32 v{vT}, 0")
        E.vmem(f"buffer_load_dword v{vFlag}, v{vT}, s[{S_WS}:{S_WS+3}], s{sT0} offen sc1", "fold")
    def publish():
        E.wait_vm(["fold"])
        e(f"v_readfirstlane_b32 s{sNext}, v{vFlag}")
        e("s_nop 1")
        e(f"s_add_u32 s{sNext}, s{sNext}, 1")
        e(f"s_and_b32 s{sT0}, s{sNext}, 0x7f")
        e(f"s_or_b32 s{sT0}, s{sT0}, 0x80")
        e(f"s_and_b32 s{sFoff}, s2, 3")
        e(f"s_lshl_b32 s{sFoff}, s{sFoff}, 3")
        e(f"s_lshl_b32 s{sT0}, s{sT0}, s{sFoff}")
        e(f"v_mov_b32 v{vFlag}, s{sT0}")
        e(f"s_and_b32 s{sFoff}, s2, 0xfc")
        e(f"v_mov_b32 v{vT}, s{sFoff}")
        e(f"s_cmp_eq_u32 s{sW}, 0")
        e(f"s_cselect_b32 s{sT0}, 1, 0")
        e(f"s_mov_b32 exec_hi, 0")
        e(f"s_mov_b32 exec_lo, s{sT0}")
        E.vmem(f"buffer_atomic_add v{vFlag}, v{vT}, s[{S_DBG}:{S_DBG+3}], 0 offen", "pub")
        e("s_mov_b64 exec, -1")
    E.drain_ds()
    e("s_barrier")
    for n in range(gearly // 2, DG // 2):
        idx_read("S", n, tb + 2 * (n - gearly // 2), vT)
    E.drain_ds()
    for i in range(gearly, DG):
        g_issue(i, tb + (i - gearly))
    if not probe: stamp()
    pair_state = {"S": None, "K": None}
    nxt_pair = {"S": DG // 2, "K": 0}
    assert DG % 2 == 0 and gearly % 2 == 0

    def ensure_pair(sub, pair):
        if pair_state[sub] != pair and pair < 25:
            assert pair == nxt_pair[sub], (sub, pair, nxt_pair)
            idx_read(sub, pair, vI[sub], vT2)
            pair_state[sub] = pair
            nxt_pair[sub] = pair + 1
    def e_reads(i):
        buf = vEB + (i % 2) * 16
        slot = aslot(i)
        for s in range(2):
            for rb in range(2):
                d = buf + (s * 2 + rb) * 4
                E.dsop(f"ds_read_b128 v[{d}:{d+3}], v{vE1 if s else vE0} offset:{slot + rb*2048}", ("E", i))

    sig_step = lastS + 1 + sig_delay + (st0 + 3 * spread if spread else 0)
    sig_step += sig_step & 1
    part_ok = max(last_use[j] for j in range(6)) + 1
    load_step = max(part_ok, 100 - poll_lead + 4, sig_step + 5)
    poll_step = load_step - 4
    w2_step = max(part_ok, 70)
    add_step = 98
    vW2 = 144
    vWide = 160
    assert last_use[6] < w2_step and last_use[7] < w2_step

    for t in range(-2, 100):
        if t % 2 == 0:
            need = [("G", i) for i in (t + 1, t + 2) if 0 <= i < 100]
            if t == sig_step: need.append("Pst")
            if t == -2: need.append("idxK")
            if t == acc_at: need.append("misc")
            if need: E.wait_vm(need)
            e("s_barrier")
            if t == sig_step:
                e(f"s_lshl_b32 s{sT1}, s2, 7")
                e(f"s_add_u32 s{sT1}, s{sT1}, {FLAGS}")
                e(f"v_mov_b32 v{vT}, 0")
                e(f"v_mov_b32 v{vFlag}, s{sNext}")
                e(f"s_cmp_eq_u32 s{sW}, 0")
                e(f"s_cselect_b32 s{sT0}, 1, 0")
                e(f"s_mov_b32 exec_hi, 0")
                e(f"s_mov_b32 exec_lo, s{sT0}")
                E.vmem(f"buffer_store_dword v{vFlag}, v{vT}, s[{S_WS}:{S_WS+3}], s{sT1} offen sc1", "sig")
                e("s_mov_b64 exec, -1")
                e("s_nop 3")
        if steps and t in (0, 10, 20, 30, 40, 46, 50, 52, 54, 56, 58, 60, 64, 70, 80, 90, 94, 96): stamp()
        mf = []
        if t >= 0:
            sub, j = items[t]
            buf = vEB + (t % 2) * 16
            a = vACC[sub]
            E.wait_ds([("E", t)])
            for s in range(2):
                for rb in range(2):
                    c = f"v[{a+rb*16}:{a+rb*16+15}]"
                    src = "0" if (sub == "S" and j == 0 and s == 0) else c
                    mf.append(f"v_mfma_f32_32x32x16_bf16 {c}, {wreg(j, s*4, 4)}, v[{buf+(s*2+rb)*4}:{buf+(s*2+rb)*4+3}], {src}")
        def mfma(n):
            if n < len(mf) and not nomfma: e(mf[n])
        mfma(0)
        if 0 <= t + 1 < 100: e_reads(t + 1)
        mfma(1)
        gi = t + DG
        if DG <= gi < 100 and t >= 0:
            sub2, j2 = items[gi]
            assert pair_state[sub2] == (j2 >> 1), (t, gi, sub2, j2, pair_state)
            E.wait_ds([("idx", sub2, j2 >> 1)])
            g_issue(gi, vI[sub2] + (j2 & 1))
            if j2 & 1: pair_state[sub2] = None
        mfma(2)
        mfma(3)
        for look in (t + 1 + DG, t + 2 + DG):
            if DG <= look < 100 and t >= -1:
                sub3, j3 = items[look]
                if pair_state[sub3] is None and (j3 & 1) == 0:
                    ensure_pair(sub3, j3 >> 1)
        if t == lastS:
            e("s_nop 15")
            a = vACC["S"]
            e(f"v_lshlrev_b32 v{vT}, 4, v{vLane}")
            if bfx:
                for r in range(16):
                    e(f"v_cvt_pk_bf16_f32 v{a+r}, v{a+2*r}, v{a+2*r+1}")
                if not spread:
                    for q in range(4):
                        E.vmem(f"buffer_store_dwordx4 v[{a+4*q}:{a+4*q+3}], v{vT}, s[{S_WS}:{S_WS+3}], s{sMyOff} offen offset:{q*1024} sc1", "Pst")
            else:
                e(f"s_add_u32 s{sT0}, s{sMyOff}, 4096")
                for q in range(8):
                    so = sMyOff if q < 4 else sT0
                    E.vmem(f"buffer_store_dwordx4 v[{a+4*q}:{a+4*q+3}], v{vT}, s[{S_WS}:{S_WS+3}], s{so} offen offset:{(q%4)*1024} sc1", "Pst")
            if not steps:
                stamp()
                stamp(cyc=True)
        if spread and bfx and lastS + st0 <= t < lastS + st0 + 4 * spread and (t - lastS - st0) % spread == 0:
            q = (t - lastS - st0) // spread
            a = vACC["S"]
            e(f"v_lshlrev_b32 v{vT}, 4, v{vLane}")
            E.vmem(f"buffer_store_dwordx4 v[{a+4*q}:{a+4*q+3}], v{vT}, s[{S_WS}:{S_WS+3}], s{sMyOff} offen offset:{q*1024} sc1", "Pst")
        if t == misc_step - 2: fold_load()
        if t == misc_step: misc_loads()
        if t == pub_at:
            publish()
            e("s_nop 3")
        if t == acc_at - 2: small_scalars()
        if t == acc_at: init_accK()
        if t == tag_at:
            E.vmem(f"buffer_load_dword v{vFlag}, v{vFlagOff}, s[{S_DBG}:{S_DBG+3}], 0 offen sc1", "tag")
        if t == tag_at + 8:
            E.wait_vm(["tag"])
            e(f"v_readfirstlane_b32 s{sTag}, v{vFlag}")
            e("s_nop 1")
            e(f"s_lshr_b32 s{sTag}, s{sTag}, s{sFlagBit}")
            e(f"s_bitcmp1_b32 s{sTag}, 7")
            e("s_cbranch_scc0 L_tagspin")
            e("L_tagspin_done:")
            e(f"s_and_b32 s{sTag}, s{sTag}, 0x7f")
            e(f"s_xor_b32 s{sT0}, s2, 8")
            e(f"s_lshl_b32 s{sT0}, s{sT0}, 7")
            e(f"s_add_u32 s{sT0}, s{sT0}, {FLAGS}")
            e(f"v_mov_b32 v{vFlagOff}, s{sT0}")
        if t == w2_step:
            e(f"v_lshrrev_b32 v{vT}, 5, v{vLane}")
            e(f"v_lshlrev_b32 v{vT}, 3, v{vT}")
            e(f"s_lshl_b32 s{sT0}, s{sW}, 6")
            e(f"v_add_u32 v{vT}, s{sT0}, v{vT}")
            e(f"v_add_u32 v{vT}, {W2}, v{vT}")
            for q in range(4):
                E.dsop(f"ds_read_b64 v[{112+2*q}:{112+2*q+1}], v{vT} offset:{16*q}", "w2")
            e(f"v_mul_u32_u24 v{vT}, 26, v{vLane}")
            e(f"v_add_u32 v{vT}, {XW}, v{vT}")
            for j in range(13):
                E.dsop(f"ds_read_u16 v{120+j}, v{vT} offset:{2*j}", "xw")
        if t == w2_step + 1:
            E.wait_ds(["xw"])
            for q in range(4):
                s0 = 112 + 2 * q
                e(f"v_lshlrev_b32 v{vW2+4*q}, 16, v{s0}")
                e(f"v_and_b32 v{vW2+4*q+1}, 0xffff0000, v{s0}")
                e(f"v_lshlrev_b32 v{vW2+4*q+2}, 16, v{s0+1}")
                e(f"v_and_b32 v{vW2+4*q+3}, 0xffff0000, v{s0+1}")
            e(f"v_mov_b32 v{vWide}, s{sBW}")
            for j in range(13):
                e(f"v_lshlrev_b32 v{120+j}, 16, v{120+j}")
                e(f"v_fmac_f32 v{vWide}, s{sWW+j}, v{120+j}")
            e(f"v_add_f32 v{vWide}, s{sB2}, v{vWide}")
        if t == poll_step:
            E.vmem(f"buffer_load_dword v{vFlag}, v{vFlagOff}, s[{S_WS}:{S_WS+3}], 0 offen sc1", "poll")
        if t == load_step:
            E.wait_vm(["poll"])
            e(f"v_readfirstlane_b32 s{sT0}, v{vFlag}")
            e("s_nop 1")
            e(f"s_and_b32 s{sT0}, s{sT0}, 0x7f")
            e(f"s_cmp_eq_u32 s{sT0}, s{sTag}")
            e("s_cbranch_scc0 L_spin")
            e("L_spin_done:")
            e(f"v_lshlrev_b32 v{vT}, 4, v{vLane}")
            if bfx:
                for q in range(4):
                    E.vmem(f"buffer_load_dwordx4 v[{164+4*q}:{164+4*q+3}], v{vT}, s[{S_WS}:{S_WS+3}], s{sPartOff} offen offset:{q*1024} sc1", "Pld")
            else:
                e(f"s_add_u32 s{sT0}, s{sPartOff}, 4096")
                for q in range(8):
                    so = sPartOff if q < 4 else sT0
                    E.vmem(f"buffer_load_dwordx4 v[{112+4*q}:{112+4*q+3}], v{vT}, s[{S_WS}:{S_WS+3}], s{so} offen offset:{(q%4)*1024} sc1", "Pld")
        if bfx and t == unp_at:
            E.wait_vm(["Pld"])
            for r in range(16):
                e(f"v_lshlrev_b32 v{112+2*r}, 16, v{164+r}")
                e(f"v_and_b32 v{113+2*r}, 0xffff0000, v{164+r}")
    assert tag_at + 8 < poll_step and poll_step > sig_step and acc_at % 2 == 0 and misc_step + 8 <= acc_at - 2 and acc_at < 48
    assert w2_step + 1 < load_step < unp_at and max(last_use[j] for j in range(9)) < load_step
    stamp()
    if not steps: stamp(cyc=True)
    e(f"v_lshrrev_b32 v{vT}, 5, v{vLane}")
    e(f"v_lshlrev_b32 v{vT}, 8, v{vT}")
    e(f"v_and_b32 v{vT2}, 31, v{vLane}")
    e(f"v_lshl_add_u32 v{vT}, v{vT2}, 2, v{vT}")
    e(f"s_lshl_b32 s{sT0}, s{sW}, 9")
    e(f"v_add_u32 v{vT}, s{sT0}, v{vT}")
    a = vACC["K"]
    R = vEB
    for rb in range(2):
        e(f"v_mov_b32 v{R+rb}, 0")
        e(f"v_mov_b32 v{R+2+rb}, 0")
    E.wait_vm(["Pld"])
    e("s_nop 7")
    for rb in range(2):
        for r in range(16):
            x = a + rb * 16 + r
            e(f"v_add_f32 v{x}, v{x}, v{112+rb*16+r}")
        for r in range(16):
            x = a + rb * 16 + r
            e(f"v_max_f32 v{x}, 0, v{x}")
        for r in range(16):
            x = a + rb * 16 + r
            e(f"v_fmac_f32 v{R+rb+2*(r&1)}, v{x}, v{vW2+r}")
        e(f"v_add_f32 v{R+rb}, v{R+rb}, v{R+rb+2}")
        E.dsop(f"ds_write_b32 v{vT}, v{R+rb} offset:{RED+128*rb}", "red")
    E.drain_ds()
    e("s_barrier")
    e(f"s_cmp_lg_u32 s{sW}, 0")
    e("s_cbranch_scc1 L_end")
    e(f"v_lshlrev_b32 v{vT}, 2, v{vLane}")
    Y = vEB + 12
    for kk in range(8):
        e(f"ds_read_b32 v{Y+kk}, v{vT} offset:{RED + kk*256}")
    e(f"s_lshl_b32 s{sT0}, s{sKeepRow}, 1")
    e(f"v_lshlrev_b32 v{vT}, 1, v{vLane}")
    e("s_waitcnt lgkmcnt(0)")
    e(f"v_add_f32 v{Y}, v{Y}, v{Y+1}")
    e(f"v_add_f32 v{Y+2}, v{Y+2}, v{Y+3}")
    e(f"v_add_f32 v{Y+4}, v{Y+4}, v{Y+5}")
    e(f"v_add_f32 v{Y+6}, v{Y+6}, v{Y+7}")
    e(f"v_add_f32 v{Y}, v{Y}, v{Y+2}")
    e(f"v_add_f32 v{Y+4}, v{Y+4}, v{Y+6}")
    e(f"v_add_f32 v{Y}, v{Y}, v{vWide}")
    e(f"v_add_f32 v{Y}, v{Y}, v{Y+4}")
    e(f"v_mul_f32 v{Y}, 0xbfb8aa3b, v{Y}")
    e(f"v_exp_f32 v{Y}, v{Y}")
    e("s_nop 0")
    e(f"v_add_f32 v{Y}, 1.0, v{Y}")
    e(f"v_rcp_f32 v{Y}, v{Y}")
    e("s_nop 0")
    e(f"v_cvt_pk_bf16_f32 v{Y}, v{Y}, v{Y}")
    e(f"buffer_store_short v{Y}, v{vT}, s[{S_OUT}:{S_OUT+3}], s{sT0} offen")
    if diag and hdiag:
        e(f"s_memrealtime s[{sTS+2}:{sTS+3}]")
        e("s_waitcnt lgkmcnt(0)")
        e(f"s_not_b32 s{sT0}, s{sTS}")
        e(f"v_writelane_b32 v0, s{sT0}, 0")
        e(f"v_writelane_b32 v0, s{sTS+2}, 1")
        e(f"v_mov_b32 v{vT}, 0x100")
        for lane, slot in ((0, 8), (1, 9), (4, 10), (6, 11), (8, 12), (10, 13), (12, 14), (16, 15)):
            e(f"s_mov_b32 s{sT0}, {4*slot}")
            e(f"v_writelane_b32 v{vT}, s{sT0}, {lane}")
        e(f"buffer_atomic_umax v0, v{vT}, s[{S_DBG}:{S_DBG+3}], 0 offen")
    elif diag:
        e(f"s_memrealtime s[{sTS+2}:{sTS+3}]")
        e("s_waitcnt lgkmcnt(0)")
        for n, r in enumerate((sTS, sTS+1, sTS+2, sTS+3)):
            e(f"v_writelane_b32 v0, s{r}, {n}")
        e(f"v_writelane_b32 v0, s{sTS}, 63")
        e(f"s_add_u32 s{S_SM}, s58, {16<<20}")
        e(f"s_addc_u32 s{S_SM+1}, s59, 0")
        e(f"s_and_b32 s{S_SM+1}, s{S_SM+1}, 0xffff")
        e(f"s_mov_b32 s{S_SM+2}, 65536")
        e(f"s_mov_b32 s{S_SM+3}, 0x20000")
        e(f"s_lshl_b32 s{sT0}, s2, 8")
        e(f"v_lshlrev_b32 v{vT}, 2, v{vLane}")
        e(f"buffer_store_dword v0, v{vT}, s[{S_SM}:{S_SM+3}], s{sT0} offen")
    e("s_endpgm")
    e("L_spin:")
    e(f"s_mov_b32 s{sSpin}, {1<<17}")
    e("L_spin_loop:")
    e(f"buffer_load_dword v{vFlag}, v{vFlagOff}, s[{S_WS}:{S_WS+3}], 0 offen sc1")
    e("s_waitcnt vmcnt(0)")
    e(f"v_readfirstlane_b32 s{sT0}, v{vFlag}")
    e("s_nop 1")
    e(f"s_and_b32 s{sT0}, s{sT0}, 0x7f")
    e(f"s_cmp_eq_u32 s{sT0}, s{sTag}")
    e("s_cbranch_scc1 L_spin_done")
    e(f"s_sub_u32 s{sSpin}, s{sSpin}, 1")
    e(f"s_cmp_lg_u32 s{sSpin}, 0")
    e("s_cbranch_scc1 L_spin_loop")
    e("s_branch L_spin_done")
    e("L_tagspin:")
    e(f"s_mov_b32 s{sSpin}, {1<<17}")
    e("L_tagspin_loop:")
    e(f"buffer_load_dword v{vFlag}, v{vFlagOff}, s[{S_DBG}:{S_DBG+3}], 0 offen sc1")
    e("s_waitcnt vmcnt(0)")
    e(f"v_readfirstlane_b32 s{sTag}, v{vFlag}")
    e("s_nop 1")
    e(f"s_lshr_b32 s{sTag}, s{sTag}, s{sFlagBit}")
    e(f"s_bitcmp1_b32 s{sTag}, 7")
    e("s_cbranch_scc1 L_tagspin_done")
    e(f"s_sub_u32 s{sSpin}, s{sSpin}, 1")
    e(f"s_cmp_lg_u32 s{sSpin}, 0")
    e("s_cbranch_scc1 L_tagspin_loop")
    e("s_branch L_tagspin_done")
    e("L_end:")
    e("s_endpgm")
    body = "\n".join(E.L)
    out = HEADER
    out += "; Override launch geometry by editing the next line (default: block=256,\n"
    out += f"; @launch grid=(256,1,1) block=(256,1,1) lds={LDS_TOTAL}\n"
    out += f""".amdgcn_target "amdgcn-amd-amdhsa--gfx950"
.text
.globl {NAME}_kernel
.p2align 8
.type {NAME}_kernel,@function
{NAME}_kernel:
{body}
.section .rodata,"a"
.p2align 6
.amdhsa_kernel {NAME}_kernel
  .amdhsa_next_free_vgpr 512
  .amdhsa_next_free_sgpr 102
  .amdhsa_accum_offset 256
  .amdhsa_group_segment_fixed_size 0
  .amdhsa_kernarg_size 96
  .amdhsa_user_sgpr_count 2
  .amdhsa_user_sgpr_kernarg_segment_ptr 1
  .amdhsa_system_sgpr_workgroup_id_x 1
  .amdhsa_float_denorm_mode_32 3
.end_amdhsa_kernel
"""
    if diag:
        out = out.replace("; @launch", f"; STAMPS nst={stamp_next[0]}\n; @launch", 1)
    return out

if __name__ == "__main__":
    kw = {}
    path = None
    for a in sys.argv[1:]:
        if a.endswith(".s"): path = a
        elif a == "diag": kw["diag"] = True
        elif "=" in a:
            n, v = a.split("="); kw[n] = int(v) if v.lstrip("-").isdigit() else v
    s = gen(**kw)
    open(path or "cdna_kernels/" + NAME + ".s", "w").write(s)
```

```python
import sys
from gen_s2 import Em, NAME, HEADER


def gen(diag=False, steps=0, NWB=12, NA=12, tlbwarm=True, poll_lead=10, sig_delay=8, nomfma=0, gearly=8, order="SK", wgrp=2, probe=0, hdiag=0, spindbg=0, halftab=0, pf=0, bfx=1, unp_at=97, spread=4, st0=0, pub_at=12, tag_at=60, n_init=6, rmax=4, inter=1, misc_step=2, acc_at=20, ksplit=0, wfirst=0):
    E = Em(); e = E.e
    DG = NA - 2
    NAD = 8
    WST = 0
    ADED = WST + NWB * 8192
    RING0 = ADED + NAD * 4096 - NA * 4096
    IDX = ADED + NAD * 4096
    XW = IDX + 26624
    B1 = XW + 2048
    W2 = B1 + 1024
    LDS_TOTAL = W2 + 1024
    RED = WST
    assert LDS_TOTAL <= 163840, LDS_TOTAL
    assert NA * 4096 <= 65536 and RING0 >= 0
    def aslot(i):
        r = i % NA
        return (NA - NAD) * 4096 + r * 4096 if r < NAD else (r - NAD) * 4096
    def aslot_wbufs(i):
        a = RING0 + aslot(i)
        return None if a >= ADED else (a - WST) // 8192
    S_IDX, S_TAB, S_W1, S_MISC, S_OUT, S_SM, S_WS, S_DBG = 8, 12, 16, 20, 24, 28, 32, 60
    sW, sKh, sColS, sColK, sColW, sW2048, sW1024, sT0, sT1, sWbase, sFoff = 64, 65, 66, 67, 68, 69, 70, 71, 72, 73, 74
    sKeepRow, sPartOff, sMyOff, sFlagBit = 75, 76, 77, 78
    sWW, sBW, sB2 = 80, 93, 94
    sSpin = 95
    sTS = 96
    stamp_next = [2]
    def stamp(cyc=False):
        if diag:
            n = stamp_next[0]; stamp_next[0] += 1
            e(f"s_memtime s[6:7]" if cyc else "s_memrealtime s[6:7]")
            E.drain_ds()
            e(f"v_writelane_b32 v0, s6, {2*n}")
            e(f"v_writelane_b32 v0, s7, {2*n+1}")
    vLane, vPiece, vWoff, vIdxB, vE0, vE1, vWtr = 1, 2, 3, 4, 5, 6, 7
    vI = {"S": 8, "K": 10}
    vT, vT2, vFlagOff, vFlag = 12, 13, 14, 15
    vEB = 16
    vACC = {"S": 48, "K": 80}
    def wreg(slot, lo, n):
        if slot < 18:
            b = 112 + slot * 8 + lo
            return f"v[{b}:{b+n-1}]"
        b = (slot - 18) * 8 + lo
        return f"a[{b}:{b+n-1}]"

    items = [("S", j) for j in range(50)] + [("K", j) for j in range(50)]
    last_use = {}
    for t, (sub, j) in enumerate(items): last_use[j] = t
    lastS = 49

    e("s_cmp_ge_u32 s2, 256")
    e("s_cbranch_scc1 L_end")
    if diag: e(f"s_memrealtime s[{sTS}:{sTS+1}]")
    e("s_load_dwordx16 s[36:51], s[0:1], 0")
    e("s_load_dwordx4 s[52:55], s[0:1], 64")
    e("s_load_dwordx4 s[56:59], s[0:1], 80")
    e(f"v_and_b32 v{vLane}, 63, v0")
    e(f"v_lshrrev_b32 v{vT}, 6, v0")
    e("s_nop 0")
    e(f"v_readfirstlane_b32 s{sW}, v{vT}")
    if diag: e("v_mov_b32 v0, 0")
    X = vEB
    vQ = X + 20
    for i in range(4):
        e(f"v_add_u32 v{X}, {64*i}, v{vLane}")
        e(f"v_mul_u32_u24 v{X+1}, 5042, v{X}")
        e(f"v_lshrrev_b32 v{X+1}, 16, v{X+1}")
        e(f"v_mul_u32_u24 v{X+2}, 13, v{X+1}")
        e(f"v_sub_u32 v{X+2}, v{X}, v{X+2}")
        e(f"v_mul_u32_u24 v{X+1}, 400, v{X+1}")
        e(f"v_lshl_add_u32 v{vQ+i}, v{X+2}, 4, v{X+1}")
        if i: e(f"v_subrev_u32 v{vQ+i}, {1024*i}, v{vQ+i}")
    e(f"v_bfe_u32 v{X+1}, v{vLane}, 4, 2")
    e(f"v_and_b32 v{X}, 15, v{vLane}")
    e(f"v_lshlrev_b32 v{X+2}, 2, v{X+1}")
    e(f"v_xor_b32 v{X}, v{X}, v{X+2}")
    e(f"v_lshlrev_b32 v{X}, 4, v{X}")
    e(f"v_lshl_add_u32 v{vWoff}, v{X+1}, 8, v{X}")
    e(f"s_lshr_b32 s{sKh}, s2, 3")
    e(f"s_and_b32 s{sKh}, s{sKh}, 1")
    e(f"s_lshr_b32 s{sT0}, s2, 4")
    e(f"s_lshl_b32 s{sT1}, s{sT0}, 3")
    e(f"s_and_b32 s{sKeepRow}, s2, 7")
    e(f"s_add_u32 s{sT1}, s{sT1}, s{sKeepRow}")
    e(f"s_lshl_b32 s{sT1}, s{sT1}, 7")
    e(f"s_lshl_b32 s{sKeepRow}, s{sKh}, 6")
    e(f"s_add_u32 s{sKeepRow}, s{sKeepRow}, s{sT1}")
    e(f"s_mul_i32 s{sT0}, s{sT0}, 25")
    e(f"s_lshr_b32 s{sT0}, s{sT0}, 4")
    e(f"s_lshl_b32 s{sColS}, s{sT0}, 3")
    e(f"s_mov_b32 s{sColK}, s{sColS}")
    e(f"s_lshl_b32 s{sColW}, s{sT0}, 14")
    e(f"s_lshl_b32 s{sW2048}, s{sW}, 11")
    e(f"s_lshl_b32 s{sW1024}, s{sW}, 10")
    e(f"s_mul_i32 s{sWbase}, s{sKh}, {50*8192}")
    e(f"s_add_u32 s{sWbase}, s{sWbase}, s{sW2048}")
    e(f"s_xor_b32 s{sT0}, s{sKeepRow}, 64")
    e(f"s_lshl_b32 s{sT1}, s{sW}, 4")
    e(f"s_add_u32 s{sT0}, s{sT0}, s{sT1}")
    e(f"s_mul_i32 s{sT0}, s{sT0}, 400")
    e(f"s_mul_i32 s{sFoff}, s{sKh}, 192")
    e(f"s_add_u32 s{sT0}, s{sT0}, s{sFoff}")
    e(f"s_mul_i32 s{sT1}, s{sW}, 3328")
    E.drain_ds()
    def srd(d, p, size):
        e(f"s_mov_b32 s{d}, s{p}")
        e(f"s_and_b32 s{d+1}, s{p+1}, 0xffff")
        e(f"s_mov_b32 s{d+2}, {size}")
        e(f"s_mov_b32 s{d+3}, 0x20000")
    srd(S_W1, 46, 3200*256)
    def w_dma_half(slot, q):
        if q == 0:
            buf = WST + (slot % NWB) * 8192
            e(f"s_add_u32 m0, s{sW2048}, {buf}")
            e(f"s_add_u32 s{sFoff}, s{sColW}, s{sWbase}")
        E.vmem(f"buffer_load_dwordx4 v{vWoff}, s[{S_W1}:{S_W1+3}], s{sFoff} offen offset:{q*1024} lds", ("W", slot))
        if q == 1:
            e(f"s_add_u32 s{sColW}, s{sColW}, 8192")
            e(f"s_cmp_ge_u32 s{sColW}, {50*8192}")
            e(f"s_cselect_b32 s{sColW}, 0, s{sColW}")
    def w_dma(slot):
        w_dma_half(slot, 0); w_dma_half(slot, 1)
    for j in range(wfirst):
        w_dma(j)
    srd(S_IDX, 36, 16384*400)
    def idx_dma(ldsbase, tag, lo=0, hi=4, Q=None, soff=None, m0=None):
        Q = vQ if Q is None else Q
        soff = sT0 if soff is None else soff
        e(m0 if m0 else f"s_add_u32 m0, s{sT1}, {ldsbase}")
        e("s_nop 0")
        for i in range(lo, min(hi, 3)):
            E.vmem(f"buffer_load_dwordx4 v{Q+i}, s[{S_IDX}:{S_IDX+3}], s{soff} offen offset:{i*1024} lds", tag)
        if hi == 4:
            e("s_mov_b64 exec, 0xffff")
            E.vmem(f"buffer_load_dwordx4 v{Q+3}, s[{S_IDX}:{S_IDX+3}], s{soff} offen offset:3072 lds", tag)
            e("s_mov_b64 exec, -1")
    if probe: stamp()
    idx_dma(IDX, "idxS")
    if probe:
        E.drain_vm(); stamp()
    e(f"s_lshl_b32 s{sFoff}, s{sKh}, 1")
    e(f"s_sub_u32 s{sFoff}, s{sFoff}, 1")
    e(f"s_mul_i32 s{sFoff}, s{sFoff}, {64*400}")
    e(f"s_add_u32 s{sT0}, s{sT0}, s{sFoff}")
    idx_dma(IDX + 13312, "idxK", 0, 4 - ksplit)
    if ksplit:
        e(f"s_mov_b32 s3, s{sT0}")
        e(f"s_add_u32 s101, s{sT1}, {IDX + 13312}")
    if probe:
        E.drain_vm(); stamp()
    srd(S_TAB, 38, (50000 if halftab else 100000)*64)
    if tlbwarm:
        e("s_load_dword s4, s[38:39], 0")
        for a in (0x200000, 0x400000, 0x600000):
            e(f"s_mov_b32 s5, {a}")
            e("s_load_dword s4, s[38:39], s5")
    if pf:
        e(f"s_lshr_b32 s{sT0}, s2, 3")
        e(f"s_mul_i32 s{sT0}, s{sT0}, 102400")
        e(f"s_mul_i32 s{sFoff}, s{sW}, 25600")
        e(f"s_add_u32 s{sT0}, s{sT0}, s{sFoff}")
        e(f"v_lshlrev_b32 v{vT}, 4, v{vLane}")
        e(f"s_add_u32 m0, s{sW1024}, {ADED}")
        for q in range(25):
            E.vmem(f"buffer_load_dwordx4 v{vT}, s[{S_TAB}:{S_TAB+3}], s{sT0} offen lds", "pf")
            e(f"s_add_u32 s{sT0}, s{sT0}, 1024")
    for j in range(wfirst, n_init):
        w_dma(j)
        if probe and j == 1:
            E.drain_vm(); stamp()
    if not probe: stamp()
    e(f"v_and_b32 v{X}, 3, v{vLane}")
    e(f"v_bfe_u32 v{X+1}, v{vLane}, 4, 2")
    e(f"v_xor_b32 v{X}, v{X}, v{X+1}")
    e(f"v_lshlrev_b32 v{vPiece}, 4, v{X}")
    e(f"v_lshrrev_b32 v{X}, 2, v{vLane}")
    e(f"v_mul_u32_u24 v{vIdxB}, 208, v{X}")
    e(f"s_lshl_b32 s{sT0}, s{sKh}, 3")
    e(f"s_add_u32 s{sT0}, s{sT0}, s{sT1}")
    e(f"s_add_u32 s{sT0}, s{sT0}, {IDX}")
    e(f"v_add_u32 v{vIdxB}, s{sT0}, v{vIdxB}")
    e(f"v_and_b32 v{X}, 31, v{vLane}")
    e(f"v_lshlrev_b32 v{X}, 6, v{X}")
    e(f"v_add_u32 v{X}, {RING0}, v{X}")
    e(f"v_lshrrev_b32 v{X+1}, 5, v{vLane}")
    e(f"v_bfe_u32 v{X+2}, v{vLane}, 2, 2")
    e(f"v_xor_b32 v{X+3}, v{X+1}, v{X+2}")
    e(f"v_lshl_add_u32 v{vE0}, v{X+3}, 4, v{X}")
    e(f"v_xor_b32 v{X+3}, 2, v{X+3}")
    e(f"v_lshl_add_u32 v{vE1}, v{X+3}, 4, v{X}")
    e(f"v_lshl_add_u32 v{X+3}, v{X+1}, 3, v{X+2}")
    e(f"v_lshlrev_b32 v{X+3}, 8, v{X+3}")
    e(f"v_bfe_u32 v{X+4}, v{vLane}, 4, 1")
    e(f"v_lshlrev_b32 v{X+4}, 1, v{X+4}")
    e(f"v_bfe_u32 v{X+5}, v{vLane}, 1, 1")
    e(f"v_add_u32 v{X+4}, v{X+4}, v{X+5}")
    e(f"s_lshl_b32 s{sT0}, s{sW}, 2")
    e(f"v_add_u32 v{X+4}, s{sT0}, v{X+4}")
    e(f"v_lshlrev_b32 v{X+2}, 2, v{X+2}")
    e(f"v_xor_b32 v{X+4}, v{X+4}, v{X+2}")
    e(f"v_and_b32 v{X+5}, 1, v{vLane}")
    e(f"v_lshlrev_b32 v{X+5}, 3, v{X+5}")
    e(f"v_add_u32 v{X+3}, v{X+3}, v{X+5}")
    e(f"v_lshl_add_u32 v{vWtr}, v{X+4}, 4, v{X+3}")
    e(f"v_add_u32 v{vT2}, 65536, v{vWtr}")
    vWtrH = vT2
    e(f"s_lshl_b32 s{sMyOff}, s2, {14 if bfx else 15}")
    e(f"s_xor_b32 s{sT0}, s2, 8")
    e(f"s_lshl_b32 s{sPartOff}, s{sT0}, {14 if bfx else 15}")
    if hdiag:
        e(f"s_lshr_b32 s{sT0}, s{sT0}, 5")
        e(f"s_lshl_b32 s{sT0}, s{sT0}, 2")
    else:
        e(f"s_and_b32 s{sT0}, s{sT0}, 0xfc")
    e(f"v_mov_b32 v{vFlagOff}, s{sT0}")
    e(f"s_lshl_b32 s{sT0}, s{sW}, {12 if bfx else 13}")
    e(f"s_add_u32 s{sMyOff}, s{sMyOff}, s{sT0}")
    e(f"s_add_u32 s{sPartOff}, s{sPartOff}, s{sT0}")
    if hdiag:
        e(f"s_xor_b32 s{sT0}, s2, 8")
        e(f"s_and_b32 s{sT0}, s{sT0}, 31")
        e(f"s_lshl_b32 s{sFlagBit}, 1, s{sT0}")
        e(f"s_and_b32 s{sT0}, s2, 31")
        e(f"s_lshl_b32 s79, 1, s{sT0}")
    else:
        e(f"s_and_b32 s{sT0}, s2, 3")
        e(f"s_lshl_b32 s{sFlagBit}, s{sT0}, 3")
    srd(S_OUT, 54, 16384*2)
    srd(S_DBG, 56, 256)
    assert bfx and not hdiag and not spindbg
    FLAGS = 256 * 16384
    srd(S_WS, 58, FLAGS + 256 * 128)
    sTag, sNext = 100, 79


    def w_tr_piece(slot, s):
        buf = WST + (slot % NWB) * 8192
        base = vWtr if buf < 65536 else vWtrH
        off = buf if buf < 65536 else buf - 65536
        for t in range(2):
            E.dsop(f"ds_read_b64_tr_b16 {wreg(slot, s*4 + t*2, 2)}, {'v%d' % base} offset:{off + s*4096 + t*1024}", ("Wtr", slot))
    def w_tr(slot):
        w_tr_piece(slot, 0); w_tr_piece(slot, 1)
    def misc_loads():
        e(f"v_lshlrev_b32 v{vT}, 4, v{vLane}")
        e(f"s_cmp_lt_u32 s{sW}, 2")
        e(f"s_cselect_b32 s{S_MISC}, s40, s48")
        e(f"s_cselect_b32 s{S_MISC+1}, s41, s49")
        e(f"s_mov_b32 s{S_MISC+2}, 256")
        e(f"s_cselect_b32 s{S_MISC+2}, {16384*26}, s{S_MISC+2}")
        e(f"s_cmp_eq_u32 s{sW}, 3")
        e(f"s_cselect_b32 s{S_MISC}, s50, s{S_MISC}")
        e(f"s_cselect_b32 s{S_MISC+1}, s51, s{S_MISC+1}")
        e(f"s_and_b32 s{S_MISC+1}, s{S_MISC+1}, 0xffff")
        e(f"s_mov_b32 s{S_MISC+3}, 0x20000")
        e(f"s_mul_i32 s{sT0}, s{sKeepRow}, 26")
        e(f"s_add_u32 s{sT0}, s{sT0}, s{sW1024}")
        e(f"s_cmp_lt_u32 s{sW}, 2")
        e(f"s_cselect_b32 s{sT0}, s{sT0}, 0")
        e(f"s_add_u32 m0, s{sW1024}, {XW}")
        e("s_nop 0")
        E.vmem(f"buffer_load_dwordx4 v{vT}, s[{S_MISC}:{S_MISC+3}], s{sT0} offen lds", "misc")
        e(f"v_lshlrev_b32 v{vSm}, 1, v{vLane}")
        for n, (p, size) in enumerate(((42, 26), (44, 2), (52, 2))):
            srd(S_SM, p, size)
            E.vmem(f"buffer_load_ushort v{vSm+1+n}, v{vSm}, s[{S_SM}:{S_SM+3}], 0 offen", "small")
            e("s_nop 0")
    vSm = vACC['K'] + 8

    colreg = {"S": sColS, "K": sColK}
    def idx_read(sub, pair, dst, tmp):
        e(f"v_add_u32 v{tmp}, s{colreg[sub]}, v{vIdxB}")
        E.dsop(f"ds_read_b64 v[{dst}:{dst+1}], v{tmp} offset:{13312 if sub == 'K' else 0}", ("idx", sub, pair))
        c = colreg[sub]
        e(f"s_add_u32 s{c}, s{c}, 8")
        e(f"s_cmp_ge_u32 s{c}, 200")
        e(f"s_cselect_b32 s{c}, 0, s{c}")
    def g_issue(i, reg):
        slot = RING0 + aslot(i)
        e(f"v_lshl_add_u32 v{reg}, v{reg}, 6, v{vPiece}")
        e(f"s_add_u32 m0, s{sW1024}, {slot}")
        e("s_nop 0")
        E.vmem(f"buffer_load_dwordx4 v{reg}, s[{S_TAB}:{S_TAB+3}], 0 offen lds", ("G", i))

    rmax = max(rmax, wgrp)
    ngrp = (50 + wgrp - 1) // wgrp
    groups = [list(range(g * wgrp, min(50, (g + 1) * wgrp))) for g in range(ngrp)]
    nxt_w = n_init
    misc_at = 2
    tb = X + 0
    early_done = False
    for g, grp in enumerate(groups):
        E.wait_vm([("W", j) for j in grp])
        if g > 0: E.wait_ds([("Wtr", j) for j in groups[g-1]])
        e("s_barrier")
        if g == 0 and not probe: stamp()
        cnt = 0
        dmas = []
        while nxt_w < 50 and nxt_w < grp[0] + NWB and cnt < rmax:
            dmas += [(nxt_w, 0), (nxt_w, 1)]; nxt_w += 1; cnt += 1
        trs = [(j, sx) for j in grp for sx in range(2)] if inter else []
        while dmas or trs:
            if trs and inter == 1: w_tr_piece(*trs.pop(0))
            if dmas: w_dma_half(*dmas.pop(0))
            if trs and inter == 2: w_tr_piece(*trs.pop(0))
        if nxt_w >= 50 and not early_done:
            early_done = True
            E.wait_vm(["idxS"])
            for n in range(gearly // 2):
                idx_read("S", n, tb + 2 * n, vT)
            E.wait_ds([("idx", "S", gearly // 2 - 1)])
            for i in range(gearly):
                assert aslot_wbufs(i) is None
                g_issue(i, tb + i)
            if not probe: stamp()
        if not inter:
            for j in grp: w_tr(j)
    assert early_done
    def small_scalars():
        E.wait_vm(["small"])
        for n in range(3):
            e(f"v_lshlrev_b32 v{vSm+1+n}, 16, v{vSm+1+n}")
        e("s_nop 0")
        for j in range(13):
            e(f"v_readlane_b32 s{sWW+j}, v{vSm+1}, {j}")
        e(f"v_readlane_b32 s{sBW}, v{vSm+2}, 0")
        e(f"v_readlane_b32 s{sB2}, v{vSm+3}, 0")
    def init_accK():
        e(f"v_lshrrev_b32 v{vT}, 5, v{vLane}")
        e(f"v_lshlrev_b32 v{vT}, 3, v{vT}")
        e(f"s_lshl_b32 s{sT0}, s{sW}, 6")
        e(f"v_add_u32 v{vT}, s{sT0}, v{vT}")
        e(f"v_add_u32 v{vT}, {B1}, v{vT}")
        a = vACC["K"]
        for q in range(4):
            E.dsop(f"ds_read_b64 v[{a+16+2*q}:{a+17+2*q}], v{vT} offset:{16*q}", "b1")
        E.wait_ds(["b1"])
        for q in range(4):
            s0 = a + 16 + 2 * q
            e(f"v_lshlrev_b32 v{a+4*q}, 16, v{s0}")
            e(f"v_and_b32 v{a+4*q+1}, 0xffff0000, v{s0}")
            e(f"v_lshlrev_b32 v{a+4*q+2}, 16, v{s0+1}")
            e(f"v_and_b32 v{a+4*q+3}, 0xffff0000, v{s0+1}")
        for r in range(16):
            e(f"v_mov_b32 v{a+16+r}, v{a+r}")

    def fold_load():
        e(f"s_lshl_b32 s{sT0}, s2, 7")
        e(f"s_add_u32 s{sT0}, s{sT0}, {FLAGS}")
        e(f"v_mov_b32 v{vT}, 0")
        E.vmem(f"buffer_load_dword v{vFlag}, v{vT}, s[{S_WS}:{S_WS+3}], s{sT0} offen sc1", "fold")
    def publish():
        E.wait_vm(["fold"])
        e(f"v_readfirstlane_b32 s{sNext}, v{vFlag}")
        e("s_nop 1")
        e(f"s_add_u32 s{sNext}, s{sNext}, 1")
        e(f"s_and_b32 s{sT0}, s{sNext}, 0x7f")
        e(f"s_or_b32 s{sT0}, s{sT0}, 0x80")
        e(f"s_and_b32 s{sFoff}, s2, 3")
        e(f"s_lshl_b32 s{sFoff}, s{sFoff}, 3")
        e(f"s_lshl_b32 s{sT0}, s{sT0}, s{sFoff}")
        e(f"v_mov_b32 v{vFlag}, s{sT0}")
        e(f"s_and_b32 s{sFoff}, s2, 0xfc")
        e(f"v_mov_b32 v{vT}, s{sFoff}")
        e(f"s_cmp_eq_u32 s{sW}, 0")
        e(f"s_cselect_b32 s{sT0}, 1, 0")
        e(f"s_mov_b32 exec_hi, 0")
        e(f"s_mov_b32 exec_lo, s{sT0}")
        E.vmem(f"buffer_atomic_add v{vFlag}, v{vT}, s[{S_DBG}:{S_DBG+3}], 0 offen", "pub")
        e("s_mov_b64 exec, -1")
    E.drain_ds()
    e("s_barrier")
    for n in range(gearly // 2, DG // 2):
        idx_read("S", n, tb + 2 * (n - gearly // 2), vT)
    E.drain_ds()
    for i in range(gearly, DG):
        g_issue(i, tb + (i - gearly))
    if not probe: stamp()
    pair_state = {"S": None, "K": None}
    nxt_pair = {"S": DG // 2, "K": 0}
    assert DG % 2 == 0 and gearly % 2 == 0

    def ensure_pair(sub, pair):
        if pair_state[sub] != pair and pair < 25:
            assert pair == nxt_pair[sub], (sub, pair, nxt_pair)
            idx_read(sub, pair, vI[sub], vT2)
            pair_state[sub] = pair
            nxt_pair[sub] = pair + 1
    def e_reads(i):
        buf = vEB + (i % 2) * 16
        slot = aslot(i)
        for s in range(2):
            for rb in range(2):
                d = buf + (s * 2 + rb) * 4
                E.dsop(f"ds_read_b128 v[{d}:{d+3}], v{vE1 if s else vE0} offset:{slot + rb*2048}", ("E", i))

    sig_step = lastS + 1 + sig_delay + (st0 + 3 * spread if spread else 0)
    sig_step += sig_step & 1
    part_ok = max(last_use[j] for j in range(6)) + 1
    load_step = max(part_ok, 100 - poll_lead + 4, sig_step + 5)
    poll_step = load_step - 4
    w2_step = max(part_ok, 70)
    add_step = 98
    vW2 = 144
    vWide = 160
    assert last_use[6] < w2_step and last_use[7] < w2_step

    for t in range(-2, 100):
        if t % 2 == 0:
            need = [("G", i) for i in (t + 1, t + 2) if 0 <= i < 100]
            if t == sig_step: need.append("Pst")
            if t == -2: need.append("idxK")
            if t == acc_at: need.append("misc")
            if ksplit and t == acc_at - 4: need.append("idxK2")
            if need: E.wait_vm(need)
            e("s_barrier")
            if t == sig_step:
                e(f"s_lshl_b32 s{sT1}, s2, 7")
                e(f"s_add_u32 s{sT1}, s{sT1}, {FLAGS}")
                e(f"v_mov_b32 v{vT}, 0")
                e(f"v_mov_b32 v{vFlag}, s{sNext}")
                e(f"s_cmp_eq_u32 s{sW}, 0")
                e(f"s_cselect_b32 s{sT0}, 1, 0")
                e(f"s_mov_b32 exec_hi, 0")
                e(f"s_mov_b32 exec_lo, s{sT0}")
                E.vmem(f"buffer_store_dword v{vFlag}, v{vT}, s[{S_WS}:{S_WS+3}], s{sT1} offen sc1", "sig")
                e("s_mov_b64 exec, -1")
                e("s_nop 3")
        if steps and t in (0, 10, 20, 30, 40, 46, 50, 52, 54, 56, 58, 60, 64, 70, 80, 90, 94, 96): stamp()
        mf = []
        if t >= 0:
            sub, j = items[t]
            buf = vEB + (t % 2) * 16
            a = vACC[sub]
            E.wait_ds([("E", t)])
            for s in range(2):
                for rb in range(2):
                    c = f"v[{a+rb*16}:{a+rb*16+15}]"
                    src = "0" if (sub == "S" and j == 0 and s == 0) else c
                    mf.append(f"v_mfma_f32_32x32x16_bf16 {c}, {wreg(j, s*4, 4)}, v[{buf+(s*2+rb)*4}:{buf+(s*2+rb)*4+3}], {src}")
        def mfma(n):
            if n < len(mf) and not nomfma: e(mf[n])
        mfma(0)
        if 0 <= t + 1 < 100: e_reads(t + 1)
        mfma(1)
        gi = t + DG
        if DG <= gi < 100 and t >= 0:
            sub2, j2 = items[gi]
            assert pair_state[sub2] == (j2 >> 1), (t, gi, sub2, j2, pair_state)
            E.wait_ds([("idx", sub2, j2 >> 1)])
            g_issue(gi, vI[sub2] + (j2 & 1))
            if j2 & 1: pair_state[sub2] = None
        mfma(2)
        mfma(3)
        for look in (t + 1 + DG, t + 2 + DG):
            if DG <= look < 100 and t >= -1:
                sub3, j3 = items[look]
                if pair_state[sub3] is None and (j3 & 1) == 0:
                    ensure_pair(sub3, j3 >> 1)
        if t == lastS:
            e("s_nop 15")
            a = vACC["S"]
            e(f"v_lshlrev_b32 v{vT}, 4, v{vLane}")
            if bfx:
                for r in range(16):
                    e(f"v_cvt_pk_bf16_f32 v{a+r}, v{a+2*r}, v{a+2*r+1}")
                if not spread:
                    for q in range(4):
                        E.vmem(f"buffer_store_dwordx4 v[{a+4*q}:{a+4*q+3}], v{vT}, s[{S_WS}:{S_WS+3}], s{sMyOff} offen offset:{q*1024} sc1", "Pst")
            else:
                e(f"s_add_u32 s{sT0}, s{sMyOff}, 4096")
                for q in range(8):
                    so = sMyOff if q < 4 else sT0
                    E.vmem(f"buffer_store_dwordx4 v[{a+4*q}:{a+4*q+3}], v{vT}, s[{S_WS}:{S_WS+3}], s{so} offen offset:{(q%4)*1024} sc1", "Pst")
            if not steps:
                stamp()
                stamp(cyc=True)
        if spread and bfx and lastS + st0 <= t < lastS + st0 + 4 * spread and (t - lastS - st0) % spread == 0:
            q = (t - lastS - st0) // spread
            a = vACC["S"]
            e(f"v_lshlrev_b32 v{vT}, 4, v{vLane}")
            E.vmem(f"buffer_store_dwordx4 v[{a+4*q}:{a+4*q+3}], v{vT}, s[{S_WS}:{S_WS+3}], s{sMyOff} offen offset:{q*1024} sc1", "Pst")
        if ksplit and t == -1:
            Q = vACC["K"] + 16
            for i in range(4 - ksplit, 4):
                e(f"v_add_u32 v{Q+4}, {64*i}, v{vLane}")
                e(f"v_mul_u32_u24 v{Q+5}, 5042, v{Q+4}")
                e(f"v_lshrrev_b32 v{Q+5}, 16, v{Q+5}")
                e(f"v_mul_u32_u24 v{Q+6}, 13, v{Q+5}")
                e(f"v_sub_u32 v{Q+6}, v{Q+4}, v{Q+6}")
                e(f"v_mul_u32_u24 v{Q+5}, 400, v{Q+5}")
                e(f"v_lshl_add_u32 v{Q+i}, v{Q+6}, 4, v{Q+5}")
                e(f"v_subrev_u32 v{Q+i}, {1024*i}, v{Q+i}")
            idx_dma(0, "idxK2", 4 - ksplit, 4, Q=Q, soff=3, m0="s_mov_b32 m0, s101")
        if t == misc_step - 2: fold_load()
        if t == misc_step: misc_loads()
        if t == pub_at:
            publish()
            e("s_nop 3")
        if t == acc_at - 2: small_scalars()
        if t == acc_at: init_accK()
        if t == tag_at:
            E.vmem(f"buffer_load_dword v{vFlag}, v{vFlagOff}, s[{S_DBG}:{S_DBG+3}], 0 offen sc1", "tag")
        if t == tag_at + 8:
            E.wait_vm(["tag"])
            e(f"v_readfirstlane_b32 s{sTag}, v{vFlag}")
            e("s_nop 1")
            e(f"s_lshr_b32 s{sTag}, s{sTag}, s{sFlagBit}")
            e(f"s_bitcmp1_b32 s{sTag}, 7")
            e("s_cbranch_scc0 L_tagspin")
            e("L_tagspin_done:")
            e(f"s_and_b32 s{sTag}, s{sTag}, 0x7f")
            e(f"s_xor_b32 s{sT0}, s2, 8")
            e(f"s_lshl_b32 s{sT0}, s{sT0}, 7")
            e(f"s_add_u32 s{sT0}, s{sT0}, {FLAGS}")
            e(f"v_mov_b32 v{vFlagOff}, s{sT0}")
        if t == w2_step:
            e(f"v_lshrrev_b32 v{vT}, 5, v{vLane}")
            e(f"v_lshlrev_b32 v{vT}, 3, v{vT}")
            e(f"s_lshl_b32 s{sT0}, s{sW}, 6")
            e(f"v_add_u32 v{vT}, s{sT0}, v{vT}")
            e(f"v_add_u32 v{vT}, {W2}, v{vT}")
            for q in range(4):
                E.dsop(f"ds_read_b64 v[{112+2*q}:{112+2*q+1}], v{vT} offset:{16*q}", "w2")
            e(f"v_mul_u32_u24 v{vT}, 26, v{vLane}")
            e(f"v_add_u32 v{vT}, {XW}, v{vT}")
            for j in range(13):
                E.dsop(f"ds_read_u16 v{120+j}, v{vT} offset:{2*j}", "xw")
        if t == w2_step + 1:
            E.wait_ds(["xw"])
            for q in range(4):
                s0 = 112 + 2 * q
                e(f"v_lshlrev_b32 v{vW2+4*q}, 16, v{s0}")
                e(f"v_and_b32 v{vW2+4*q+1}, 0xffff0000, v{s0}")
                e(f"v_lshlrev_b32 v{vW2+4*q+2}, 16, v{s0+1}")
                e(f"v_and_b32 v{vW2+4*q+3}, 0xffff0000, v{s0+1}")
            e(f"v_mov_b32 v{vWide}, s{sBW}")
            for j in range(13):
                e(f"v_lshlrev_b32 v{120+j}, 16, v{120+j}")
                e(f"v_fmac_f32 v{vWide}, s{sWW+j}, v{120+j}")
            e(f"v_add_f32 v{vWide}, s{sB2}, v{vWide}")
        if t == poll_step:
            E.vmem(f"buffer_load_dword v{vFlag}, v{vFlagOff}, s[{S_WS}:{S_WS+3}], 0 offen sc1", "poll")
        if t == load_step:
            E.wait_vm(["poll"])
            e(f"v_readfirstlane_b32 s{sT0}, v{vFlag}")
            e("s_nop 1")
            e(f"s_and_b32 s{sT0}, s{sT0}, 0x7f")
            e(f"s_cmp_eq_u32 s{sT0}, s{sTag}")
            e("s_cbranch_scc0 L_spin")
            e("L_spin_done:")
            e(f"v_lshlrev_b32 v{vT}, 4, v{vLane}")
            if bfx:
                for q in range(4):
                    E.vmem(f"buffer_load_dwordx4 v[{164+4*q}:{164+4*q+3}], v{vT}, s[{S_WS}:{S_WS+3}], s{sPartOff} offen offset:{q*1024} sc1", "Pld")
            else:
                e(f"s_add_u32 s{sT0}, s{sPartOff}, 4096")
                for q in range(8):
                    so = sPartOff if q < 4 else sT0
                    E.vmem(f"buffer_load_dwordx4 v[{112+4*q}:{112+4*q+3}], v{vT}, s[{S_WS}:{S_WS+3}], s{so} offen offset:{(q%4)*1024} sc1", "Pld")
        if bfx and t == unp_at:
            E.wait_vm(["Pld"])
            for r in range(16):
                e(f"v_lshlrev_b32 v{112+2*r}, 16, v{164+r}")
                e(f"v_and_b32 v{113+2*r}, 0xffff0000, v{164+r}")
    assert tag_at + 8 < poll_step and poll_step > sig_step and acc_at % 2 == 0 and misc_step + 8 <= acc_at - 2 and acc_at < 48
    assert w2_step + 1 < load_step < unp_at and max(last_use[j] for j in range(9)) < load_step
    stamp()
    if not steps: stamp(cyc=True)
    e(f"v_lshrrev_b32 v{vT}, 5, v{vLane}")
    e(f"v_lshlrev_b32 v{vT}, 8, v{vT}")
    e(f"v_and_b32 v{vT2}, 31, v{vLane}")
    e(f"v_lshl_add_u32 v{vT}, v{vT2}, 2, v{vT}")
    e(f"s_lshl_b32 s{sT0}, s{sW}, 9")
    e(f"v_add_u32 v{vT}, s{sT0}, v{vT}")
    a = vACC["K"]
    R = vEB
    for rb in range(2):
        e(f"v_mov_b32 v{R+rb}, 0")
        e(f"v_mov_b32 v{R+2+rb}, 0")
    E.wait_vm(["Pld"])
    e("s_nop 7")
    for rb in range(2):
        for r in range(16):
            x = a + rb * 16 + r
            e(f"v_add_f32 v{x}, v{x}, v{112+rb*16+r}")
        for r in range(16):
            x = a + rb * 16 + r
            e(f"v_max_f32 v{x}, 0, v{x}")
        for r in range(16):
            x = a + rb * 16 + r
            e(f"v_fmac_f32 v{R+rb+2*(r&1)}, v{x}, v{vW2+r}")
        e(f"v_add_f32 v{R+rb}, v{R+rb}, v{R+rb+2}")
        E.dsop(f"ds_write_b32 v{vT}, v{R+rb} offset:{RED+128*rb}", "red")
    E.drain_ds()
    e("s_barrier")
    e(f"s_cmp_lg_u32 s{sW}, 0")
    e("s_cbranch_scc1 L_end")
    e(f"v_lshlrev_b32 v{vT}, 2, v{vLane}")
    Y = vEB + 12
    for kk in range(8):
        e(f"ds_read_b32 v{Y+kk}, v{vT} offset:{RED + kk*256}")
    e(f"s_lshl_b32 s{sT0}, s{sKeepRow}, 1")
    e(f"v_lshlrev_b32 v{vT}, 1, v{vLane}")
    e("s_waitcnt lgkmcnt(0)")
    e(f"v_add_f32 v{Y}, v{Y}, v{Y+1}")
    e(f"v_add_f32 v{Y+2}, v{Y+2}, v{Y+3}")
    e(f"v_add_f32 v{Y+4}, v{Y+4}, v{Y+5}")
    e(f"v_add_f32 v{Y+6}, v{Y+6}, v{Y+7}")
    e(f"v_add_f32 v{Y}, v{Y}, v{Y+2}")
    e(f"v_add_f32 v{Y+4}, v{Y+4}, v{Y+6}")
    e(f"v_add_f32 v{Y}, v{Y}, v{vWide}")
    e(f"v_add_f32 v{Y}, v{Y}, v{Y+4}")
    e(f"v_mul_f32 v{Y}, 0xbfb8aa3b, v{Y}")
    e(f"v_exp_f32 v{Y}, v{Y}")
    e("s_nop 0")
    e(f"v_add_f32 v{Y}, 1.0, v{Y}")
    e(f"v_rcp_f32 v{Y}, v{Y}")
    e("s_nop 0")
    e(f"v_cvt_pk_bf16_f32 v{Y}, v{Y}, v{Y}")
    e(f"buffer_store_short v{Y}, v{vT}, s[{S_OUT}:{S_OUT+3}], s{sT0} offen")
    if diag and hdiag:
        e(f"s_memrealtime s[{sTS+2}:{sTS+3}]")
        e("s_waitcnt lgkmcnt(0)")
        e(f"s_not_b32 s{sT0}, s{sTS}")
        e(f"v_writelane_b32 v0, s{sT0}, 0")
        e(f"v_writelane_b32 v0, s{sTS+2}, 1")
        e(f"v_mov_b32 v{vT}, 0x100")
        for lane, slot in ((0, 8), (1, 9), (4, 10), (6, 11), (8, 12), (10, 13), (12, 14), (16, 15)):
            e(f"s_mov_b32 s{sT0}, {4*slot}")
            e(f"v_writelane_b32 v{vT}, s{sT0}, {lane}")
        e(f"buffer_atomic_umax v0, v{vT}, s[{S_DBG}:{S_DBG+3}], 0 offen")
    elif diag:
        e(f"s_memrealtime s[{sTS+2}:{sTS+3}]")
        e("s_waitcnt lgkmcnt(0)")
        for n, r in enumerate((sTS, sTS+1, sTS+2, sTS+3)):
            e(f"v_writelane_b32 v0, s{r}, {n}")
        e(f"v_writelane_b32 v0, s{sTS}, 63")
        e(f"s_add_u32 s{S_SM}, s58, {16<<20}")
        e(f"s_addc_u32 s{S_SM+1}, s59, 0")
        e(f"s_and_b32 s{S_SM+1}, s{S_SM+1}, 0xffff")
        e(f"s_mov_b32 s{S_SM+2}, 65536")
        e(f"s_mov_b32 s{S_SM+3}, 0x20000")
        e(f"s_lshl_b32 s{sT0}, s2, 8")
        e(f"v_lshlrev_b32 v{vT}, 2, v{vLane}")
        e(f"buffer_store_dword v0, v{vT}, s[{S_SM}:{S_SM+3}], s{sT0} offen")
    e("s_endpgm")
    e("L_spin:")
    e(f"s_mov_b32 s{sSpin}, {1<<17}")
    e("L_spin_loop:")
    e(f"buffer_load_dword v{vFlag}, v{vFlagOff}, s[{S_WS}:{S_WS+3}], 0 offen sc1")
    e("s_waitcnt vmcnt(0)")
    e(f"v_readfirstlane_b32 s{sT0}, v{vFlag}")
    e("s_nop 1")
    e(f"s_and_b32 s{sT0}, s{sT0}, 0x7f")
    e(f"s_cmp_eq_u32 s{sT0}, s{sTag}")
    e("s_cbranch_scc1 L_spin_done")
    e(f"s_sub_u32 s{sSpin}, s{sSpin}, 1")
    e(f"s_cmp_lg_u32 s{sSpin}, 0")
    e("s_cbranch_scc1 L_spin_loop")
    e("s_branch L_spin_done")
    e("L_tagspin:")
    e(f"s_mov_b32 s{sSpin}, {1<<17}")
    e("L_tagspin_loop:")
    e(f"buffer_load_dword v{vFlag}, v{vFlagOff}, s[{S_DBG}:{S_DBG+3}], 0 offen sc1")
    e("s_waitcnt vmcnt(0)")
    e(f"v_readfirstlane_b32 s{sTag}, v{vFlag}")
    e("s_nop 1")
    e(f"s_lshr_b32 s{sTag}, s{sTag}, s{sFlagBit}")
    e(f"s_bitcmp1_b32 s{sTag}, 7")
    e("s_cbranch_scc1 L_tagspin_done")
    e(f"s_sub_u32 s{sSpin}, s{sSpin}, 1")
    e(f"s_cmp_lg_u32 s{sSpin}, 0")
    e("s_cbranch_scc1 L_tagspin_loop")
    e("s_branch L_tagspin_done")
    e("L_end:")
    e("s_endpgm")
    body = "\n".join(E.L)
    out = HEADER
    out += (
        "; Wide & Deep forward, one launch, 256 workgroups of 4 waves (one per CU).\n"
        "; Workgroup = 128 batch rows x 50 of the 100 fields (K split in two). Its half of W1 (1600 x 128 bf16) is loaded once\n"
        "; through LDS (DMA + transposing reads) and stays in 400 registers per wave (wave w owns hidden units 32w..32w+31).\n"
        "; Embedding rows are gathered by LDS-DMA into a ring of 64-row tiles and fed to 32x32x16 MFMAs (D = W1^T * E^T).\n"
        "; The partial sums of 64 rows go to the partner workgroup (id ^ 8) through d_ws as bf16; the other 64 rows are finished\n"
        "; here: + partner partial + b1, ReLU, dot with W2, + wide part, sigmoid. Hand-off: sc1 stores, then a flag word on a\n"
        "; private d_ws line; the flag value is (old content + 1) and its low 7 bits are announced through d_debug.\n")
    out += "; Override launch geometry by editing the next line (default: block=256,\n"
    out += f"; @launch grid=(256,1,1) block=(256,1,1) lds={LDS_TOTAL}\n"
    out += f""".amdgcn_target "amdgcn-amd-amdhsa--gfx950"
.text
.globl {NAME}_kernel
.p2align 8
.type {NAME}_kernel,@function
{NAME}_kernel:
{body}
.section .rodata,"a"
.p2align 6
.amdhsa_kernel {NAME}_kernel
  .amdhsa_next_free_vgpr 512
  .amdhsa_next_free_sgpr 102
  .amdhsa_accum_offset 256
  .amdhsa_group_segment_fixed_size 0
  .amdhsa_kernarg_size 96
  .amdhsa_user_sgpr_count 2
  .amdhsa_user_sgpr_kernarg_segment_ptr 1
  .amdhsa_system_sgpr_workgroup_id_x 1
  .amdhsa_float_denorm_mode_32 3
.end_amdhsa_kernel
"""
    if diag:
        out = out.replace("; @launch", f"; STAMPS nst={stamp_next[0]}\n; @launch", 1)
    return out

if __name__ == "__main__":
    kw = {}
    path = None
    for a in sys.argv[1:]:
        if a.endswith(".s"): path = a
        elif a == "diag": kw["diag"] = True
        elif "=" in a:
            n, v = a.split("="); kw[n] = int(v) if v.lstrip("-").isdigit() else v
    s = gen(**kw)
    open(path or "cdna_kernels/" + NAME + ".s", "w").write(s)
```

```python
import sys
from gen_s2 import Em, NAME, HEADER


def gen(diag=False, steps=0, NWB=12, NA=12, tlbwarm=True, poll_lead=10, sig_delay=8, nomfma=0, gearly=8, order="SK", wgrp=2, probe=0, hdiag=0, spindbg=0, halftab=0, pf=0, bfx=1, unp_at=97, spread=4, st0=0, pub_at=12, tag_at=60, n_init=6, rmax=4, inter=1, misc_step=2, acc_at=20, ksplit=0, wfirst=0, pubbyte=1):
    E = Em(); e = E.e
    DG = NA - 2
    NAD = 8
    WST = 0
    ADED = WST + NWB * 8192
    RING0 = ADED + NAD * 4096 - NA * 4096
    IDX = ADED + NAD * 4096
    XW = IDX + 26624
    B1 = XW + 2048
    W2 = B1 + 1024
    LDS_TOTAL = W2 + 1024
    RED = WST
    assert LDS_TOTAL <= 163840, LDS_TOTAL
    assert NA * 4096 <= 65536 and RING0 >= 0
    def aslot(i):
        r = i % NA
        return (NA - NAD) * 4096 + r * 4096 if r < NAD else (r - NAD) * 4096
    def aslot_wbufs(i):
        a = RING0 + aslot(i)
        return None if a >= ADED else (a - WST) // 8192
    S_IDX, S_TAB, S_W1, S_MISC, S_OUT, S_SM, S_WS, S_DBG = 8, 12, 16, 20, 24, 28, 32, 60
    sW, sKh, sColS, sColK, sColW, sW2048, sW1024, sT0, sT1, sWbase, sFoff = 64, 65, 66, 67, 68, 69, 70, 71, 72, 73, 74
    sKeepRow, sPartOff, sMyOff, sFlagBit = 75, 76, 77, 78
    sWW, sBW, sB2 = 80, 93, 94
    sSpin = 95
    sTS = 96
    stamp_next = [2]
    def stamp(cyc=False):
        if diag:
            n = stamp_next[0]; stamp_next[0] += 1
            e(f"s_memtime s[6:7]" if cyc else "s_memrealtime s[6:7]")
            E.drain_ds()
            e(f"v_writelane_b32 v0, s6, {2*n}")
            e(f"v_writelane_b32 v0, s7, {2*n+1}")
    vLane, vPiece, vWoff, vIdxB, vE0, vE1, vWtr = 1, 2, 3, 4, 5, 6, 7
    vI = {"S": 8, "K": 10}
    vT, vT2, vFlagOff, vFlag = 12, 13, 14, 15
    vEB = 16
    vACC = {"S": 48, "K": 80}
    def wreg(slot, lo, n):
        if slot < 18:
            b = 112 + slot * 8 + lo
            return f"v[{b}:{b+n-1}]"
        b = (slot - 18) * 8 + lo
        return f"a[{b}:{b+n-1}]"

    items = [("S", j) for j in range(50)] + [("K", j) for j in range(50)]
    last_use = {}
    for t, (sub, j) in enumerate(items): last_use[j] = t
    lastS = 49

    e("s_cmp_ge_u32 s2, 256")
    e("s_cbranch_scc1 L_end")
    if diag: e(f"s_memrealtime s[{sTS}:{sTS+1}]")
    e("s_load_dwordx16 s[36:51], s[0:1], 0")
    e("s_load_dwordx4 s[52:55], s[0:1], 64")
    e("s_load_dwordx4 s[56:59], s[0:1], 80")
    e(f"v_and_b32 v{vLane}, 63, v0")
    e(f"v_lshrrev_b32 v{vT}, 6, v0")
    e("s_nop 0")
    e(f"v_readfirstlane_b32 s{sW}, v{vT}")
    if diag: e("v_mov_b32 v0, 0")
    X = vEB
    vQ = X + 20
    for i in range(4):
        e(f"v_add_u32 v{X}, {64*i}, v{vLane}")
        e(f"v_mul_u32_u24 v{X+1}, 5042, v{X}")
        e(f"v_lshrrev_b32 v{X+1}, 16, v{X+1}")
        e(f"v_mul_u32_u24 v{X+2}, 13, v{X+1}")
        e(f"v_sub_u32 v{X+2}, v{X}, v{X+2}")
        e(f"v_mul_u32_u24 v{X+1}, 400, v{X+1}")
        e(f"v_lshl_add_u32 v{vQ+i}, v{X+2}, 4, v{X+1}")
        if i: e(f"v_subrev_u32 v{vQ+i}, {1024*i}, v{vQ+i}")
    e(f"v_bfe_u32 v{X+1}, v{vLane}, 4, 2")
    e(f"v_and_b32 v{X}, 15, v{vLane}")
    e(f"v_lshlrev_b32 v{X+2}, 2, v{X+1}")
    e(f"v_xor_b32 v{X}, v{X}, v{X+2}")
    e(f"v_lshlrev_b32 v{X}, 4, v{X}")
    e(f"v_lshl_add_u32 v{vWoff}, v{X+1}, 8, v{X}")
    e(f"s_lshr_b32 s{sKh}, s2, 3")
    e(f"s_and_b32 s{sKh}, s{sKh}, 1")
    e(f"s_lshr_b32 s{sT0}, s2, 4")
    e(f"s_lshl_b32 s{sT1}, s{sT0}, 3")
    e(f"s_and_b32 s{sKeepRow}, s2, 7")
    e(f"s_add_u32 s{sT1}, s{sT1}, s{sKeepRow}")
    e(f"s_lshl_b32 s{sT1}, s{sT1}, 7")
    e(f"s_lshl_b32 s{sKeepRow}, s{sKh}, 6")
    e(f"s_add_u32 s{sKeepRow}, s{sKeepRow}, s{sT1}")
    e(f"s_mul_i32 s{sT0}, s{sT0}, 25")
    e(f"s_lshr_b32 s{sT0}, s{sT0}, 4")
    e(f"s_lshl_b32 s{sColS}, s{sT0}, 3")
    e(f"s_mov_b32 s{sColK}, s{sColS}")
    e(f"s_lshl_b32 s{sColW}, s{sT0}, 14")
    e(f"s_lshl_b32 s{sW2048}, s{sW}, 11")
    e(f"s_lshl_b32 s{sW1024}, s{sW}, 10")
    e(f"s_mul_i32 s{sWbase}, s{sKh}, {50*8192}")
    e(f"s_add_u32 s{sWbase}, s{sWbase}, s{sW2048}")
    e(f"s_xor_b32 s{sT0}, s{sKeepRow}, 64")
    e(f"s_lshl_b32 s{sT1}, s{sW}, 4")
    e(f"s_add_u32 s{sT0}, s{sT0}, s{sT1}")
    e(f"s_mul_i32 s{sT0}, s{sT0}, 400")
    e(f"s_mul_i32 s{sFoff}, s{sKh}, 192")
    e(f"s_add_u32 s{sT0}, s{sT0}, s{sFoff}")
    e(f"s_mul_i32 s{sT1}, s{sW}, 3328")
    E.drain_ds()
    def srd(d, p, size):
        e(f"s_mov_b32 s{d}, s{p}")
        e(f"s_and_b32 s{d+1}, s{p+1}, 0xffff")
        e(f"s_mov_b32 s{d+2}, {size}")
        e(f"s_mov_b32 s{d+3}, 0x20000")
    srd(S_W1, 46, 3200*256)
    def w_dma_half(slot, q):
        if q == 0:
            buf = WST + (slot % NWB) * 8192
            e(f"s_add_u32 m0, s{sW2048}, {buf}")
            e(f"s_add_u32 s{sFoff}, s{sColW}, s{sWbase}")
        E.vmem(f"buffer_load_dwordx4 v{vWoff}, s[{S_W1}:{S_W1+3}], s{sFoff} offen offset:{q*1024} lds", ("W", slot))
        if q == 1:
            e(f"s_add_u32 s{sColW}, s{sColW}, 8192")
            e(f"s_cmp_ge_u32 s{sColW}, {50*8192}")
            e(f"s_cselect_b32 s{sColW}, 0, s{sColW}")
    def w_dma(slot):
        w_dma_half(slot, 0); w_dma_half(slot, 1)
    for j in range(wfirst):
        w_dma(j)
    srd(S_IDX, 36, 16384*400)
    def idx_dma(ldsbase, tag, lo=0, hi=4, Q=None, soff=None, m0=None):
        Q = vQ if Q is None else Q
        soff = sT0 if soff is None else soff
        e(m0 if m0 else f"s_add_u32 m0, s{sT1}, {ldsbase}")
        e("s_nop 0")
        for i in range(lo, min(hi, 3)):
            E.vmem(f"buffer_load_dwordx4 v{Q+i}, s[{S_IDX}:{S_IDX+3}], s{soff} offen offset:{i*1024} lds", tag)
        if hi == 4:
            e("s_mov_b64 exec, 0xffff")
            E.vmem(f"buffer_load_dwordx4 v{Q+3}, s[{S_IDX}:{S_IDX+3}], s{soff} offen offset:3072 lds", tag)
            e("s_mov_b64 exec, -1")
    if probe: stamp()
    idx_dma(IDX, "idxS")
    if probe:
        E.drain_vm(); stamp()
    e(f"s_lshl_b32 s{sFoff}, s{sKh}, 1")
    e(f"s_sub_u32 s{sFoff}, s{sFoff}, 1")
    e(f"s_mul_i32 s{sFoff}, s{sFoff}, {64*400}")
    e(f"s_add_u32 s{sT0}, s{sT0}, s{sFoff}")
    idx_dma(IDX + 13312, "idxK", 0, 4 - ksplit)
    if ksplit:
        e(f"s_mov_b32 s3, s{sT0}")
        e(f"s_add_u32 s101, s{sT1}, {IDX + 13312}")
    if probe:
        E.drain_vm(); stamp()
    srd(S_TAB, 38, (50000 if halftab else 100000)*64)
    if tlbwarm:
        e("s_load_dword s4, s[38:39], 0")
        for a in (0x200000, 0x400000, 0x600000):
            e(f"s_mov_b32 s5, {a}")
            e("s_load_dword s4, s[38:39], s5")
    if pf:
        e(f"s_lshr_b32 s{sT0}, s2, 3")
        e(f"s_mul_i32 s{sT0}, s{sT0}, 102400")
        e(f"s_mul_i32 s{sFoff}, s{sW}, 25600")
        e(f"s_add_u32 s{sT0}, s{sT0}, s{sFoff}")
        e(f"v_lshlrev_b32 v{vT}, 4, v{vLane}")
        e(f"s_add_u32 m0, s{sW1024}, {ADED}")
        for q in range(25):
            E.vmem(f"buffer_load_dwordx4 v{vT}, s[{S_TAB}:{S_TAB+3}], s{sT0} offen lds", "pf")
            e(f"s_add_u32 s{sT0}, s{sT0}, 1024")
    for j in range(wfirst, n_init):
        w_dma(j)
        if probe and j == 1:
            E.drain_vm(); stamp()
    if not probe: stamp()
    e(f"v_and_b32 v{X}, 3, v{vLane}")
    e(f"v_bfe_u32 v{X+1}, v{vLane}, 4, 2")
    e(f"v_xor_b32 v{X}, v{X}, v{X+1}")
    e(f"v_lshlrev_b32 v{vPiece}, 4, v{X}")
    e(f"v_lshrrev_b32 v{X}, 2, v{vLane}")
    e(f"v_mul_u32_u24 v{vIdxB}, 208, v{X}")
    e(f"s_lshl_b32 s{sT0}, s{sKh}, 3")
    e(f"s_add_u32 s{sT0}, s{sT0}, s{sT1}")
    e(f"s_add_u32 s{sT0}, s{sT0}, {IDX}")
    e(f"v_add_u32 v{vIdxB}, s{sT0}, v{vIdxB}")
    e(f"v_and_b32 v{X}, 31, v{vLane}")
    e(f"v_lshlrev_b32 v{X}, 6, v{X}")
    e(f"v_add_u32 v{X}, {RING0}, v{X}")
    e(f"v_lshrrev_b32 v{X+1}, 5, v{vLane}")
    e(f"v_bfe_u32 v{X+2}, v{vLane}, 2, 2")
    e(f"v_xor_b32 v{X+3}, v{X+1}, v{X+2}")
    e(f"v_lshl_add_u32 v{vE0}, v{X+3}, 4, v{X}")
    e(f"v_xor_b32 v{X+3}, 2, v{X+3}")
    e(f"v_lshl_add_u32 v{vE1}, v{X+3}, 4, v{X}")
    e(f"v_lshl_add_u32 v{X+3}, v{X+1}, 3, v{X+2}")
    e(f"v_lshlrev_b32 v{X+3}, 8, v{X+3}")
    e(f"v_bfe_u32 v{X+4}, v{vLane}, 4, 1")
    e(f"v_lshlrev_b32 v{X+4}, 1, v{X+4}")
    e(f"v_bfe_u32 v{X+5}, v{vLane}, 1, 1")
    e(f"v_add_u32 v{X+4}, v{X+4}, v{X+5}")
    e(f"s_lshl_b32 s{sT0}, s{sW}, 2")
    e(f"v_add_u32 v{X+4}, s{sT0}, v{X+4}")
    e(f"v_lshlrev_b32 v{X+2}, 2, v{X+2}")
    e(f"v_xor_b32 v{X+4}, v{X+4}, v{X+2}")
    e(f"v_and_b32 v{X+5}, 1, v{vLane}")
    e(f"v_lshlrev_b32 v{X+5}, 3, v{X+5}")
    e(f"v_add_u32 v{X+3}, v{X+3}, v{X+5}")
    e(f"v_lshl_add_u32 v{vWtr}, v{X+4}, 4, v{X+3}")
    e(f"v_add_u32 v{vT2}, 65536, v{vWtr}")
    vWtrH = vT2
    e(f"s_lshl_b32 s{sMyOff}, s2, {14 if bfx else 15}")
    e(f"s_xor_b32 s{sT0}, s2, 8")
    e(f"s_lshl_b32 s{sPartOff}, s{sT0}, {14 if bfx else 15}")
    if hdiag:
        e(f"s_lshr_b32 s{sT0}, s{sT0}, 5")
        e(f"s_lshl_b32 s{sT0}, s{sT0}, 2")
    else:
        e(f"s_and_b32 s{sT0}, s{sT0}, 0xfc")
    e(f"v_mov_b32 v{vFlagOff}, s{sT0}")
    e(f"s_lshl_b32 s{sT0}, s{sW}, {12 if bfx else 13}")
    e(f"s_add_u32 s{sMyOff}, s{sMyOff}, s{sT0}")
    e(f"s_add_u32 s{sPartOff}, s{sPartOff}, s{sT0}")
    if hdiag:
        e(f"s_xor_b32 s{sT0}, s2, 8")
        e(f"s_and_b32 s{sT0}, s{sT0}, 31")
        e(f"s_lshl_b32 s{sFlagBit}, 1, s{sT0}")
        e(f"s_and_b32 s{sT0}, s2, 31")
        e(f"s_lshl_b32 s79, 1, s{sT0}")
    else:
        e(f"s_and_b32 s{sT0}, s2, 3")
        e(f"s_lshl_b32 s{sFlagBit}, s{sT0}, 3")
    srd(S_OUT, 54, 16384*2)
    srd(S_DBG, 56, 256)
    assert bfx and not hdiag and not spindbg
    FLAGS = 256 * 16384
    srd(S_WS, 58, FLAGS + 256 * 128)
    sTag, sNext = 100, 79


    def w_tr_piece(slot, s):
        buf = WST + (slot % NWB) * 8192
        base = vWtr if buf < 65536 else vWtrH
        off = buf if buf < 65536 else buf - 65536
        for t in range(2):
            E.dsop(f"ds_read_b64_tr_b16 {wreg(slot, s*4 + t*2, 2)}, {'v%d' % base} offset:{off + s*4096 + t*1024}", ("Wtr", slot))
    def w_tr(slot):
        w_tr_piece(slot, 0); w_tr_piece(slot, 1)
    def misc_loads():
        e(f"v_lshlrev_b32 v{vT}, 4, v{vLane}")
        e(f"s_cmp_lt_u32 s{sW}, 2")
        e(f"s_cselect_b32 s{S_MISC}, s40, s48")
        e(f"s_cselect_b32 s{S_MISC+1}, s41, s49")
        e(f"s_mov_b32 s{S_MISC+2}, 256")
        e(f"s_cselect_b32 s{S_MISC+2}, {16384*26}, s{S_MISC+2}")
        e(f"s_cmp_eq_u32 s{sW}, 3")
        e(f"s_cselect_b32 s{S_MISC}, s50, s{S_MISC}")
        e(f"s_cselect_b32 s{S_MISC+1}, s51, s{S_MISC+1}")
        e(f"s_and_b32 s{S_MISC+1}, s{S_MISC+1}, 0xffff")
        e(f"s_mov_b32 s{S_MISC+3}, 0x20000")
        e(f"s_mul_i32 s{sT0}, s{sKeepRow}, 26")
        e(f"s_add_u32 s{sT0}, s{sT0}, s{sW1024}")
        e(f"s_cmp_lt_u32 s{sW}, 2")
        e(f"s_cselect_b32 s{sT0}, s{sT0}, 0")
        e(f"s_add_u32 m0, s{sW1024}, {XW}")
        e("s_nop 0")
        E.vmem(f"buffer_load_dwordx4 v{vT}, s[{S_MISC}:{S_MISC+3}], s{sT0} offen lds", "misc")
        e(f"v_lshlrev_b32 v{vSm}, 1, v{vLane}")
        for n, (p, size) in enumerate(((42, 26), (44, 2), (52, 2))):
            srd(S_SM, p, size)
            E.vmem(f"buffer_load_ushort v{vSm+1+n}, v{vSm}, s[{S_SM}:{S_SM+3}], 0 offen", "small")
            e("s_nop 0")
    vSm = vACC['K'] + 8

    colreg = {"S": sColS, "K": sColK}
    def idx_read(sub, pair, dst, tmp):
        e(f"v_add_u32 v{tmp}, s{colreg[sub]}, v{vIdxB}")
        E.dsop(f"ds_read_b64 v[{dst}:{dst+1}], v{tmp} offset:{13312 if sub == 'K' else 0}", ("idx", sub, pair))
        c = colreg[sub]
        e(f"s_add_u32 s{c}, s{c}, 8")
        e(f"s_cmp_ge_u32 s{c}, 200")
        e(f"s_cselect_b32 s{c}, 0, s{c}")
    def g_issue(i, reg):
        slot = RING0 + aslot(i)
        e(f"v_lshl_add_u32 v{reg}, v{reg}, 6, v{vPiece}")
        e(f"s_add_u32 m0, s{sW1024}, {slot}")
        e("s_nop 0")
        E.vmem(f"buffer_load_dwordx4 v{reg}, s[{S_TAB}:{S_TAB+3}], 0 offen lds", ("G", i))

    rmax = max(rmax, wgrp)
    ngrp = (50 + wgrp - 1) // wgrp
    groups = [list(range(g * wgrp, min(50, (g + 1) * wgrp))) for g in range(ngrp)]
    nxt_w = n_init
    misc_at = 2
    tb = X + 0
    early_done = False
    for g, grp in enumerate(groups):
        E.wait_vm([("W", j) for j in grp])
        if g > 0: E.wait_ds([("Wtr", j) for j in groups[g-1]])
        e("s_barrier")
        if g == 0 and not probe: stamp()
        cnt = 0
        dmas = []
        while nxt_w < 50 and nxt_w < grp[0] + NWB and cnt < rmax:
            dmas += [(nxt_w, 0), (nxt_w, 1)]; nxt_w += 1; cnt += 1
        trs = [(j, sx) for j in grp for sx in range(2)] if inter else []
        while dmas or trs:
            if trs and inter == 1: w_tr_piece(*trs.pop(0))
            if dmas: w_dma_half(*dmas.pop(0))
            if trs and inter == 2: w_tr_piece(*trs.pop(0))
        if nxt_w >= 50 and not early_done:
            early_done = True
            E.wait_vm(["idxS"])
            for n in range(gearly // 2):
                idx_read("S", n, tb + 2 * n, vT)
            E.wait_ds([("idx", "S", gearly // 2 - 1)])
            for i in range(gearly):
                assert aslot_wbufs(i) is None
                g_issue(i, tb + i)
            if not probe: stamp()
        if not inter:
            for j in grp: w_tr(j)
    assert early_done
    def small_scalars():
        E.wait_vm(["small"])
        for n in range(3):
            e(f"v_lshlrev_b32 v{vSm+1+n}, 16, v{vSm+1+n}")
        e("s_nop 0")
        for j in range(13):
            e(f"v_readlane_b32 s{sWW+j}, v{vSm+1}, {j}")
        e(f"v_readlane_b32 s{sBW}, v{vSm+2}, 0")
        e(f"v_readlane_b32 s{sB2}, v{vSm+3}, 0")
    def init_accK():
        e(f"v_lshrrev_b32 v{vT}, 5, v{vLane}")
        e(f"v_lshlrev_b32 v{vT}, 3, v{vT}")
        e(f"s_lshl_b32 s{sT0}, s{sW}, 6")
        e(f"v_add_u32 v{vT}, s{sT0}, v{vT}")
        e(f"v_add_u32 v{vT}, {B1}, v{vT}")
        a = vACC["K"]
        for q in range(4):
            E.dsop(f"ds_read_b64 v[{a+16+2*q}:{a+17+2*q}], v{vT} offset:{16*q}", "b1")
        E.wait_ds(["b1"])
        for q in range(4):
            s0 = a + 16 + 2 * q
            e(f"v_lshlrev_b32 v{a+4*q}, 16, v{s0}")
            e(f"v_and_b32 v{a+4*q+1}, 0xffff0000, v{s0}")
            e(f"v_lshlrev_b32 v{a+4*q+2}, 16, v{s0+1}")
            e(f"v_and_b32 v{a+4*q+3}, 0xffff0000, v{s0+1}")
        for r in range(16):
            e(f"v_mov_b32 v{a+16+r}, v{a+r}")

    def fold_load():
        e(f"s_lshl_b32 s{sT0}, s2, 7")
        e(f"s_add_u32 s{sT0}, s{sT0}, {FLAGS}")
        e(f"v_mov_b32 v{vT}, 0")
        E.vmem(f"buffer_load_dword v{vFlag}, v{vT}, s[{S_WS}:{S_WS+3}], s{sT0} offen sc1", "fold")
    def publish():
        E.wait_vm(["fold"])
        e(f"v_readfirstlane_b32 s{sNext}, v{vFlag}")
        e("s_nop 1")
        e(f"s_add_u32 s{sNext}, s{sNext}, 1")
        e(f"s_and_b32 s{sT0}, s{sNext}, 0x7f")
        e(f"s_or_b32 s{sT0}, s{sT0}, 0x80")
        if pubbyte:
            e(f"v_mov_b32 v{vFlag}, s{sT0}")
            e(f"v_mov_b32 v{vT}, s2")
        else:
            e(f"s_and_b32 s{sFoff}, s2, 3")
            e(f"s_lshl_b32 s{sFoff}, s{sFoff}, 3")
            e(f"s_lshl_b32 s{sT0}, s{sT0}, s{sFoff}")
            e(f"v_mov_b32 v{vFlag}, s{sT0}")
            e(f"s_and_b32 s{sFoff}, s2, 0xfc")
            e(f"v_mov_b32 v{vT}, s{sFoff}")
        e(f"s_cmp_eq_u32 s{sW}, 0")
        e(f"s_cselect_b32 s{sT0}, 1, 0")
        e(f"s_mov_b32 exec_hi, 0")
        e(f"s_mov_b32 exec_lo, s{sT0}")
        if pubbyte:
            E.vmem(f"buffer_store_byte v{vFlag}, v{vT}, s[{S_DBG}:{S_DBG+3}], 0 offen sc1", "pub")
        else:
            E.vmem(f"buffer_atomic_add v{vFlag}, v{vT}, s[{S_DBG}:{S_DBG+3}], 0 offen", "pub")
        e("s_mov_b64 exec, -1")
    E.drain_ds()
    e("s_barrier")
    for n in range(gearly // 2, DG // 2):
        idx_read("S", n, tb + 2 * (n - gearly // 2), vT)
    E.drain_ds()
    for i in range(gearly, DG):
        g_issue(i, tb + (i - gearly))
    if not probe: stamp()
    pair_state = {"S": None, "K": None}
    nxt_pair = {"S": DG // 2, "K": 0}
    assert DG % 2 == 0 and gearly % 2 == 0

    def ensure_pair(sub, pair):
        if pair_state[sub] != pair and pair < 25:
            assert pair == nxt_pair[sub], (sub, pair, nxt_pair)
            idx_read(sub, pair, vI[sub], vT2)
            pair_state[sub] = pair
            nxt_pair[sub] = pair + 1
    def e_reads(i):
        buf = vEB + (i % 2) * 16
        slot = aslot(i)
        for s in range(2):
            for rb in range(2):
                d = buf + (s * 2 + rb) * 4
                E.dsop(f"ds_read_b128 v[{d}:{d+3}], v{vE1 if s else vE0} offset:{slot + rb*2048}", ("E", i))

    sig_step = lastS + 1 + sig_delay + (st0 + 3 * spread if spread else 0)
    sig_step += sig_step & 1
    part_ok = max(last_use[j] for j in range(6)) + 1
    load_step = max(part_ok, 100 - poll_lead + 4, sig_step + 5)
    poll_step = load_step - 4
    w2_step = max(part_ok, 70)
    add_step = 98
    vW2 = 144
    vWide = 160
    assert last_use[6] < w2_step and last_use[7] < w2_step

    for t in range(-2, 100):
        if t % 2 == 0:
            need = [("G", i) for i in (t + 1, t + 2) if 0 <= i < 100]
            if t == sig_step: need.append("Pst")
            if t == -2: need.append("idxK")
            if t == acc_at: need.append("misc")
            if ksplit and t == acc_at - 4: need.append("idxK2")
            if need: E.wait_vm(need)
            e("s_barrier")
            if t == sig_step:
                e(f"s_lshl_b32 s{sT1}, s2, 7")
                e(f"s_add_u32 s{sT1}, s{sT1}, {FLAGS}")
                e(f"v_mov_b32 v{vT}, 0")
                e(f"v_mov_b32 v{vFlag}, s{sNext}")
                e(f"s_cmp_eq_u32 s{sW}, 0")
                e(f"s_cselect_b32 s{sT0}, 1, 0")
                e(f"s_mov_b32 exec_hi, 0")
                e(f"s_mov_b32 exec_lo, s{sT0}")
                E.vmem(f"buffer_store_dword v{vFlag}, v{vT}, s[{S_WS}:{S_WS+3}], s{sT1} offen sc1", "sig")
                e("s_mov_b64 exec, -1")
                e("s_nop 3")
        if steps and t in (0, 10, 20, 30, 40, 46, 50, 52, 54, 56, 58, 60, 64, 70, 80, 90, 94, 96): stamp()
        mf = []
        if t >= 0:
            sub, j = items[t]
            buf = vEB + (t % 2) * 16
            a = vACC[sub]
            E.wait_ds([("E", t)])
            for s in range(2):
                for rb in range(2):
                    c = f"v[{a+rb*16}:{a+rb*16+15}]"
                    src = "0" if (sub == "S" and j == 0 and s == 0) else c
                    mf.append(f"v_mfma_f32_32x32x16_bf16 {c}, {wreg(j, s*4, 4)}, v[{buf+(s*2+rb)*4}:{buf+(s*2+rb)*4+3}], {src}")
        def mfma(n):
            if n < len(mf) and not nomfma: e(mf[n])
        mfma(0)
        if 0 <= t + 1 < 100: e_reads(t + 1)
        mfma(1)
        gi = t + DG
        if DG <= gi < 100 and t >= 0:
            sub2, j2 = items[gi]
            assert pair_state[sub2] == (j2 >> 1), (t, gi, sub2, j2, pair_state)
            E.wait_ds([("idx", sub2, j2 >> 1)])
            g_issue(gi, vI[sub2] + (j2 & 1))
            if j2 & 1: pair_state[sub2] = None
        mfma(2)
        mfma(3)
        for look in (t + 1 + DG, t + 2 + DG):
            if DG <= look < 100 and t >= -1:
                sub3, j3 = items[look]
                if pair_state[sub3] is None and (j3 & 1) == 0:
                    ensure_pair(sub3, j3 >> 1)
        if t == lastS:
            e("s_nop 15")
            a = vACC["S"]
            e(f"v_lshlrev_b32 v{vT}, 4, v{vLane}")
            if bfx:
                for r in range(16):
                    e(f"v_cvt_pk_bf16_f32 v{a+r}, v{a+2*r}, v{a+2*r+1}")
                if not spread:
                    for q in range(4):
                        E.vmem(f"buffer_store_dwordx4 v[{a+4*q}:{a+4*q+3}], v{vT}, s[{S_WS}:{S_WS+3}], s{sMyOff} offen offset:{q*1024} sc1", "Pst")
            else:
                e(f"s_add_u32 s{sT0}, s{sMyOff}, 4096")
                for q in range(8):
                    so = sMyOff if q < 4 else sT0
                    E.vmem(f"buffer_store_dwordx4 v[{a+4*q}:{a+4*q+3}], v{vT}, s[{S_WS}:{S_WS+3}], s{so} offen offset:{(q%4)*1024} sc1", "Pst")
            if not steps:
                stamp()
                stamp(cyc=True)
        if spread and bfx and lastS + st0 <= t < lastS + st0 + 4 * spread and (t - lastS - st0) % spread == 0:
            q = (t - lastS - st0) // spread
            a = vACC["S"]
            e(f"v_lshlrev_b32 v{vT}, 4, v{vLane}")
            E.vmem(f"buffer_store_dwordx4 v[{a+4*q}:{a+4*q+3}], v{vT}, s[{S_WS}:{S_WS+3}], s{sMyOff} offen offset:{q*1024} sc1", "Pst")
        if ksplit and t == -1:
            Q = vACC["K"] + 16
            for i in range(4 - ksplit, 4):
                e(f"v_add_u32 v{Q+4}, {64*i}, v{vLane}")
                e(f"v_mul_u32_u24 v{Q+5}, 5042, v{Q+4}")
                e(f"v_lshrrev_b32 v{Q+5}, 16, v{Q+5}")
                e(f"v_mul_u32_u24 v{Q+6}, 13, v{Q+5}")
                e(f"v_sub_u32 v{Q+6}, v{Q+4}, v{Q+6}")
                e(f"v_mul_u32_u24 v{Q+5}, 400, v{Q+5}")
                e(f"v_lshl_add_u32 v{Q+i}, v{Q+6}, 4, v{Q+5}")
                e(f"v_subrev_u32 v{Q+i}, {1024*i}, v{Q+i}")
            idx_dma(0, "idxK2", 4 - ksplit, 4, Q=Q, soff=3, m0="s_mov_b32 m0, s101")
        if t == misc_step - 2: fold_load()
        if t == misc_step: misc_loads()
        if t == pub_at:
            publish()
            e("s_nop 3")
        if t == acc_at - 2: small_scalars()
        if t == acc_at: init_accK()
        if t == tag_at:
            E.vmem(f"buffer_load_dword v{vFlag}, v{vFlagOff}, s[{S_DBG}:{S_DBG+3}], 0 offen sc1", "tag")
        if t == tag_at + 8:
            E.wait_vm(["tag"])
            e(f"v_readfirstlane_b32 s{sTag}, v{vFlag}")
            e("s_nop 1")
            e(f"s_lshr_b32 s{sTag}, s{sTag}, s{sFlagBit}")
            e(f"s_bitcmp1_b32 s{sTag}, 7")
            e("s_cbranch_scc0 L_tagspin")
            e("L_tagspin_done:")
            e(f"s_and_b32 s{sTag}, s{sTag}, 0x7f")
            e(f"s_xor_b32 s{sT0}, s2, 8")
            e(f"s_lshl_b32 s{sT0}, s{sT0}, 7")
            e(f"s_add_u32 s{sT0}, s{sT0}, {FLAGS}")
            e(f"v_mov_b32 v{vFlagOff}, s{sT0}")
        if t == w2_step:
            e(f"v_lshrrev_b32 v{vT}, 5, v{vLane}")
            e(f"v_lshlrev_b32 v{vT}, 3, v{vT}")
            e(f"s_lshl_b32 s{sT0}, s{sW}, 6")
            e(f"v_add_u32 v{vT}, s{sT0}, v{vT}")
            e(f"v_add_u32 v{vT}, {W2}, v{vT}")
            for q in range(4):
                E.dsop(f"ds_read_b64 v[{112+2*q}:{112+2*q+1}], v{vT} offset:{16*q}", "w2")
            e(f"v_mul_u32_u24 v{vT}, 26, v{vLane}")
            e(f"v_add_u32 v{vT}, {XW}, v{vT}")
            for j in range(13):
                E.dsop(f"ds_read_u16 v{120+j}, v{vT} offset:{2*j}", "xw")
        if t == w2_step + 1:
            E.wait_ds(["xw"])
            for q in range(4):
                s0 = 112 + 2 * q
                e(f"v_lshlrev_b32 v{vW2+4*q}, 16, v{s0}")
                e(f"v_and_b32 v{vW2+4*q+1}, 0xffff0000, v{s0}")
                e(f"v_lshlrev_b32 v{vW2+4*q+2}, 16, v{s0+1}")
                e(f"v_and_b32 v{vW2+4*q+3}, 0xffff0000, v{s0+1}")
            e(f"v_mov_b32 v{vWide}, s{sBW}")
            for j in range(13):
                e(f"v_lshlrev_b32 v{120+j}, 16, v{120+j}")
                e(f"v_fmac_f32 v{vWide}, s{sWW+j}, v{120+j}")
            e(f"v_add_f32 v{vWide}, s{sB2}, v{vWide}")
        if t == poll_step:
            E.vmem(f"buffer_load_dword v{vFlag}, v{vFlagOff}, s[{S_WS}:{S_WS+3}], 0 offen sc1", "poll")
        if t == load_step:
            E.wait_vm(["poll"])
            e(f"v_readfirstlane_b32 s{sT0}, v{vFlag}")
            e("s_nop 1")
            e(f"s_and_b32 s{sT0}, s{sT0}, 0x7f")
            e(f"s_cmp_eq_u32 s{sT0}, s{sTag}")
            e("s_cbranch_scc0 L_spin")
            e("L_spin_done:")
            e(f"v_lshlrev_b32 v{vT}, 4, v{vLane}")
            if bfx:
                for q in range(4):
                    E.vmem(f"buffer_load_dwordx4 v[{164+4*q}:{164+4*q+3}], v{vT}, s[{S_WS}:{S_WS+3}], s{sPartOff} offen offset:{q*1024} sc1", "Pld")
            else:
                e(f"s_add_u32 s{sT0}, s{sPartOff}, 4096")
                for q in range(8):
                    so = sPartOff if q < 4 else sT0
                    E.vmem(f"buffer_load_dwordx4 v[{112+4*q}:{112+4*q+3}], v{vT}, s[{S_WS}:{S_WS+3}], s{so} offen offset:{(q%4)*1024} sc1", "Pld")
        if bfx and t == unp_at:
            E.wait_vm(["Pld"])
            for r in range(16):
                e(f"v_lshlrev_b32 v{112+2*r}, 16, v{164+r}")
                e(f"v_and_b32 v{113+2*r}, 0xffff0000, v{164+r}")
    assert tag_at + 8 < poll_step and poll_step > sig_step and acc_at % 2 == 0 and misc_step + 8 <= acc_at - 2 and acc_at < 48
    assert w2_step + 1 < load_step < unp_at and max(last_use[j] for j in range(9)) < load_step
    stamp()
    if not steps: stamp(cyc=True)
    e(f"v_lshrrev_b32 v{vT}, 5, v{vLane}")
    e(f"v_lshlrev_b32 v{vT}, 8, v{vT}")
    e(f"v_and_b32 v{vT2}, 31, v{vLane}")
    e(f"v_lshl_add_u32 v{vT}, v{vT2}, 2, v{vT}")
    e(f"s_lshl_b32 s{sT0}, s{sW}, 9")
    e(f"v_add_u32 v{vT}, s{sT0}, v{vT}")
    a = vACC["K"]
    R = vEB
    for rb in range(2):
        e(f"v_mov_b32 v{R+rb}, 0")
        e(f"v_mov_b32 v{R+2+rb}, 0")
    E.wait_vm(["Pld"])
    e("s_nop 7")
    for rb in range(2):
        for r in range(16):
            x = a + rb * 16 + r
            e(f"v_add_f32 v{x}, v{x}, v{112+rb*16+r}")
        for r in range(16):
            x = a + rb * 16 + r
            e(f"v_max_f32 v{x}, 0, v{x}")
        for r in range(16):
            x = a + rb * 16 + r
            e(f"v_fmac_f32 v{R+rb+2*(r&1)}, v{x}, v{vW2+r}")
        e(f"v_add_f32 v{R+rb}, v{R+rb}, v{R+rb+2}")
        E.dsop(f"ds_write_b32 v{vT}, v{R+rb} offset:{RED+128*rb}", "red")
    E.drain_ds()
    e("s_barrier")
    e(f"s_cmp_lg_u32 s{sW}, 0")
    e("s_cbranch_scc1 L_end")
    e(f"v_lshlrev_b32 v{vT}, 2, v{vLane}")
    Y = vEB + 12
    for kk in range(8):
        e(f"ds_read_b32 v{Y+kk}, v{vT} offset:{RED + kk*256}")
    e(f"s_lshl_b32 s{sT0}, s{sKeepRow}, 1")
    e(f"v_lshlrev_b32 v{vT}, 1, v{vLane}")
    e("s_waitcnt lgkmcnt(0)")
    e(f"v_add_f32 v{Y}, v{Y}, v{Y+1}")
    e(f"v_add_f32 v{Y+2}, v{Y+2}, v{Y+3}")
    e(f"v_add_f32 v{Y+4}, v{Y+4}, v{Y+5}")
    e(f"v_add_f32 v{Y+6}, v{Y+6}, v{Y+7}")
    e(f"v_add_f32 v{Y}, v{Y}, v{Y+2}")
    e(f"v_add_f32 v{Y+4}, v{Y+4}, v{Y+6}")
    e(f"v_add_f32 v{Y}, v{Y}, v{vWide}")
    e(f"v_add_f32 v{Y}, v{Y}, v{Y+4}")
    e(f"v_mul_f32 v{Y}, 0xbfb8aa3b, v{Y}")
    e(f"v_exp_f32 v{Y}, v{Y}")
    e("s_nop 0")
    e(f"v_add_f32 v{Y}, 1.0, v{Y}")
    e(f"v_rcp_f32 v{Y}, v{Y}")
    e("s_nop 0")
    e(f"v_cvt_pk_bf16_f32 v{Y}, v{Y}, v{Y}")
    e(f"buffer_store_short v{Y}, v{vT}, s[{S_OUT}:{S_OUT+3}], s{sT0} offen")
    if diag and hdiag:
        e(f"s_memrealtime s[{sTS+2}:{sTS+3}]")
        e("s_waitcnt lgkmcnt(0)")
        e(f"s_not_b32 s{sT0}, s{sTS}")
        e(f"v_writelane_b32 v0, s{sT0}, 0")
        e(f"v_writelane_b32 v0, s{sTS+2}, 1")
        e(f"v_mov_b32 v{vT}, 0x100")
        for lane, slot in ((0, 8), (1, 9), (4, 10), (6, 11), (8, 12), (10, 13), (12, 14), (16, 15)):
            e(f"s_mov_b32 s{sT0}, {4*slot}")
            e(f"v_writelane_b32 v{vT}, s{sT0}, {lane}")
        e(f"buffer_atomic_umax v0, v{vT}, s[{S_DBG}:{S_DBG+3}], 0 offen")
    elif diag:
        e(f"s_memrealtime s[{sTS+2}:{sTS+3}]")
        e("s_waitcnt lgkmcnt(0)")
        for n, r in enumerate((sTS, sTS+1, sTS+2, sTS+3)):
            e(f"v_writelane_b32 v0, s{r}, {n}")
        e(f"v_writelane_b32 v0, s{sTS}, 63")
        e(f"s_add_u32 s{S_SM}, s58, {16<<20}")
        e(f"s_addc_u32 s{S_SM+1}, s59, 0")
        e(f"s_and_b32 s{S_SM+1}, s{S_SM+1}, 0xffff")
        e(f"s_mov_b32 s{S_SM+2}, 65536")
        e(f"s_mov_b32 s{S_SM+3}, 0x20000")
        e(f"s_lshl_b32 s{sT0}, s2, 8")
        e(f"v_lshlrev_b32 v{vT}, 2, v{vLane}")
        e(f"buffer_store_dword v0, v{vT}, s[{S_SM}:{S_SM+3}], s{sT0} offen")
    e("s_endpgm")
    e("L_spin:")
    e(f"s_mov_b32 s{sSpin}, {1<<17}")
    e("L_spin_loop:")
    e(f"buffer_load_dword v{vFlag}, v{vFlagOff}, s[{S_WS}:{S_WS+3}], 0 offen sc1")
    e("s_waitcnt vmcnt(0)")
    e(f"v_readfirstlane_b32 s{sT0}, v{vFlag}")
    e("s_nop 1")
    e(f"s_and_b32 s{sT0}, s{sT0}, 0x7f")
    e(f"s_cmp_eq_u32 s{sT0}, s{sTag}")
    e("s_cbranch_scc1 L_spin_done")
    e(f"s_sub_u32 s{sSpin}, s{sSpin}, 1")
    e(f"s_cmp_lg_u32 s{sSpin}, 0")
    e("s_cbranch_scc1 L_spin_loop")
    e("s_branch L_spin_done")
    e("L_tagspin:")
    e(f"s_mov_b32 s{sSpin}, {1<<17}")
    e("L_tagspin_loop:")
    e(f"buffer_load_dword v{vFlag}, v{vFlagOff}, s[{S_DBG}:{S_DBG+3}], 0 offen sc1")
    e("s_waitcnt vmcnt(0)")
    e(f"v_readfirstlane_b32 s{sTag}, v{vFlag}")
    e("s_nop 1")
    e(f"s_lshr_b32 s{sTag}, s{sTag}, s{sFlagBit}")
    e(f"s_bitcmp1_b32 s{sTag}, 7")
    e("s_cbranch_scc1 L_tagspin_done")
    e(f"s_sub_u32 s{sSpin}, s{sSpin}, 1")
    e(f"s_cmp_lg_u32 s{sSpin}, 0")
    e("s_cbranch_scc1 L_tagspin_loop")
    e("s_branch L_tagspin_done")
    e("L_end:")
    e("s_endpgm")
    body = "\n".join(E.L)
    out = HEADER
    out += (
        "; Wide & Deep forward, one launch, 256 workgroups of 4 waves (one per CU).\n"
        "; Workgroup = 128 batch rows x 50 of the 100 fields (K split in two). Its half of W1 (1600 x 128 bf16) is loaded once\n"
        "; through LDS (DMA + transposing reads) and stays in 400 registers per wave (wave w owns hidden units 32w..32w+31).\n"
        "; Embedding rows are gathered by LDS-DMA into a ring of 64-row tiles and fed to 32x32x16 MFMAs (D = W1^T * E^T).\n"
        "; The partial sums of 64 rows go to the partner workgroup (id ^ 8) through d_ws as bf16; the other 64 rows are finished\n"
        "; here: + partner partial + b1, ReLU, dot with W2, + wide part, sigmoid. Hand-off: sc1 stores, then a flag word on a\n"
        "; private d_ws line; the flag value is (old content + 1) and its low 7 bits are announced through d_debug.\n")
    out += "; Override launch geometry by editing the next line (default: block=256,\n"
    out += f"; @launch grid=(256,1,1) block=(256,1,1) lds={LDS_TOTAL}\n"
    out += f""".amdgcn_target "amdgcn-amd-amdhsa--gfx950"
.text
.globl {NAME}_kernel
.p2align 8
.type {NAME}_kernel,@function
{NAME}_kernel:
{body}
.section .rodata,"a"
.p2align 6
.amdhsa_kernel {NAME}_kernel
  .amdhsa_next_free_vgpr 512
  .amdhsa_next_free_sgpr 102
  .amdhsa_accum_offset 256
  .amdhsa_group_segment_fixed_size 0
  .amdhsa_kernarg_size 96
  .amdhsa_user_sgpr_count 2
  .amdhsa_user_sgpr_kernarg_segment_ptr 1
  .amdhsa_system_sgpr_workgroup_id_x 1
  .amdhsa_float_denorm_mode_32 3
.end_amdhsa_kernel
"""
    if diag:
        out = out.replace("; @launch", f"; STAMPS nst={stamp_next[0]}\n; @launch", 1)
    return out

if __name__ == "__main__":
    kw = {}
    path = None
    for a in sys.argv[1:]:
        if a.endswith(".s"): path = a
        elif a == "diag": kw["diag"] = True
        elif "=" in a:
            n, v = a.split("="); kw[n] = int(v) if v.lstrip("-").isdigit() else v
    s = gen(**kw)
    open(path or "cdna_kernels/" + NAME + ".s", "w").write(s)
```

```python
import sys
from gen_s2 import Em, NAME, HEADER


def gen(diag=False, steps=0, NWB=12, NA=12, tlbwarm=True, poll_lead=10, sig_delay=8, nomfma=0, gearly=8, order="SK", wgrp=2, probe=0, hdiag=0, spindbg=0, halftab=0, pf=0, bfx=1, unp_at=97, spread=4, st0=0, pub_at=10, tag_at=52, n_init=6, rmax=4, inter=1, misc_step=2, acc_at=20, ksplit=0, wfirst=0, pubbyte=1):
    E = Em(); e = E.e
    DG = NA - 2
    NAD = 8
    WST = 0
    ADED = WST + NWB * 8192
    RING0 = ADED + NAD * 4096 - NA * 4096
    IDX = ADED + NAD * 4096
    XW = IDX + 26624
    B1 = XW + 2048
    W2 = B1 + 1024
    LDS_TOTAL = W2 + 1024
    RED = WST
    assert LDS_TOTAL <= 163840, LDS_TOTAL
    assert NA * 4096 <= 65536 and RING0 >= 0
    def aslot(i):
        r = i % NA
        return (NA - NAD) * 4096 + r * 4096 if r < NAD else (r - NAD) * 4096
    def aslot_wbufs(i):
        a = RING0 + aslot(i)
        return None if a >= ADED else (a - WST) // 8192
    S_IDX, S_TAB, S_W1, S_MISC, S_OUT, S_SM, S_WS, S_DBG = 8, 12, 16, 20, 24, 28, 32, 60
    sW, sKh, sColS, sColK, sColW, sW2048, sW1024, sT0, sT1, sWbase, sFoff = 64, 65, 66, 67, 68, 69, 70, 71, 72, 73, 74
    sKeepRow, sPartOff, sMyOff, sFlagBit = 75, 76, 77, 78
    sWW, sBW, sB2 = 80, 93, 94
    sSpin = 95
    sTS = 96
    stamp_next = [2]
    def stamp(cyc=False):
        if diag:
            n = stamp_next[0]; stamp_next[0] += 1
            e(f"s_memtime s[6:7]" if cyc else "s_memrealtime s[6:7]")
            E.drain_ds()
            e(f"v_writelane_b32 v0, s6, {2*n}")
            e(f"v_writelane_b32 v0, s7, {2*n+1}")
    vLane, vPiece, vWoff, vIdxB, vE0, vE1, vWtr = 1, 2, 3, 4, 5, 6, 7
    vI = {"S": 8, "K": 10}
    vT, vT2, vFlagOff, vFlag = 12, 13, 14, 15
    vEB = 16
    vACC = {"S": 48, "K": 80}
    def wreg(slot, lo, n):
        if slot < 18:
            b = 112 + slot * 8 + lo
            return f"v[{b}:{b+n-1}]"
        b = (slot - 18) * 8 + lo
        return f"a[{b}:{b+n-1}]"

    items = [("S", j) for j in range(50)] + [("K", j) for j in range(50)]
    last_use = {}
    for t, (sub, j) in enumerate(items): last_use[j] = t
    lastS = 49

    e("s_cmp_ge_u32 s2, 256")
    e("s_cbranch_scc1 L_end")
    if diag: e(f"s_memrealtime s[{sTS}:{sTS+1}]")
    e("s_load_dwordx16 s[36:51], s[0:1], 0")
    e("s_load_dwordx4 s[52:55], s[0:1], 64")
    e("s_load_dwordx4 s[56:59], s[0:1], 80")
    e(f"v_and_b32 v{vLane}, 63, v0")
    e(f"v_lshrrev_b32 v{vT}, 6, v0")
    e("s_nop 0")
    e(f"v_readfirstlane_b32 s{sW}, v{vT}")
    if diag: e("v_mov_b32 v0, 0")
    X = vEB
    vQ = X + 20
    for i in range(4):
        e(f"v_add_u32 v{X}, {64*i}, v{vLane}")
        e(f"v_mul_u32_u24 v{X+1}, 5042, v{X}")
        e(f"v_lshrrev_b32 v{X+1}, 16, v{X+1}")
        e(f"v_mul_u32_u24 v{X+2}, 13, v{X+1}")
        e(f"v_sub_u32 v{X+2}, v{X}, v{X+2}")
        e(f"v_mul_u32_u24 v{X+1}, 400, v{X+1}")
        e(f"v_lshl_add_u32 v{vQ+i}, v{X+2}, 4, v{X+1}")
        if i: e(f"v_subrev_u32 v{vQ+i}, {1024*i}, v{vQ+i}")
    e(f"v_bfe_u32 v{X+1}, v{vLane}, 4, 2")
    e(f"v_and_b32 v{X}, 15, v{vLane}")
    e(f"v_lshlrev_b32 v{X+2}, 2, v{X+1}")
    e(f"v_xor_b32 v{X}, v{X}, v{X+2}")
    e(f"v_lshlrev_b32 v{X}, 4, v{X}")
    e(f"v_lshl_add_u32 v{vWoff}, v{X+1}, 8, v{X}")
    e(f"s_lshr_b32 s{sKh}, s2, 3")
    e(f"s_and_b32 s{sKh}, s{sKh}, 1")
    e(f"s_lshr_b32 s{sT0}, s2, 4")
    e(f"s_lshl_b32 s{sT1}, s{sT0}, 3")
    e(f"s_and_b32 s{sKeepRow}, s2, 7")
    e(f"s_add_u32 s{sT1}, s{sT1}, s{sKeepRow}")
    e(f"s_lshl_b32 s{sT1}, s{sT1}, 7")
    e(f"s_lshl_b32 s{sKeepRow}, s{sKh}, 6")
    e(f"s_add_u32 s{sKeepRow}, s{sKeepRow}, s{sT1}")
    e(f"s_mul_i32 s{sT0}, s{sT0}, 25")
    e(f"s_lshr_b32 s{sT0}, s{sT0}, 4")
    e(f"s_lshl_b32 s{sColS}, s{sT0}, 3")
    e(f"s_mov_b32 s{sColK}, s{sColS}")
    e(f"s_lshl_b32 s{sColW}, s{sT0}, 14")
    e(f"s_lshl_b32 s{sW2048}, s{sW}, 11")
    e(f"s_lshl_b32 s{sW1024}, s{sW}, 10")
    e(f"s_mul_i32 s{sWbase}, s{sKh}, {50*8192}")
    e(f"s_add_u32 s{sWbase}, s{sWbase}, s{sW2048}")
    e(f"s_xor_b32 s{sT0}, s{sKeepRow}, 64")
    e(f"s_lshl_b32 s{sT1}, s{sW}, 4")
    e(f"s_add_u32 s{sT0}, s{sT0}, s{sT1}")
    e(f"s_mul_i32 s{sT0}, s{sT0}, 400")
    e(f"s_mul_i32 s{sFoff}, s{sKh}, 192")
    e(f"s_add_u32 s{sT0}, s{sT0}, s{sFoff}")
    e(f"s_mul_i32 s{sT1}, s{sW}, 3328")
    E.drain_ds()
    def srd(d, p, size):
        e(f"s_mov_b32 s{d}, s{p}")
        e(f"s_and_b32 s{d+1}, s{p+1}, 0xffff")
        e(f"s_mov_b32 s{d+2}, {size}")
        e(f"s_mov_b32 s{d+3}, 0x20000")
    srd(S_W1, 46, 3200*256)
    def w_dma_half(slot, q):
        if q == 0:
            buf = WST + (slot % NWB) * 8192
            e(f"s_add_u32 m0, s{sW2048}, {buf}")
            e(f"s_add_u32 s{sFoff}, s{sColW}, s{sWbase}")
        E.vmem(f"buffer_load_dwordx4 v{vWoff}, s[{S_W1}:{S_W1+3}], s{sFoff} offen offset:{q*1024} lds", ("W", slot))
        if q == 1:
            e(f"s_add_u32 s{sColW}, s{sColW}, 8192")
            e(f"s_cmp_ge_u32 s{sColW}, {50*8192}")
            e(f"s_cselect_b32 s{sColW}, 0, s{sColW}")
    def w_dma(slot):
        w_dma_half(slot, 0); w_dma_half(slot, 1)
    for j in range(wfirst):
        w_dma(j)
    srd(S_IDX, 36, 16384*400)
    def idx_dma(ldsbase, tag, lo=0, hi=4, Q=None, soff=None, m0=None):
        Q = vQ if Q is None else Q
        soff = sT0 if soff is None else soff
        e(m0 if m0 else f"s_add_u32 m0, s{sT1}, {ldsbase}")
        e("s_nop 0")
        for i in range(lo, min(hi, 3)):
            E.vmem(f"buffer_load_dwordx4 v{Q+i}, s[{S_IDX}:{S_IDX+3}], s{soff} offen offset:{i*1024} lds", tag)
        if hi == 4:
            e("s_mov_b64 exec, 0xffff")
            E.vmem(f"buffer_load_dwordx4 v{Q+3}, s[{S_IDX}:{S_IDX+3}], s{soff} offen offset:3072 lds", tag)
            e("s_mov_b64 exec, -1")
    if probe: stamp()
    idx_dma(IDX, "idxS")
    if probe:
        E.drain_vm(); stamp()
    e(f"s_lshl_b32 s{sFoff}, s{sKh}, 1")
    e(f"s_sub_u32 s{sFoff}, s{sFoff}, 1")
    e(f"s_mul_i32 s{sFoff}, s{sFoff}, {64*400}")
    e(f"s_add_u32 s{sT0}, s{sT0}, s{sFoff}")
    idx_dma(IDX + 13312, "idxK", 0, 4 - ksplit)
    if ksplit:
        e(f"s_mov_b32 s3, s{sT0}")
        e(f"s_add_u32 s101, s{sT1}, {IDX + 13312}")
    if probe:
        E.drain_vm(); stamp()
    srd(S_TAB, 38, (50000 if halftab else 100000)*64)
    if tlbwarm:
        e("s_load_dword s4, s[38:39], 0")
        for a in (0x200000, 0x400000, 0x600000):
            e(f"s_mov_b32 s5, {a}")
            e("s_load_dword s4, s[38:39], s5")
    if pf:
        e(f"s_lshr_b32 s{sT0}, s2, 3")
        e(f"s_mul_i32 s{sT0}, s{sT0}, 102400")
        e(f"s_mul_i32 s{sFoff}, s{sW}, 25600")
        e(f"s_add_u32 s{sT0}, s{sT0}, s{sFoff}")
        e(f"v_lshlrev_b32 v{vT}, 4, v{vLane}")
        e(f"s_add_u32 m0, s{sW1024}, {ADED}")
        for q in range(25):
            E.vmem(f"buffer_load_dwordx4 v{vT}, s[{S_TAB}:{S_TAB+3}], s{sT0} offen lds", "pf")
            e(f"s_add_u32 s{sT0}, s{sT0}, 1024")
    for j in range(wfirst, n_init):
        w_dma(j)
        if probe and j == 1:
            E.drain_vm(); stamp()
    if not probe: stamp()
    e(f"v_and_b32 v{X}, 3, v{vLane}")
    e(f"v_bfe_u32 v{X+1}, v{vLane}, 4, 2")
    e(f"v_xor_b32 v{X}, v{X}, v{X+1}")
    e(f"v_lshlrev_b32 v{vPiece}, 4, v{X}")
    e(f"v_lshrrev_b32 v{X}, 2, v{vLane}")
    e(f"v_mul_u32_u24 v{vIdxB}, 208, v{X}")
    e(f"s_lshl_b32 s{sT0}, s{sKh}, 3")
    e(f"s_add_u32 s{sT0}, s{sT0}, s{sT1}")
    e(f"s_add_u32 s{sT0}, s{sT0}, {IDX}")
    e(f"v_add_u32 v{vIdxB}, s{sT0}, v{vIdxB}")
    e(f"v_and_b32 v{X}, 31, v{vLane}")
    e(f"v_lshlrev_b32 v{X}, 6, v{X}")
    e(f"v_add_u32 v{X}, {RING0}, v{X}")
    e(f"v_lshrrev_b32 v{X+1}, 5, v{vLane}")
    e(f"v_bfe_u32 v{X+2}, v{vLane}, 2, 2")
    e(f"v_xor_b32 v{X+3}, v{X+1}, v{X+2}")
    e(f"v_lshl_add_u32 v{vE0}, v{X+3}, 4, v{X}")
    e(f"v_xor_b32 v{X+3}, 2, v{X+3}")
    e(f"v_lshl_add_u32 v{vE1}, v{X+3}, 4, v{X}")
    e(f"v_lshl_add_u32 v{X+3}, v{X+1}, 3, v{X+2}")
    e(f"v_lshlrev_b32 v{X+3}, 8, v{X+3}")
    e(f"v_bfe_u32 v{X+4}, v{vLane}, 4, 1")
    e(f"v_lshlrev_b32 v{X+4}, 1, v{X+4}")
    e(f"v_bfe_u32 v{X+5}, v{vLane}, 1, 1")
    e(f"v_add_u32 v{X+4}, v{X+4}, v{X+5}")
    e(f"s_lshl_b32 s{sT0}, s{sW}, 2")
    e(f"v_add_u32 v{X+4}, s{sT0}, v{X+4}")
    e(f"v_lshlrev_b32 v{X+2}, 2, v{X+2}")
    e(f"v_xor_b32 v{X+4}, v{X+4}, v{X+2}")
    e(f"v_and_b32 v{X+5}, 1, v{vLane}")
    e(f"v_lshlrev_b32 v{X+5}, 3, v{X+5}")
    e(f"v_add_u32 v{X+3}, v{X+3}, v{X+5}")
    e(f"v_lshl_add_u32 v{vWtr}, v{X+4}, 4, v{X+3}")
    e(f"v_add_u32 v{vT2}, 65536, v{vWtr}")
    vWtrH = vT2
    e(f"s_lshl_b32 s{sMyOff}, s2, {14 if bfx else 15}")
    e(f"s_xor_b32 s{sT0}, s2, 8")
    e(f"s_lshl_b32 s{sPartOff}, s{sT0}, {14 if bfx else 15}")
    if hdiag:
        e(f"s_lshr_b32 s{sT0}, s{sT0}, 5")
        e(f"s_lshl_b32 s{sT0}, s{sT0}, 2")
    else:
        e(f"s_and_b32 s{sT0}, s{sT0}, 0xfc")
    e(f"v_mov_b32 v{vFlagOff}, s{sT0}")
    e(f"s_lshl_b32 s{sT0}, s{sW}, {12 if bfx else 13}")
    e(f"s_add_u32 s{sMyOff}, s{sMyOff}, s{sT0}")
    e(f"s_add_u32 s{sPartOff}, s{sPartOff}, s{sT0}")
    if hdiag:
        e(f"s_xor_b32 s{sT0}, s2, 8")
        e(f"s_and_b32 s{sT0}, s{sT0}, 31")
        e(f"s_lshl_b32 s{sFlagBit}, 1, s{sT0}")
        e(f"s_and_b32 s{sT0}, s2, 31")
        e(f"s_lshl_b32 s79, 1, s{sT0}")
    else:
        e(f"s_and_b32 s{sT0}, s2, 3")
        e(f"s_lshl_b32 s{sFlagBit}, s{sT0}, 3")
    srd(S_OUT, 54, 16384*2)
    srd(S_DBG, 56, 256)
    assert bfx and not hdiag and not spindbg
    FLAGS = 256 * 16384
    srd(S_WS, 58, FLAGS + 256 * 256)
    sTag, sNext = 100, 79


    def w_tr_piece(slot, s):
        buf = WST + (slot % NWB) * 8192
        base = vWtr if buf < 65536 else vWtrH
        off = buf if buf < 65536 else buf - 65536
        for t in range(2):
            E.dsop(f"ds_read_b64_tr_b16 {wreg(slot, s*4 + t*2, 2)}, {'v%d' % base} offset:{off + s*4096 + t*1024}", ("Wtr", slot))
    def w_tr(slot):
        w_tr_piece(slot, 0); w_tr_piece(slot, 1)
    def misc_loads():
        e(f"v_lshlrev_b32 v{vT}, 4, v{vLane}")
        e(f"s_cmp_lt_u32 s{sW}, 2")
        e(f"s_cselect_b32 s{S_MISC}, s40, s48")
        e(f"s_cselect_b32 s{S_MISC+1}, s41, s49")
        e(f"s_mov_b32 s{S_MISC+2}, 256")
        e(f"s_cselect_b32 s{S_MISC+2}, {16384*26}, s{S_MISC+2}")
        e(f"s_cmp_eq_u32 s{sW}, 3")
        e(f"s_cselect_b32 s{S_MISC}, s50, s{S_MISC}")
        e(f"s_cselect_b32 s{S_MISC+1}, s51, s{S_MISC+1}")
        e(f"s_and_b32 s{S_MISC+1}, s{S_MISC+1}, 0xffff")
        e(f"s_mov_b32 s{S_MISC+3}, 0x20000")
        e(f"s_mul_i32 s{sT0}, s{sKeepRow}, 26")
        e(f"s_add_u32 s{sT0}, s{sT0}, s{sW1024}")
        e(f"s_cmp_lt_u32 s{sW}, 2")
        e(f"s_cselect_b32 s{sT0}, s{sT0}, 0")
        e(f"s_add_u32 m0, s{sW1024}, {XW}")
        e("s_nop 0")
        E.vmem(f"buffer_load_dwordx4 v{vT}, s[{S_MISC}:{S_MISC+3}], s{sT0} offen lds", "misc")
        e(f"v_lshlrev_b32 v{vSm}, 1, v{vLane}")
        for n, (p, size) in enumerate(((42, 26), (44, 2), (52, 2))):
            srd(S_SM, p, size)
            E.vmem(f"buffer_load_ushort v{vSm+1+n}, v{vSm}, s[{S_SM}:{S_SM+3}], 0 offen", "small")
            e("s_nop 0")
    vSm = vACC['K'] + 8

    colreg = {"S": sColS, "K": sColK}
    def idx_read(sub, pair, dst, tmp):
        e(f"v_add_u32 v{tmp}, s{colreg[sub]}, v{vIdxB}")
        E.dsop(f"ds_read_b64 v[{dst}:{dst+1}], v{tmp} offset:{13312 if sub == 'K' else 0}", ("idx", sub, pair))
        c = colreg[sub]
        e(f"s_add_u32 s{c}, s{c}, 8")
        e(f"s_cmp_ge_u32 s{c}, 200")
        e(f"s_cselect_b32 s{c}, 0, s{c}")
    def g_issue(i, reg):
        slot = RING0 + aslot(i)
        e(f"v_lshl_add_u32 v{reg}, v{reg}, 6, v{vPiece}")
        e(f"s_add_u32 m0, s{sW1024}, {slot}")
        e("s_nop 0")
        E.vmem(f"buffer_load_dwordx4 v{reg}, s[{S_TAB}:{S_TAB+3}], 0 offen lds", ("G", i))

    rmax = max(rmax, wgrp)
    ngrp = (50 + wgrp - 1) // wgrp
    groups = [list(range(g * wgrp, min(50, (g + 1) * wgrp))) for g in range(ngrp)]
    nxt_w = n_init
    misc_at = 2
    tb = X + 0
    early_done = False
    for g, grp in enumerate(groups):
        E.wait_vm([("W", j) for j in grp])
        if g > 0: E.wait_ds([("Wtr", j) for j in groups[g-1]])
        e("s_barrier")
        if g == 0 and not probe: stamp()
        cnt = 0
        dmas = []
        while nxt_w < 50 and nxt_w < grp[0] + NWB and cnt < rmax:
            dmas += [(nxt_w, 0), (nxt_w, 1)]; nxt_w += 1; cnt += 1
        trs = [(j, sx) for j in grp for sx in range(2)] if inter else []
        while dmas or trs:
            if trs and inter == 1: w_tr_piece(*trs.pop(0))
            if dmas: w_dma_half(*dmas.pop(0))
            if trs and inter == 2: w_tr_piece(*trs.pop(0))
        if nxt_w >= 50 and not early_done:
            early_done = True
            E.wait_vm(["idxS"])
            for n in range(gearly // 2):
                idx_read("S", n, tb + 2 * n, vT)
            E.wait_ds([("idx", "S", gearly // 2 - 1)])
            for i in range(gearly):
                assert aslot_wbufs(i) is None
                g_issue(i, tb + i)
            if not probe: stamp()
        if not inter:
            for j in grp: w_tr(j)
    assert early_done
    def small_scalars():
        E.wait_vm(["small"])
        for n in range(3):
            e(f"v_lshlrev_b32 v{vSm+1+n}, 16, v{vSm+1+n}")
        e("s_nop 0")
        for j in range(13):
            e(f"v_readlane_b32 s{sWW+j}, v{vSm+1}, {j}")
        e(f"v_readlane_b32 s{sBW}, v{vSm+2}, 0")
        e(f"v_readlane_b32 s{sB2}, v{vSm+3}, 0")
    def init_accK():
        e(f"v_lshrrev_b32 v{vT}, 5, v{vLane}")
        e(f"v_lshlrev_b32 v{vT}, 3, v{vT}")
        e(f"s_lshl_b32 s{sT0}, s{sW}, 6")
        e(f"v_add_u32 v{vT}, s{sT0}, v{vT}")
        e(f"v_add_u32 v{vT}, {B1}, v{vT}")
        a = vACC["K"]
        for q in range(4):
            E.dsop(f"ds_read_b64 v[{a+16+2*q}:{a+17+2*q}], v{vT} offset:{16*q}", "b1")
        E.wait_ds(["b1"])
        for q in range(4):
            s0 = a + 16 + 2 * q
            e(f"v_lshlrev_b32 v{a+4*q}, 16, v{s0}")
            e(f"v_and_b32 v{a+4*q+1}, 0xffff0000, v{s0}")
            e(f"v_lshlrev_b32 v{a+4*q+2}, 16, v{s0+1}")
            e(f"v_and_b32 v{a+4*q+3}, 0xffff0000, v{s0+1}")
        for r in range(16):
            e(f"v_mov_b32 v{a+16+r}, v{a+r}")

    vFp = vACC["K"] + 12
    sOwnL, sPartL = 101, 3
    def fold_load():
        e(f"s_lshl_b32 s{sOwnL}, s2, 8")
        e(f"s_add_u32 s{sOwnL}, s{sOwnL}, {FLAGS}")
        e(f"s_xor_b32 s{sPartL}, s2, 8")
        e(f"s_lshl_b32 s{sPartL}, s{sPartL}, 8")
        e(f"s_add_u32 s{sPartL}, s{sPartL}, {FLAGS}")
        e(f"v_mov_b32 v{vT}, 0")
        E.vmem(f"buffer_load_dword v{vFlag}, v{vT}, s[{S_WS}:{S_WS+3}], s{sOwnL} offen sc1", "fold")
        E.vmem(f"buffer_load_dword v{vFp}, v{vT}, s[{S_WS}:{S_WS+3}], s{sPartL} offen sc1", "fold")
    def publish():
        E.wait_vm(["fold"])
        e(f"v_readfirstlane_b32 s{sNext}, v{vFlag}")
        e(f"v_readfirstlane_b32 s{sTag}, v{vFp}")
        e("s_nop 1")
        e(f"s_add_u32 s{sNext}, s{sNext}, 1")
        e(f"s_add_u32 s{sTag}, s{sTag}, 1")
        e(f"v_mov_b32 v{vFlag}, s{sTag}")
        e(f"v_mov_b32 v{vT}, 0")
        e(f"s_cmp_eq_u32 s{sW}, 0")
        e(f"s_cselect_b32 s{sT0}, 1, 0")
        e(f"s_mov_b32 exec_hi, 0")
        e(f"s_mov_b32 exec_lo, s{sT0}")
        E.vmem(f"buffer_store_dword v{vFlag}, v{vT}, s[{S_WS}:{S_WS+3}], s{sOwnL} offen offset:128 sc1", "pub")
        e("s_mov_b64 exec, -1")
    E.drain_ds()
    e("s_barrier")
    for n in range(gearly // 2, DG // 2):
        idx_read("S", n, tb + 2 * (n - gearly // 2), vT)
    E.drain_ds()
    for i in range(gearly, DG):
        g_issue(i, tb + (i - gearly))
    if not probe: stamp()
    pair_state = {"S": None, "K": None}
    nxt_pair = {"S": DG // 2, "K": 0}
    assert DG % 2 == 0 and gearly % 2 == 0

    def ensure_pair(sub, pair):
        if pair_state[sub] != pair and pair < 25:
            assert pair == nxt_pair[sub], (sub, pair, nxt_pair)
            idx_read(sub, pair, vI[sub], vT2)
            pair_state[sub] = pair
            nxt_pair[sub] = pair + 1
    def e_reads(i):
        buf = vEB + (i % 2) * 16
        slot = aslot(i)
        for s in range(2):
            for rb in range(2):
                d = buf + (s * 2 + rb) * 4
                E.dsop(f"ds_read_b128 v[{d}:{d+3}], v{vE1 if s else vE0} offset:{slot + rb*2048}", ("E", i))

    sig_step = lastS + 1 + sig_delay + (st0 + 3 * spread if spread else 0)
    sig_step += sig_step & 1
    part_ok = max(last_use[j] for j in range(6)) + 1
    load_step = max(part_ok, 100 - poll_lead + 4, sig_step + 5)
    poll_step = load_step - 4
    w2_step = max(part_ok, 70)
    add_step = 98
    vW2 = 144
    vWide = 160
    assert last_use[6] < w2_step and last_use[7] < w2_step

    for t in range(-2, 100):
        if t % 2 == 0:
            need = [("G", i) for i in (t + 1, t + 2) if 0 <= i < 100]
            if t == sig_step: need.append("Pst")
            if t == -2: need.append("idxK")
            if t == acc_at: need.append("misc")
            if ksplit and t == acc_at - 4: need.append("idxK2")
            if need: E.wait_vm(need)
            e("s_barrier")
            if t == sig_step:
                e(f"v_mov_b32 v{vT}, 0")
                e(f"v_mov_b32 v{vFlag}, s{sNext}")
                e(f"s_cmp_eq_u32 s{sW}, 0")
                e(f"s_cselect_b32 s{sT0}, 1, 0")
                e(f"s_mov_b32 exec_hi, 0")
                e(f"s_mov_b32 exec_lo, s{sT0}")
                E.vmem(f"buffer_store_dword v{vFlag}, v{vT}, s[{S_WS}:{S_WS+3}], s{sOwnL} offen sc1", "sig")
                e("s_mov_b64 exec, -1")
                e("s_nop 3")
        if steps and t in (0, 10, 20, 30, 40, 46, 50, 52, 54, 56, 58, 60, 64, 70, 80, 90, 94, 96): stamp()
        mf = []
        if t >= 0:
            sub, j = items[t]
            buf = vEB + (t % 2) * 16
            a = vACC[sub]
            E.wait_ds([("E", t)])
            for s in range(2):
                for rb in range(2):
                    c = f"v[{a+rb*16}:{a+rb*16+15}]"
                    src = "0" if (sub == "S" and j == 0 and s == 0) else c
                    mf.append(f"v_mfma_f32_32x32x16_bf16 {c}, {wreg(j, s*4, 4)}, v[{buf+(s*2+rb)*4}:{buf+(s*2+rb)*4+3}], {src}")
        def mfma(n):
            if n < len(mf) and not nomfma: e(mf[n])
        mfma(0)
        if 0 <= t + 1 < 100: e_reads(t + 1)
        mfma(1)
        gi = t + DG
        if DG <= gi < 100 and t >= 0:
            sub2, j2 = items[gi]
            assert pair_state[sub2] == (j2 >> 1), (t, gi, sub2, j2, pair_state)
            E.wait_ds([("idx", sub2, j2 >> 1)])
            g_issue(gi, vI[sub2] + (j2 & 1))
            if j2 & 1: pair_state[sub2] = None
        mfma(2)
        mfma(3)
        for look in (t + 1 + DG, t + 2 + DG):
            if DG <= look < 100 and t >= -1:
                sub3, j3 = items[look]
                if pair_state[sub3] is None and (j3 & 1) == 0:
                    ensure_pair(sub3, j3 >> 1)
        if t == lastS:
            e("s_nop 15")
            a = vACC["S"]
            e(f"v_lshlrev_b32 v{vT}, 4, v{vLane}")
            if bfx:
                for r in range(16):
                    e(f"v_cvt_pk_bf16_f32 v{a+r}, v{a+2*r}, v{a+2*r+1}")
                if not spread:
                    for q in range(4):
                        E.vmem(f"buffer_store_dwordx4 v[{a+4*q}:{a+4*q+3}], v{vT}, s[{S_WS}:{S_WS+3}], s{sMyOff} offen offset:{q*1024} sc1", "Pst")
            else:
                e(f"s_add_u32 s{sT0}, s{sMyOff}, 4096")
                for q in range(8):
                    so = sMyOff if q < 4 else sT0
                    E.vmem(f"buffer_store_dwordx4 v[{a+4*q}:{a+4*q+3}], v{vT}, s[{S_WS}:{S_WS+3}], s{so} offen offset:{(q%4)*1024} sc1", "Pst")
            if not steps:
                stamp()
                stamp(cyc=True)
        if spread and bfx and lastS + st0 <= t < lastS + st0 + 4 * spread and (t - lastS - st0) % spread == 0:
            q = (t - lastS - st0) // spread
            a = vACC["S"]
            e(f"v_lshlrev_b32 v{vT}, 4, v{vLane}")
            E.vmem(f"buffer_store_dwordx4 v[{a+4*q}:{a+4*q+3}], v{vT}, s[{S_WS}:{S_WS+3}], s{sMyOff} offen offset:{q*1024} sc1", "Pst")
        if ksplit and t == -1:
            Q = vACC["K"] + 16
            for i in range(4 - ksplit, 4):
                e(f"v_add_u32 v{Q+4}, {64*i}, v{vLane}")
                e(f"v_mul_u32_u24 v{Q+5}, 5042, v{Q+4}")
                e(f"v_lshrrev_b32 v{Q+5}, 16, v{Q+5}")
                e(f"v_mul_u32_u24 v{Q+6}, 13, v{Q+5}")
                e(f"v_sub_u32 v{Q+6}, v{Q+4}, v{Q+6}")
                e(f"v_mul_u32_u24 v{Q+5}, 400, v{Q+5}")
                e(f"v_lshl_add_u32 v{Q+i}, v{Q+6}, 4, v{Q+5}")
                e(f"v_subrev_u32 v{Q+i}, {1024*i}, v{Q+i}")
            idx_dma(0, "idxK2", 4 - ksplit, 4, Q=Q, soff=3, m0="s_mov_b32 m0, s101")
        if t == misc_step - 2: fold_load()
        if t == misc_step: misc_loads()
        if t == pub_at:
            publish()
            e("s_nop 3")
        if t == acc_at - 2: small_scalars()
        if t == acc_at: init_accK()
        if t == tag_at:
            e(f"v_mov_b32 v{vFlagOff}, s{sPartL}")
            E.vmem(f"buffer_load_dword v{vFlag}, v{vFlagOff}, s[{S_WS}:{S_WS+3}], 0 offen offset:128 sc1", "rdy")
        if t == tag_at + 8:
            E.wait_vm(["rdy"])
            e(f"v_readfirstlane_b32 s{sT0}, v{vFlag}")
            e("s_nop 1")
            e(f"s_cmp_eq_u32 s{sT0}, s{sNext}")
            e("s_cbranch_scc0 L_rspin")
            e("L_rspin_done:")
        if t == w2_step:
            e(f"v_lshrrev_b32 v{vT}, 5, v{vLane}")
            e(f"v_lshlrev_b32 v{vT}, 3, v{vT}")
            e(f"s_lshl_b32 s{sT0}, s{sW}, 6")
            e(f"v_add_u32 v{vT}, s{sT0}, v{vT}")
            e(f"v_add_u32 v{vT}, {W2}, v{vT}")
            for q in range(4):
                E.dsop(f"ds_read_b64 v[{112+2*q}:{112+2*q+1}], v{vT} offset:{16*q}", "w2")
            e(f"v_mul_u32_u24 v{vT}, 26, v{vLane}")
            e(f"v_add_u32 v{vT}, {XW}, v{vT}")
            for j in range(13):
                E.dsop(f"ds_read_u16 v{120+j}, v{vT} offset:{2*j}", "xw")
        if t == w2_step + 1:
            E.wait_ds(["xw"])
            for q in range(4):
                s0 = 112 + 2 * q
                e(f"v_lshlrev_b32 v{vW2+4*q}, 16, v{s0}")
                e(f"v_and_b32 v{vW2+4*q+1}, 0xffff0000, v{s0}")
                e(f"v_lshlrev_b32 v{vW2+4*q+2}, 16, v{s0+1}")
                e(f"v_and_b32 v{vW2+4*q+3}, 0xffff0000, v{s0+1}")
            e(f"v_mov_b32 v{vWide}, s{sBW}")
            for j in range(13):
                e(f"v_lshlrev_b32 v{120+j}, 16, v{120+j}")
                e(f"v_fmac_f32 v{vWide}, s{sWW+j}, v{120+j}")
            e(f"v_add_f32 v{vWide}, s{sB2}, v{vWide}")
        if t == poll_step:
            E.vmem(f"buffer_load_dword v{vFlag}, v{vFlagOff}, s[{S_WS}:{S_WS+3}], 0 offen sc1", "poll")
        if t == load_step:
            E.wait_vm(["poll"])
            e(f"v_readfirstlane_b32 s{sT0}, v{vFlag}")
            e("s_nop 1")
            e(f"s_cmp_eq_u32 s{sT0}, s{sTag}")
            e("s_cbranch_scc0 L_spin")
            e("L_spin_done:")
            e(f"v_lshlrev_b32 v{vT}, 4, v{vLane}")
            if bfx:
                for q in range(4):
                    E.vmem(f"buffer_load_dwordx4 v[{164+4*q}:{164+4*q+3}], v{vT}, s[{S_WS}:{S_WS+3}], s{sPartOff} offen offset:{q*1024} sc1", "Pld")
            else:
                e(f"s_add_u32 s{sT0}, s{sPartOff}, 4096")
                for q in range(8):
                    so = sPartOff if q < 4 else sT0
                    E.vmem(f"buffer_load_dwordx4 v[{112+4*q}:{112+4*q+3}], v{vT}, s[{S_WS}:{S_WS+3}], s{so} offen offset:{(q%4)*1024} sc1", "Pld")
        if bfx and t == unp_at:
            E.wait_vm(["Pld"])
            for r in range(16):
                e(f"v_lshlrev_b32 v{112+2*r}, 16, v{164+r}")
                e(f"v_and_b32 v{113+2*r}, 0xffff0000, v{164+r}")
    assert tag_at + 8 < sig_step and pub_at < acc_at and ksplit == 0 and poll_step > sig_step and acc_at % 2 == 0 and misc_step + 8 <= acc_at - 2 and acc_at < 48
    assert w2_step + 1 < load_step < unp_at and max(last_use[j] for j in range(9)) < load_step
    stamp()
    if not steps: stamp(cyc=True)
    e(f"v_lshrrev_b32 v{vT}, 5, v{vLane}")
    e(f"v_lshlrev_b32 v{vT}, 8, v{vT}")
    e(f"v_and_b32 v{vT2}, 31, v{vLane}")
    e(f"v_lshl_add_u32 v{vT}, v{vT2}, 2, v{vT}")
    e(f"s_lshl_b32 s{sT0}, s{sW}, 9")
    e(f"v_add_u32 v{vT}, s{sT0}, v{vT}")
    a = vACC["K"]
    R = vEB
    for rb in range(2):
        e(f"v_mov_b32 v{R+rb}, 0")
        e(f"v_mov_b32 v{R+2+rb}, 0")
    E.wait_vm(["Pld"])
    e("s_nop 7")
    for rb in range(2):
        for r in range(16):
            x = a + rb * 16 + r
            e(f"v_add_f32 v{x}, v{x}, v{112+rb*16+r}")
        for r in range(16):
            x = a + rb * 16 + r
            e(f"v_max_f32 v{x}, 0, v{x}")
        for r in range(16):
            x = a + rb * 16 + r
            e(f"v_fmac_f32 v{R+rb+2*(r&1)}, v{x}, v{vW2+r}")
        e(f"v_add_f32 v{R+rb}, v{R+rb}, v{R+rb+2}")
        E.dsop(f"ds_write_b32 v{vT}, v{R+rb} offset:{RED+128*rb}", "red")
    E.drain_ds()
    e("s_barrier")
    e(f"s_cmp_lg_u32 s{sW}, 0")
    e("s_cbranch_scc1 L_end")
    e(f"v_lshlrev_b32 v{vT}, 2, v{vLane}")
    Y = vEB + 12
    for kk in range(8):
        e(f"ds_read_b32 v{Y+kk}, v{vT} offset:{RED + kk*256}")
    e(f"s_lshl_b32 s{sT0}, s{sKeepRow}, 1")
    e(f"v_lshlrev_b32 v{vT}, 1, v{vLane}")
    e("s_waitcnt lgkmcnt(0)")
    e(f"v_add_f32 v{Y}, v{Y}, v{Y+1}")
    e(f"v_add_f32 v{Y+2}, v{Y+2}, v{Y+3}")
    e(f"v_add_f32 v{Y+4}, v{Y+4}, v{Y+5}")
    e(f"v_add_f32 v{Y+6}, v{Y+6}, v{Y+7}")
    e(f"v_add_f32 v{Y}, v{Y}, v{Y+2}")
    e(f"v_add_f32 v{Y+4}, v{Y+4}, v{Y+6}")
    e(f"v_add_f32 v{Y}, v{Y}, v{vWide}")
    e(f"v_add_f32 v{Y}, v{Y}, v{Y+4}")
    e(f"v_mul_f32 v{Y}, 0xbfb8aa3b, v{Y}")
    e(f"v_exp_f32 v{Y}, v{Y}")
    e("s_nop 0")
    e(f"v_add_f32 v{Y}, 1.0, v{Y}")
    e(f"v_rcp_f32 v{Y}, v{Y}")
    e("s_nop 0")
    e(f"v_cvt_pk_bf16_f32 v{Y}, v{Y}, v{Y}")
    e(f"buffer_store_short v{Y}, v{vT}, s[{S_OUT}:{S_OUT+3}], s{sT0} offen")
    if diag and hdiag:
        e(f"s_memrealtime s[{sTS+2}:{sTS+3}]")
        e("s_waitcnt lgkmcnt(0)")
        e(f"s_not_b32 s{sT0}, s{sTS}")
        e(f"v_writelane_b32 v0, s{sT0}, 0")
        e(f"v_writelane_b32 v0, s{sTS+2}, 1")
        e(f"v_mov_b32 v{vT}, 0x100")
        for lane, slot in ((0, 8), (1, 9), (4, 10), (6, 11), (8, 12), (10, 13), (12, 14), (16, 15)):
            e(f"s_mov_b32 s{sT0}, {4*slot}")
            e(f"v_writelane_b32 v{vT}, s{sT0}, {lane}")
        e(f"buffer_atomic_umax v0, v{vT}, s[{S_DBG}:{S_DBG+3}], 0 offen")
    elif diag:
        e(f"s_memrealtime s[{sTS+2}:{sTS+3}]")
        e("s_waitcnt lgkmcnt(0)")
        for n, r in enumerate((sTS, sTS+1, sTS+2, sTS+3)):
            e(f"v_writelane_b32 v0, s{r}, {n}")
        e(f"v_writelane_b32 v0, s{sTS}, 63")
        e(f"s_add_u32 s{S_SM}, s58, {16<<20}")
        e(f"s_addc_u32 s{S_SM+1}, s59, 0")
        e(f"s_and_b32 s{S_SM+1}, s{S_SM+1}, 0xffff")
        e(f"s_mov_b32 s{S_SM+2}, 65536")
        e(f"s_mov_b32 s{S_SM+3}, 0x20000")
        e(f"s_lshl_b32 s{sT0}, s2, 8")
        e(f"v_lshlrev_b32 v{vT}, 2, v{vLane}")
        e(f"buffer_store_dword v0, v{vT}, s[{S_SM}:{S_SM+3}], s{sT0} offen")
    e("s_endpgm")
    for (lab, off, want) in (("L_spin", 0, sTag), ("L_rspin", 128, sNext)):
        e(f"{lab}:")
        e(f"s_mov_b32 s{sSpin}, {1<<17}")
        e(f"{lab}_loop:")
        e(f"buffer_load_dword v{vFlag}, v{vFlagOff}, s[{S_WS}:{S_WS+3}], 0 offen offset:{off} sc1")
        e("s_waitcnt vmcnt(0)")
        e(f"v_readfirstlane_b32 s{sT0}, v{vFlag}")
        e("s_nop 1")
        e(f"s_cmp_eq_u32 s{sT0}, s{want}")
        e(f"s_cbranch_scc1 {lab}_done")
        e(f"s_sub_u32 s{sSpin}, s{sSpin}, 1")
        e(f"s_cmp_lg_u32 s{sSpin}, 0")
        e(f"s_cbranch_scc1 {lab}_loop")
        e(f"s_branch {lab}_done")
    e("L_end:")
    e("s_endpgm")
    body = "\n".join(E.L)
    out = HEADER
    out += (
        "; Wide & Deep forward, one launch, 256 workgroups of 4 waves (one per CU).\n"
        "; Workgroup = 128 batch rows x 50 of the 100 fields (K split in two). Its half of W1 (1600 x 128 bf16) is loaded once\n"
        "; through LDS (DMA + transposing reads) and stays in 400 registers per wave (wave w owns hidden units 32w..32w+31).\n"
        "; Embedding rows are gathered by LDS-DMA into a ring of 64-row tiles and fed to 32x32x16 MFMAs (D = W1^T * E^T).\n"
        "; The partial sums of 64 rows go to the partner workgroup (id ^ 8) through d_ws as bf16; the other 64 rows are finished\n"
        "; here: + partner partial + b1, ReLU, dot with W2, + wide part, sigmoid. Hand-off: sc1 stores, then a flag word on a\n"
        "; private d_ws line holding (old content + 1); the consumer first announces on its own line which value it waits for.\n")
    out += "; Override launch geometry by editing the next line (default: block=256,\n"
    out += f"; @launch grid=(256,1,1) block=(256,1,1) lds={LDS_TOTAL}\n"
    out += f""".amdgcn_target "amdgcn-amd-amdhsa--gfx950"
.text
.globl {NAME}_kernel
.p2align 8
.type {NAME}_kernel,@function
{NAME}_kernel:
{body}
.section .rodata,"a"
.p2align 6
.amdhsa_kernel {NAME}_kernel
  .amdhsa_next_free_vgpr 512
  .amdhsa_next_free_sgpr 102
  .amdhsa_accum_offset 256
  .amdhsa_group_segment_fixed_size 0
  .amdhsa_kernarg_size 96
  .amdhsa_user_sgpr_count 2
  .amdhsa_user_sgpr_kernarg_segment_ptr 1
  .amdhsa_system_sgpr_workgroup_id_x 1
  .amdhsa_float_denorm_mode_32 3
.end_amdhsa_kernel
"""
    if diag:
        out = out.replace("; @launch", f"; STAMPS nst={stamp_next[0]}\n; @launch", 1)
    return out

if __name__ == "__main__":
    kw = {}
    path = None
    for a in sys.argv[1:]:
        if a.endswith(".s"): path = a
        elif a == "diag": kw["diag"] = True
        elif "=" in a:
            n, v = a.split("="); kw[n] = int(v) if v.lstrip("-").isdigit() else v
    s = gen(**kw)
    open(path or "cdna_kernels/" + NAME + ".s", "w").write(s)
```

```python
import sys
from gen_s2 import Em, NAME, HEADER


def gen(diag=False, steps=0, NWB=12, NA=12, tlbwarm=True, poll_lead=10, sig_delay=8, nomfma=0, gearly=8, order="SK", wgrp=2, probe=0, hdiag=0, spindbg=0, halftab=0, pf=0, bfx=1, unp_at=97, spread=4, st0=0, pub_at=10, tag_at=52, n_init=6, rmax=4, inter=1, misc_step=2, acc_at=20, ksplit=0, wfirst=0, pubbyte=1):
    E = Em(); e = E.e
    DG = NA - 2
    NAD = 8
    WST = 0
    ADED = WST + NWB * 8192
    RING0 = ADED + NAD * 4096 - NA * 4096
    IDX = ADED + NAD * 4096
    XW = IDX + 26624
    B1 = XW + 2048
    W2 = B1 + 1024
    LDS_TOTAL = W2 + 1024
    RED = WST
    assert LDS_TOTAL <= 163840, LDS_TOTAL
    assert NA * 4096 <= 65536 and RING0 >= 0
    def aslot(i):
        r = i % NA
        return (NA - NAD) * 4096 + r * 4096 if r < NAD else (r - NAD) * 4096
    def aslot_wbufs(i):
        a = RING0 + aslot(i)
        return None if a >= ADED else (a - WST) // 8192
    S_IDX, S_TAB, S_W1, S_MISC, S_OUT, S_SM, S_WS, S_DBG = 8, 12, 16, 20, 24, 28, 32, 60
    sW, sKh, sColS, sColK, sColW, sW2048, sW1024, sT0, sT1, sWbase, sFoff = 64, 65, 66, 67, 68, 69, 70, 71, 72, 73, 74
    sKeepRow, sPartOff, sMyOff, sFlagBit = 75, 76, 77, 78
    sWW, sBW, sB2 = 80, 93, 94
    sSpin = 95
    sTS = 96
    stamp_next = [2]
    def stamp(cyc=False):
        if diag:
            n = stamp_next[0]; stamp_next[0] += 1
            e(f"s_memtime s[6:7]" if cyc else "s_memrealtime s[6:7]")
            E.drain_ds()
            e(f"v_writelane_b32 v0, s6, {2*n}")
            e(f"v_writelane_b32 v0, s7, {2*n+1}")
    vLane, vPiece, vWoff, vIdxB, vE0, vE1, vWtr = 1, 2, 3, 4, 5, 6, 7
    vI = {"S": 8, "K": 10}
    vT, vT2, vFlagOff, vFlag = 12, 13, 14, 15
    vEB = 16
    vACC = {"S": 48, "K": 80}
    def wreg(slot, lo, n):
        if slot < 18:
            b = 112 + slot * 8 + lo
            return f"v[{b}:{b+n-1}]"
        b = (slot - 18) * 8 + lo
        return f"a[{b}:{b+n-1}]"

    items = [("S", j) for j in range(50)] + [("K", j) for j in range(50)]
    last_use = {}
    for t, (sub, j) in enumerate(items): last_use[j] = t
    lastS = 49

    e("s_cmp_ge_u32 s2, 256")
    e("s_cbranch_scc1 L_end")
    if diag: e(f"s_memrealtime s[{sTS}:{sTS+1}]")
    e("s_load_dwordx16 s[36:51], s[0:1], 0")
    e("s_load_dwordx4 s[52:55], s[0:1], 64")
    e("s_load_dwordx2 s[58:59], s[0:1], 88")
    e(f"v_and_b32 v{vLane}, 63, v0")
    e(f"v_lshrrev_b32 v{vT}, 6, v0")
    e("s_nop 0")
    e(f"v_readfirstlane_b32 s{sW}, v{vT}")
    if diag: e("v_mov_b32 v0, 0")
    X = vEB
    vQ = X + 20
    for i in range(4):
        e(f"v_add_u32 v{X}, {64*i}, v{vLane}")
        e(f"v_mul_u32_u24 v{X+1}, 5042, v{X}")
        e(f"v_lshrrev_b32 v{X+1}, 16, v{X+1}")
        e(f"v_mul_u32_u24 v{X+2}, 13, v{X+1}")
        e(f"v_sub_u32 v{X+2}, v{X}, v{X+2}")
        e(f"v_mul_u32_u24 v{X+1}, 400, v{X+1}")
        e(f"v_lshl_add_u32 v{vQ+i}, v{X+2}, 4, v{X+1}")
        if i: e(f"v_subrev_u32 v{vQ+i}, {1024*i}, v{vQ+i}")
    e(f"v_bfe_u32 v{X+1}, v{vLane}, 4, 2")
    e(f"v_and_b32 v{X}, 15, v{vLane}")
    e(f"v_lshlrev_b32 v{X+2}, 2, v{X+1}")
    e(f"v_xor_b32 v{X}, v{X}, v{X+2}")
    e(f"v_lshlrev_b32 v{X}, 4, v{X}")
    e(f"v_lshl_add_u32 v{vWoff}, v{X+1}, 8, v{X}")
    e(f"s_lshr_b32 s{sKh}, s2, 3")
    e(f"s_and_b32 s{sKh}, s{sKh}, 1")
    e(f"s_lshr_b32 s{sT0}, s2, 4")
    e(f"s_lshl_b32 s{sT1}, s{sT0}, 3")
    e(f"s_and_b32 s{sKeepRow}, s2, 7")
    e(f"s_add_u32 s{sT1}, s{sT1}, s{sKeepRow}")
    e(f"s_lshl_b32 s{sT1}, s{sT1}, 7")
    e(f"s_lshl_b32 s{sKeepRow}, s{sKh}, 6")
    e(f"s_add_u32 s{sKeepRow}, s{sKeepRow}, s{sT1}")
    e(f"s_mul_i32 s{sT0}, s{sT0}, 25")
    e(f"s_lshr_b32 s{sT0}, s{sT0}, 4")
    e(f"s_lshl_b32 s{sColS}, s{sT0}, 3")
    e(f"s_mov_b32 s{sColK}, s{sColS}")
    e(f"s_lshl_b32 s{sColW}, s{sT0}, 14")
    e(f"s_lshl_b32 s{sW2048}, s{sW}, 11")
    e(f"s_lshl_b32 s{sW1024}, s{sW}, 10")
    e(f"s_mul_i32 s{sWbase}, s{sKh}, {50*8192}")
    e(f"s_add_u32 s{sWbase}, s{sWbase}, s{sW2048}")
    e(f"s_xor_b32 s{sT0}, s{sKeepRow}, 64")
    e(f"s_lshl_b32 s{sT1}, s{sW}, 4")
    e(f"s_add_u32 s{sT0}, s{sT0}, s{sT1}")
    e(f"s_mul_i32 s{sT0}, s{sT0}, 400")
    e(f"s_mul_i32 s{sFoff}, s{sKh}, 192")
    e(f"s_add_u32 s{sT0}, s{sT0}, s{sFoff}")
    e(f"s_mul_i32 s{sT1}, s{sW}, 3328")
    E.drain_ds()
    def srd(d, p, size):
        e(f"s_mov_b32 s{d}, s{p}")
        e(f"s_and_b32 s{d+1}, s{p+1}, 0xffff")
        e(f"s_mov_b32 s{d+2}, {size}")
        e(f"s_mov_b32 s{d+3}, 0x20000")
    srd(S_W1, 46, 3200*256)
    def w_dma_half(slot, q):
        if q == 0:
            buf = WST + (slot % NWB) * 8192
            e(f"s_add_u32 m0, s{sW2048}, {buf}")
            e(f"s_add_u32 s{sFoff}, s{sColW}, s{sWbase}")
        E.vmem(f"buffer_load_dwordx4 v{vWoff}, s[{S_W1}:{S_W1+3}], s{sFoff} offen offset:{q*1024} lds", ("W", slot))
        if q == 1:
            e(f"s_add_u32 s{sColW}, s{sColW}, 8192")
            e(f"s_cmp_ge_u32 s{sColW}, {50*8192}")
            e(f"s_cselect_b32 s{sColW}, 0, s{sColW}")
    def w_dma(slot):
        w_dma_half(slot, 0); w_dma_half(slot, 1)
    for j in range(wfirst):
        w_dma(j)
    srd(S_IDX, 36, 16384*400)
    def idx_dma(ldsbase, tag, lo=0, hi=4, Q=None, soff=None, m0=None):
        Q = vQ if Q is None else Q
        soff = sT0 if soff is None else soff
        e(m0 if m0 else f"s_add_u32 m0, s{sT1}, {ldsbase}")
        e("s_nop 0")
        for i in range(lo, min(hi, 3)):
            E.vmem(f"buffer_load_dwordx4 v{Q+i}, s[{S_IDX}:{S_IDX+3}], s{soff} offen offset:{i*1024} lds", tag)
        if hi == 4:
            e("s_mov_b64 exec, 0xffff")
            E.vmem(f"buffer_load_dwordx4 v{Q+3}, s[{S_IDX}:{S_IDX+3}], s{soff} offen offset:3072 lds", tag)
            e("s_mov_b64 exec, -1")
    if probe: stamp()
    idx_dma(IDX, "idxS")
    if probe:
        E.drain_vm(); stamp()
    e(f"s_lshl_b32 s{sFoff}, s{sKh}, 1")
    e(f"s_sub_u32 s{sFoff}, s{sFoff}, 1")
    e(f"s_mul_i32 s{sFoff}, s{sFoff}, {64*400}")
    e(f"s_add_u32 s{sT0}, s{sT0}, s{sFoff}")
    idx_dma(IDX + 13312, "idxK", 0, 4 - ksplit)
    if ksplit:
        e(f"s_mov_b32 s3, s{sT0}")
        e(f"s_add_u32 s101, s{sT1}, {IDX + 13312}")
    if probe:
        E.drain_vm(); stamp()
    srd(S_TAB, 38, (50000 if halftab else 100000)*64)
    if tlbwarm:
        e("s_load_dword s4, s[38:39], 0")
        for a in (0x200000, 0x400000, 0x600000):
            e(f"s_mov_b32 s5, {a}")
            e("s_load_dword s4, s[38:39], s5")
    if pf:
        e(f"s_lshr_b32 s{sT0}, s2, 3")
        e(f"s_mul_i32 s{sT0}, s{sT0}, 102400")
        e(f"s_mul_i32 s{sFoff}, s{sW}, 25600")
        e(f"s_add_u32 s{sT0}, s{sT0}, s{sFoff}")
        e(f"v_lshlrev_b32 v{vT}, 4, v{vLane}")
        e(f"s_add_u32 m0, s{sW1024}, {ADED}")
        for q in range(25):
            E.vmem(f"buffer_load_dwordx4 v{vT}, s[{S_TAB}:{S_TAB+3}], s{sT0} offen lds", "pf")
            e(f"s_add_u32 s{sT0}, s{sT0}, 1024")
    for j in range(wfirst, n_init):
        w_dma(j)
        if probe and j == 1:
            E.drain_vm(); stamp()
    if not probe: stamp()
    e(f"v_and_b32 v{X}, 3, v{vLane}")
    e(f"v_bfe_u32 v{X+1}, v{vLane}, 4, 2")
    e(f"v_xor_b32 v{X}, v{X}, v{X+1}")
    e(f"v_lshlrev_b32 v{vPiece}, 4, v{X}")
    e(f"v_lshrrev_b32 v{X}, 2, v{vLane}")
    e(f"v_mul_u32_u24 v{vIdxB}, 208, v{X}")
    e(f"s_lshl_b32 s{sT0}, s{sKh}, 3")
    e(f"s_add_u32 s{sT0}, s{sT0}, s{sT1}")
    e(f"s_add_u32 s{sT0}, s{sT0}, {IDX}")
    e(f"v_add_u32 v{vIdxB}, s{sT0}, v{vIdxB}")
    e(f"v_and_b32 v{X}, 31, v{vLane}")
    e(f"v_lshlrev_b32 v{X}, 6, v{X}")
    e(f"v_add_u32 v{X}, {RING0}, v{X}")
    e(f"v_lshrrev_b32 v{X+1}, 5, v{vLane}")
    e(f"v_bfe_u32 v{X+2}, v{vLane}, 2, 2")
    e(f"v_xor_b32 v{X+3}, v{X+1}, v{X+2}")
    e(f"v_lshl_add_u32 v{vE0}, v{X+3}, 4, v{X}")
    e(f"v_xor_b32 v{X+3}, 2, v{X+3}")
    e(f"v_lshl_add_u32 v{vE1}, v{X+3}, 4, v{X}")
    e(f"v_lshl_add_u32 v{X+3}, v{X+1}, 3, v{X+2}")
    e(f"v_lshlrev_b32 v{X+3}, 8, v{X+3}")
    e(f"v_bfe_u32 v{X+4}, v{vLane}, 4, 1")
    e(f"v_lshlrev_b32 v{X+4}, 1, v{X+4}")
    e(f"v_bfe_u32 v{X+5}, v{vLane}, 1, 1")
    e(f"v_add_u32 v{X+4}, v{X+4}, v{X+5}")
    e(f"s_lshl_b32 s{sT0}, s{sW}, 2")
    e(f"v_add_u32 v{X+4}, s{sT0}, v{X+4}")
    e(f"v_lshlrev_b32 v{X+2}, 2, v{X+2}")
    e(f"v_xor_b32 v{X+4}, v{X+4}, v{X+2}")
    e(f"v_and_b32 v{X+5}, 1, v{vLane}")
    e(f"v_lshlrev_b32 v{X+5}, 3, v{X+5}")
    e(f"v_add_u32 v{X+3}, v{X+3}, v{X+5}")
    e(f"v_lshl_add_u32 v{vWtr}, v{X+4}, 4, v{X+3}")
    e(f"v_add_u32 v{vT2}, 65536, v{vWtr}")
    vWtrH = vT2
    e(f"s_lshl_b32 s{sMyOff}, s2, {14 if bfx else 15}")
    e(f"s_xor_b32 s{sT0}, s2, 8")
    e(f"s_lshl_b32 s{sPartOff}, s{sT0}, {14 if bfx else 15}")
    e(f"s_lshl_b32 s{sT0}, s{sW}, {12 if bfx else 13}")
    e(f"s_add_u32 s{sMyOff}, s{sMyOff}, s{sT0}")
    e(f"s_add_u32 s{sPartOff}, s{sPartOff}, s{sT0}")
    srd(S_OUT, 54, 16384*2)
    assert bfx and not hdiag and not spindbg
    FLAGS = 256 * 16384
    srd(S_WS, 58, FLAGS + 256 * 256)
    sTag, sNext = 100, 79


    def w_tr_piece(slot, s):
        buf = WST + (slot % NWB) * 8192
        base = vWtr if buf < 65536 else vWtrH
        off = buf if buf < 65536 else buf - 65536
        for t in range(2):
            E.dsop(f"ds_read_b64_tr_b16 {wreg(slot, s*4 + t*2, 2)}, {'v%d' % base} offset:{off + s*4096 + t*1024}", ("Wtr", slot))
    def w_tr(slot):
        w_tr_piece(slot, 0); w_tr_piece(slot, 1)
    def misc_loads():
        e(f"v_lshlrev_b32 v{vT}, 4, v{vLane}")
        e(f"s_cmp_lt_u32 s{sW}, 2")
        e(f"s_cselect_b32 s{S_MISC}, s40, s48")
        e(f"s_cselect_b32 s{S_MISC+1}, s41, s49")
        e(f"s_mov_b32 s{S_MISC+2}, 256")
        e(f"s_cselect_b32 s{S_MISC+2}, {16384*26}, s{S_MISC+2}")
        e(f"s_cmp_eq_u32 s{sW}, 3")
        e(f"s_cselect_b32 s{S_MISC}, s50, s{S_MISC}")
        e(f"s_cselect_b32 s{S_MISC+1}, s51, s{S_MISC+1}")
        e(f"s_and_b32 s{S_MISC+1}, s{S_MISC+1}, 0xffff")
        e(f"s_mov_b32 s{S_MISC+3}, 0x20000")
        e(f"s_mul_i32 s{sT0}, s{sKeepRow}, 26")
        e(f"s_add_u32 s{sT0}, s{sT0}, s{sW1024}")
        e(f"s_cmp_lt_u32 s{sW}, 2")
        e(f"s_cselect_b32 s{sT0}, s{sT0}, 0")
        e(f"s_add_u32 m0, s{sW1024}, {XW}")
        e("s_nop 0")
        E.vmem(f"buffer_load_dwordx4 v{vT}, s[{S_MISC}:{S_MISC+3}], s{sT0} offen lds", "misc")
        e(f"v_lshlrev_b32 v{vSm}, 1, v{vLane}")
        for n, (p, size) in enumerate(((42, 26), (44, 2), (52, 2))):
            srd(S_SM, p, size)
            E.vmem(f"buffer_load_ushort v{vSm+1+n}, v{vSm}, s[{S_SM}:{S_SM+3}], 0 offen", "small")
            e("s_nop 0")
    vSm = vACC['K'] + 8

    colreg = {"S": sColS, "K": sColK}
    def idx_read(sub, pair, dst, tmp):
        e(f"v_add_u32 v{tmp}, s{colreg[sub]}, v{vIdxB}")
        E.dsop(f"ds_read_b64 v[{dst}:{dst+1}], v{tmp} offset:{13312 if sub == 'K' else 0}", ("idx", sub, pair))
        c = colreg[sub]
        e(f"s_add_u32 s{c}, s{c}, 8")
        e(f"s_cmp_ge_u32 s{c}, 200")
        e(f"s_cselect_b32 s{c}, 0, s{c}")
    def g_issue(i, reg):
        slot = RING0 + aslot(i)
        e(f"v_lshl_add_u32 v{reg}, v{reg}, 6, v{vPiece}")
        e(f"s_add_u32 m0, s{sW1024}, {slot}")
        e("s_nop 0")
        E.vmem(f"buffer_load_dwordx4 v{reg}, s[{S_TAB}:{S_TAB+3}], 0 offen lds", ("G", i))

    rmax = max(rmax, wgrp)
    ngrp = (50 + wgrp - 1) // wgrp
    groups = [list(range(g * wgrp, min(50, (g + 1) * wgrp))) for g in range(ngrp)]
    nxt_w = n_init
    misc_at = 2
    tb = X + 0
    early_done = False
    for g, grp in enumerate(groups):
        E.wait_vm([("W", j) for j in grp])
        if g > 0: E.wait_ds([("Wtr", j) for j in groups[g-1]])
        e("s_barrier")
        if g == 0 and not probe: stamp()
        cnt = 0
        dmas = []
        while nxt_w < 50 and nxt_w < grp[0] + NWB and cnt < rmax:
            dmas += [(nxt_w, 0), (nxt_w, 1)]; nxt_w += 1; cnt += 1
        trs = [(j, sx) for j in grp for sx in range(2)] if inter else []
        while dmas or trs:
            if trs and inter == 1: w_tr_piece(*trs.pop(0))
            if dmas: w_dma_half(*dmas.pop(0))
            if trs and inter == 2: w_tr_piece(*trs.pop(0))
        if nxt_w >= 50 and not early_done:
            early_done = True
            E.wait_vm(["idxS"])
            for n in range(gearly // 2):
                idx_read("S", n, tb + 2 * n, vT)
            E.wait_ds([("idx", "S", gearly // 2 - 1)])
            for i in range(gearly):
                assert aslot_wbufs(i) is None
                g_issue(i, tb + i)
            if not probe: stamp()
        if not inter:
            for j in grp: w_tr(j)
    assert early_done
    def small_scalars():
        E.wait_vm(["small"])
        for n in range(3):
            e(f"v_lshlrev_b32 v{vSm+1+n}, 16, v{vSm+1+n}")
        e("s_nop 0")
        for j in range(13):
            e(f"v_readlane_b32 s{sWW+j}, v{vSm+1}, {j}")
        e(f"v_readlane_b32 s{sBW}, v{vSm+2}, 0")
        e(f"v_readlane_b32 s{sB2}, v{vSm+3}, 0")
    def init_accK():
        e(f"v_lshrrev_b32 v{vT}, 5, v{vLane}")
        e(f"v_lshlrev_b32 v{vT}, 3, v{vT}")
        e(f"s_lshl_b32 s{sT0}, s{sW}, 6")
        e(f"v_add_u32 v{vT}, s{sT0}, v{vT}")
        e(f"v_add_u32 v{vT}, {B1}, v{vT}")
        a = vACC["K"]
        for q in range(4):
            E.dsop(f"ds_read_b64 v[{a+16+2*q}:{a+17+2*q}], v{vT} offset:{16*q}", "b1")
        E.wait_ds(["b1"])
        for q in range(4):
            s0 = a + 16 + 2 * q
            e(f"v_lshlrev_b32 v{a+4*q}, 16, v{s0}")
            e(f"v_and_b32 v{a+4*q+1}, 0xffff0000, v{s0}")
            e(f"v_lshlrev_b32 v{a+4*q+2}, 16, v{s0+1}")
            e(f"v_and_b32 v{a+4*q+3}, 0xffff0000, v{s0+1}")
        for r in range(16):
            e(f"v_mov_b32 v{a+16+r}, v{a+r}")

    vFp = vACC["K"] + 12
    sOwnL, sPartL = 101, 3
    def fold_load():
        e(f"s_lshl_b32 s{sOwnL}, s2, 8")
        e(f"s_add_u32 s{sOwnL}, s{sOwnL}, {FLAGS}")
        e(f"s_xor_b32 s{sPartL}, s2, 8")
        e(f"s_lshl_b32 s{sPartL}, s{sPartL}, 8")
        e(f"s_add_u32 s{sPartL}, s{sPartL}, {FLAGS}")
        e(f"v_mov_b32 v{vT}, 0")
        E.vmem(f"buffer_load_dword v{vFlag}, v{vT}, s[{S_WS}:{S_WS+3}], s{sOwnL} offen sc1", "fold")
        E.vmem(f"buffer_load_dword v{vFp}, v{vT}, s[{S_WS}:{S_WS+3}], s{sPartL} offen sc1", "fold")
    def publish():
        E.wait_vm(["fold"])
        e(f"v_readfirstlane_b32 s{sNext}, v{vFlag}")
        e(f"v_readfirstlane_b32 s{sTag}, v{vFp}")
        e("s_nop 1")
        e(f"s_add_u32 s{sNext}, s{sNext}, 1")
        e(f"s_add_u32 s{sTag}, s{sTag}, 1")
        e(f"v_mov_b32 v{vFlag}, s{sTag}")
        e(f"v_mov_b32 v{vT}, 0")
        e(f"s_cmp_eq_u32 s{sW}, 0")
        e(f"s_cselect_b32 s{sT0}, 1, 0")
        e(f"s_mov_b32 exec_hi, 0")
        e(f"s_mov_b32 exec_lo, s{sT0}")
        E.vmem(f"buffer_store_dword v{vFlag}, v{vT}, s[{S_WS}:{S_WS+3}], s{sOwnL} offen offset:128 sc1", "pub")
        e("s_mov_b64 exec, -1")
    E.drain_ds()
    e("s_barrier")
    for n in range(gearly // 2, DG // 2):
        idx_read("S", n, tb + 2 * (n - gearly // 2), vT)
    E.drain_ds()
    for i in range(gearly, DG):
        g_issue(i, tb + (i - gearly))
    if not probe: stamp()
    pair_state = {"S": None, "K": None}
    nxt_pair = {"S": DG // 2, "K": 0}
    assert DG % 2 == 0 and gearly % 2 == 0

    def ensure_pair(sub, pair):
        if pair_state[sub] != pair and pair < 25:
            assert pair == nxt_pair[sub], (sub, pair, nxt_pair)
            idx_read(sub, pair, vI[sub], vT2)
            pair_state[sub] = pair
            nxt_pair[sub] = pair + 1
    def e_reads(i):
        buf = vEB + (i % 2) * 16
        slot = aslot(i)
        for s in range(2):
            for rb in range(2):
                d = buf + (s * 2 + rb) * 4
                E.dsop(f"ds_read_b128 v[{d}:{d+3}], v{vE1 if s else vE0} offset:{slot + rb*2048}", ("E", i))

    sig_step = lastS + 1 + sig_delay + (st0 + 3 * spread if spread else 0)
    sig_step += sig_step & 1
    part_ok = max(last_use[j] for j in range(6)) + 1
    load_step = max(part_ok, 100 - poll_lead + 4, sig_step + 5)
    poll_step = load_step - 4
    w2_step = max(part_ok, 70)
    add_step = 98
    vW2 = 144
    vWide = 160
    assert last_use[6] < w2_step and last_use[7] < w2_step

    for t in range(-2, 100):
        if t % 2 == 0:
            need = [("G", i) for i in (t + 1, t + 2) if 0 <= i < 100]
            if t == sig_step: need.append("Pst")
            if t == -2: need.append("idxK")
            if t == acc_at: need.append("misc")
            if ksplit and t == acc_at - 4: need.append("idxK2")
            if need: E.wait_vm(need)
            e("s_barrier")
            if t == sig_step:
                e(f"v_mov_b32 v{vT}, 0")
                e(f"v_mov_b32 v{vFlag}, s{sNext}")
                e(f"s_cmp_eq_u32 s{sW}, 0")
                e(f"s_cselect_b32 s{sT0}, 1, 0")
                e(f"s_mov_b32 exec_hi, 0")
                e(f"s_mov_b32 exec_lo, s{sT0}")
                E.vmem(f"buffer_store_dword v{vFlag}, v{vT}, s[{S_WS}:{S_WS+3}], s{sOwnL} offen sc1", "sig")
                e("s_mov_b64 exec, -1")
                e("s_nop 3")
        if steps and t in (0, 10, 20, 30, 40, 46, 50, 52, 54, 56, 58, 60, 64, 70, 80, 90, 94, 96): stamp()
        mf = []
        if t >= 0:
            sub, j = items[t]
            buf = vEB + (t % 2) * 16
            a = vACC[sub]
            E.wait_ds([("E", t)])
            for s in range(2):
                for rb in range(2):
                    c = f"v[{a+rb*16}:{a+rb*16+15}]"
                    src = "0" if (sub == "S" and j == 0 and s == 0) else c
                    mf.append(f"v_mfma_f32_32x32x16_bf16 {c}, {wreg(j, s*4, 4)}, v[{buf+(s*2+rb)*4}:{buf+(s*2+rb)*4+3}], {src}")
        def mfma(n):
            if n < len(mf) and not nomfma: e(mf[n])
        mfma(0)
        if 0 <= t + 1 < 100: e_reads(t + 1)
        mfma(1)
        gi = t + DG
        if DG <= gi < 100 and t >= 0:
            sub2, j2 = items[gi]
            assert pair_state[sub2] == (j2 >> 1), (t, gi, sub2, j2, pair_state)
            E.wait_ds([("idx", sub2, j2 >> 1)])
            g_issue(gi, vI[sub2] + (j2 & 1))
            if j2 & 1: pair_state[sub2] = None
        mfma(2)
        mfma(3)
        for look in (t + 1 + DG, t + 2 + DG):
            if DG <= look < 100 and t >= -1:
                sub3, j3 = items[look]
                if pair_state[sub3] is None and (j3 & 1) == 0:
                    ensure_pair(sub3, j3 >> 1)
        if t == lastS:
            e("s_nop 15")
            a = vACC["S"]
            e(f"v_lshlrev_b32 v{vT}, 4, v{vLane}")
            if bfx:
                for r in range(16):
                    e(f"v_cvt_pk_bf16_f32 v{a+r}, v{a+2*r}, v{a+2*r+1}")
                if not spread:
                    for q in range(4):
                        E.vmem(f"buffer_store_dwordx4 v[{a+4*q}:{a+4*q+3}], v{vT}, s[{S_WS}:{S_WS+3}], s{sMyOff} offen offset:{q*1024} sc1", "Pst")
            else:
                e(f"s_add_u32 s{sT0}, s{sMyOff}, 4096")
                for q in range(8):
                    so = sMyOff if q < 4 else sT0
                    E.vmem(f"buffer_store_dwordx4 v[{a+4*q}:{a+4*q+3}], v{vT}, s[{S_WS}:{S_WS+3}], s{so} offen offset:{(q%4)*1024} sc1", "Pst")
            if not steps:
                stamp()
                stamp(cyc=True)
        if spread and bfx and lastS + st0 <= t < lastS + st0 + 4 * spread and (t - lastS - st0) % spread == 0:
            q = (t - lastS - st0) // spread
            a = vACC["S"]
            e(f"v_lshlrev_b32 v{vT}, 4, v{vLane}")
            E.vmem(f"buffer_store_dwordx4 v[{a+4*q}:{a+4*q+3}], v{vT}, s[{S_WS}:{S_WS+3}], s{sMyOff} offen offset:{q*1024} sc1", "Pst")
        if ksplit and t == -1:
            Q = vACC["K"] + 16
            for i in range(4 - ksplit, 4):
                e(f"v_add_u32 v{Q+4}, {64*i}, v{vLane}")
                e(f"v_mul_u32_u24 v{Q+5}, 5042, v{Q+4}")
                e(f"v_lshrrev_b32 v{Q+5}, 16, v{Q+5}")
                e(f"v_mul_u32_u24 v{Q+6}, 13, v{Q+5}")
                e(f"v_sub_u32 v{Q+6}, v{Q+4}, v{Q+6}")
                e(f"v_mul_u32_u24 v{Q+5}, 400, v{Q+5}")
                e(f"v_lshl_add_u32 v{Q+i}, v{Q+6}, 4, v{Q+5}")
                e(f"v_subrev_u32 v{Q+i}, {1024*i}, v{Q+i}")
            idx_dma(0, "idxK2", 4 - ksplit, 4, Q=Q, soff=3, m0="s_mov_b32 m0, s101")
        if t == misc_step - 2: fold_load()
        if t == misc_step: misc_loads()
        if t == pub_at:
            publish()
            e("s_nop 3")
        if t == acc_at - 2: small_scalars()
        if t == acc_at: init_accK()
        if t == tag_at:
            e(f"v_mov_b32 v{vFlagOff}, s{sPartL}")
            E.vmem(f"buffer_load_dword v{vFlag}, v{vFlagOff}, s[{S_WS}:{S_WS+3}], 0 offen offset:128 sc1", "rdy")
        if t == tag_at + 8:
            E.wait_vm(["rdy"])
            e(f"v_readfirstlane_b32 s{sT0}, v{vFlag}")
            e("s_nop 1")
            e(f"s_cmp_eq_u32 s{sT0}, s{sNext}")
            e("s_cbranch_scc0 L_rspin")
            e("L_rspin_done:")
        if t == w2_step:
            e(f"v_lshrrev_b32 v{vT}, 5, v{vLane}")
            e(f"v_lshlrev_b32 v{vT}, 3, v{vT}")
            e(f"s_lshl_b32 s{sT0}, s{sW}, 6")
            e(f"v_add_u32 v{vT}, s{sT0}, v{vT}")
            e(f"v_add_u32 v{vT}, {W2}, v{vT}")
            for q in range(4):
                E.dsop(f"ds_read_b64 v[{112+2*q}:{112+2*q+1}], v{vT} offset:{16*q}", "w2")
            e(f"v_mul_u32_u24 v{vT}, 26, v{vLane}")
            e(f"v_add_u32 v{vT}, {XW}, v{vT}")
            for j in range(13):
                E.dsop(f"ds_read_u16 v{120+j}, v{vT} offset:{2*j}", "xw")
        if t == w2_step + 1:
            E.wait_ds(["xw"])
            for q in range(4):
                s0 = 112 + 2 * q
                e(f"v_lshlrev_b32 v{vW2+4*q}, 16, v{s0}")
                e(f"v_and_b32 v{vW2+4*q+1}, 0xffff0000, v{s0}")
                e(f"v_lshlrev_b32 v{vW2+4*q+2}, 16, v{s0+1}")
                e(f"v_and_b32 v{vW2+4*q+3}, 0xffff0000, v{s0+1}")
            e(f"v_mov_b32 v{vWide}, s{sBW}")
            for j in range(13):
                e(f"v_lshlrev_b32 v{120+j}, 16, v{120+j}")
                e(f"v_fmac_f32 v{vWide}, s{sWW+j}, v{120+j}")
            e(f"v_add_f32 v{vWide}, s{sB2}, v{vWide}")
        if t == poll_step:
            E.vmem(f"buffer_load_dword v{vFlag}, v{vFlagOff}, s[{S_WS}:{S_WS+3}], 0 offen sc1", "poll")
        if t == load_step:
            E.wait_vm(["poll"])
            e(f"v_readfirstlane_b32 s{sT0}, v{vFlag}")
            e("s_nop 1")
            e(f"s_cmp_eq_u32 s{sT0}, s{sTag}")
            e("s_cbranch_scc0 L_spin")
            e("L_spin_done:")
            e(f"v_lshlrev_b32 v{vT}, 4, v{vLane}")
            if bfx:
                for q in range(4):
                    E.vmem(f"buffer_load_dwordx4 v[{164+4*q}:{164+4*q+3}], v{vT}, s[{S_WS}:{S_WS+3}], s{sPartOff} offen offset:{q*1024} sc1", "Pld")
            else:
                e(f"s_add_u32 s{sT0}, s{sPartOff}, 4096")
                for q in range(8):
                    so = sPartOff if q < 4 else sT0
                    E.vmem(f"buffer_load_dwordx4 v[{112+4*q}:{112+4*q+3}], v{vT}, s[{S_WS}:{S_WS+3}], s{so} offen offset:{(q%4)*1024} sc1", "Pld")
        if bfx and t == unp_at:
            E.wait_vm(["Pld"])
            for r in range(16):
                e(f"v_lshlrev_b32 v{112+2*r}, 16, v{164+r}")
                e(f"v_and_b32 v{113+2*r}, 0xffff0000, v{164+r}")
    assert tag_at + 8 < sig_step and pub_at < acc_at and ksplit == 0 and poll_step > sig_step and acc_at % 2 == 0 and misc_step + 8 <= acc_at - 2 and acc_at < 48
    assert w2_step + 1 < load_step < unp_at and max(last_use[j] for j in range(9)) < load_step
    stamp()
    if not steps: stamp(cyc=True)
    e(f"v_lshrrev_b32 v{vT}, 5, v{vLane}")
    e(f"v_lshlrev_b32 v{vT}, 8, v{vT}")
    e(f"v_and_b32 v{vT2}, 31, v{vLane}")
    e(f"v_lshl_add_u32 v{vT}, v{vT2}, 2, v{vT}")
    e(f"s_lshl_b32 s{sT0}, s{sW}, 9")
    e(f"v_add_u32 v{vT}, s{sT0}, v{vT}")
    a = vACC["K"]
    R = vEB
    for rb in range(2):
        e(f"v_mov_b32 v{R+rb}, 0")
        e(f"v_mov_b32 v{R+2+rb}, 0")
    E.wait_vm(["Pld"])
    e("s_nop 7")
    for rb in range(2):
        for r in range(16):
            x = a + rb * 16 + r
            e(f"v_add_f32 v{x}, v{x}, v{112+rb*16+r}")
        for r in range(16):
            x = a + rb * 16 + r
            e(f"v_max_f32 v{x}, 0, v{x}")
        for r in range(16):
            x = a + rb * 16 + r
            e(f"v_fmac_f32 v{R+rb+2*(r&1)}, v{x}, v{vW2+r}")
        e(f"v_add_f32 v{R+rb}, v{R+rb}, v{R+rb+2}")
        E.dsop(f"ds_write_b32 v{vT}, v{R+rb} offset:{RED+128*rb}", "red")
    E.drain_ds()
    e("s_barrier")
    e(f"s_cmp_lg_u32 s{sW}, 0")
    e("s_cbranch_scc1 L_end")
    e(f"v_lshlrev_b32 v{vT}, 2, v{vLane}")
    Y = vEB + 12
    for kk in range(8):
        e(f"ds_read_b32 v{Y+kk}, v{vT} offset:{RED + kk*256}")
    e(f"s_lshl_b32 s{sT0}, s{sKeepRow}, 1")
    e(f"v_lshlrev_b32 v{vT}, 1, v{vLane}")
    e("s_waitcnt lgkmcnt(0)")
    e(f"v_add_f32 v{Y}, v{Y}, v{Y+1}")
    e(f"v_add_f32 v{Y+2}, v{Y+2}, v{Y+3}")
    e(f"v_add_f32 v{Y+4}, v{Y+4}, v{Y+5}")
    e(f"v_add_f32 v{Y+6}, v{Y+6}, v{Y+7}")
    e(f"v_add_f32 v{Y}, v{Y}, v{Y+2}")
    e(f"v_add_f32 v{Y+4}, v{Y+4}, v{Y+6}")
    e(f"v_add_f32 v{Y}, v{Y}, v{vWide}")
    e(f"v_add_f32 v{Y}, v{Y}, v{Y+4}")
    e(f"v_mul_f32 v{Y}, 0xbfb8aa3b, v{Y}")
    e(f"v_exp_f32 v{Y}, v{Y}")
    e("s_nop 0")
    e(f"v_add_f32 v{Y}, 1.0, v{Y}")
    e(f"v_rcp_f32 v{Y}, v{Y}")
    e("s_nop 0")
    e(f"v_cvt_pk_bf16_f32 v{Y}, v{Y}, v{Y}")
    e(f"buffer_store_short v{Y}, v{vT}, s[{S_OUT}:{S_OUT+3}], s{sT0} offen")
    if diag and hdiag:
        e(f"s_memrealtime s[{sTS+2}:{sTS+3}]")
        e("s_waitcnt lgkmcnt(0)")
        e(f"s_not_b32 s{sT0}, s{sTS}")
        e(f"v_writelane_b32 v0, s{sT0}, 0")
        e(f"v_writelane_b32 v0, s{sTS+2}, 1")
        e(f"v_mov_b32 v{vT}, 0x100")
        for lane, slot in ((0, 8), (1, 9), (4, 10), (6, 11), (8, 12), (10, 13), (12, 14), (16, 15)):
            e(f"s_mov_b32 s{sT0}, {4*slot}")
            e(f"v_writelane_b32 v{vT}, s{sT0}, {lane}")
        e(f"buffer_atomic_umax v0, v{vT}, s[{S_DBG}:{S_DBG+3}], 0 offen")
    elif diag:
        e(f"s_memrealtime s[{sTS+2}:{sTS+3}]")
        e("s_waitcnt lgkmcnt(0)")
        for n, r in enumerate((sTS, sTS+1, sTS+2, sTS+3)):
            e(f"v_writelane_b32 v0, s{r}, {n}")
        e(f"v_writelane_b32 v0, s{sTS}, 63")
        e(f"s_add_u32 s{S_SM}, s58, {16<<20}")
        e(f"s_addc_u32 s{S_SM+1}, s59, 0")
        e(f"s_and_b32 s{S_SM+1}, s{S_SM+1}, 0xffff")
        e(f"s_mov_b32 s{S_SM+2}, 65536")
        e(f"s_mov_b32 s{S_SM+3}, 0x20000")
        e(f"s_lshl_b32 s{sT0}, s2, 8")
        e(f"v_lshlrev_b32 v{vT}, 2, v{vLane}")
        e(f"buffer_store_dword v0, v{vT}, s[{S_SM}:{S_SM+3}], s{sT0} offen")
    e("s_endpgm")
    for (lab, off, want) in (("L_spin", 0, sTag), ("L_rspin", 128, sNext)):
        e(f"{lab}:")
        e(f"s_mov_b32 s{sSpin}, {1<<17}")
        e(f"{lab}_loop:")
        e(f"buffer_load_dword v{vFlag}, v{vFlagOff}, s[{S_WS}:{S_WS+3}], 0 offen offset:{off} sc1")
        e("s_waitcnt vmcnt(0)")
        e(f"v_readfirstlane_b32 s{sT0}, v{vFlag}")
        e("s_nop 1")
        e(f"s_cmp_eq_u32 s{sT0}, s{want}")
        e(f"s_cbranch_scc1 {lab}_done")
        e(f"s_sub_u32 s{sSpin}, s{sSpin}, 1")
        e(f"s_cmp_lg_u32 s{sSpin}, 0")
        e(f"s_cbranch_scc1 {lab}_loop")
        e(f"s_branch {lab}_done")
    e("L_end:")
    e("s_endpgm")
    body = "\n".join(E.L)
    out = HEADER
    out += (
        "; Wide & Deep forward, one launch, 256 workgroups of 4 waves (one per CU).\n"
        "; Workgroup = 128 batch rows x 50 of the 100 fields (K split in two). Its half of W1 (1600 x 128 bf16) is loaded once\n"
        "; through LDS (DMA + transposing reads) and stays in 400 registers per wave (wave w owns hidden units 32w..32w+31).\n"
        "; Embedding rows are gathered by LDS-DMA into a ring of 64-row tiles and fed to 32x32x16 MFMAs (D = W1^T * E^T).\n"
        "; The partial sums of 64 rows go to the partner workgroup (id ^ 8) through d_ws as bf16; the other 64 rows are finished\n"
        "; here: + partner partial + b1, ReLU, dot with W2, + wide part, sigmoid. Hand-off: sc1 stores, then a flag word on a\n"
        "; private d_ws line holding (old content + 1); the consumer first announces on its own line which value it waits for.\n")
    out += "; Override launch geometry by editing the next line (default: block=256,\n"
    out += f"; @launch grid=(256,1,1) block=(256,1,1) lds={LDS_TOTAL}\n"
    out += f""".amdgcn_target "amdgcn-amd-amdhsa--gfx950"
.text
.globl {NAME}_kernel
.p2align 8
.type {NAME}_kernel,@function
{NAME}_kernel:
{body}
.section .rodata,"a"
.p2align 6
.amdhsa_kernel {NAME}_kernel
  .amdhsa_next_free_vgpr 512
  .amdhsa_next_free_sgpr 102
  .amdhsa_accum_offset 256
  .amdhsa_group_segment_fixed_size 0
  .amdhsa_kernarg_size 96
  .amdhsa_user_sgpr_count 2
  .amdhsa_user_sgpr_kernarg_segment_ptr 1
  .amdhsa_system_sgpr_workgroup_id_x 1
  .amdhsa_float_denorm_mode_32 3
.end_amdhsa_kernel
"""
    if diag:
        out = out.replace("; @launch", f"; STAMPS nst={stamp_next[0]}\n; @launch", 1)
    return out

if __name__ == "__main__":
    kw = {}
    path = None
    for a in sys.argv[1:]:
        if a.endswith(".s"): path = a
        elif a == "diag": kw["diag"] = True
        elif "=" in a:
            n, v = a.split("="); kw[n] = int(v) if v.lstrip("-").isdigit() else v
    s = gen(**kw)
    open(path or "cdna_kernels/" + NAME + ".s", "w").write(s)
```

```python
import sys
from gen_s2 import Em, NAME, HEADER


def gen(diag=False, fake16=0, steps=0, NWB=12, NA=12, tlbwarm=True, poll_lead=10, sig_delay=8, nomfma=0, gearly=8, order="SK", wgrp=2, probe=0, hdiag=0, spindbg=0, halftab=0, pf=0, bfx=1, unp_at=97, spread=4, st0=0, pub_at=10, tag_at=52, n_init=6, rmax=4, inter=1, misc_step=2, acc_at=20, ksplit=0, wfirst=0, pubbyte=1):
    E = Em(); e = E.e
    DG = NA - 2
    NAD = 8
    WST = 0
    ADED = WST + NWB * 8192
    RING0 = ADED + NAD * 4096 - NA * 4096
    IDX = ADED + NAD * 4096
    XW = IDX + 26624
    B1 = XW + 2048
    W2 = B1 + 1024
    LDS_TOTAL = W2 + 1024
    RED = WST
    assert LDS_TOTAL <= 163840, LDS_TOTAL
    assert NA * 4096 <= 65536 and RING0 >= 0
    def aslot(i):
        r = i % NA
        return (NA - NAD) * 4096 + r * 4096 if r < NAD else (r - NAD) * 4096
    def aslot_wbufs(i):
        a = RING0 + aslot(i)
        return None if a >= ADED else (a - WST) // 8192
    S_IDX, S_TAB, S_W1, S_MISC, S_OUT, S_SM, S_WS, S_DBG = 8, 12, 16, 20, 24, 28, 32, 60
    sW, sKh, sColS, sColK, sColW, sW2048, sW1024, sT0, sT1, sWbase, sFoff = 64, 65, 66, 67, 68, 69, 70, 71, 72, 73, 74
    sKeepRow, sPartOff, sMyOff, sFlagBit = 75, 76, 77, 78
    sWW, sBW, sB2 = 80, 93, 94
    sSpin = 95
    sTS = 96
    stamp_next = [2]
    def stamp(cyc=False):
        if diag:
            n = stamp_next[0]; stamp_next[0] += 1
            e(f"s_memtime s[6:7]" if cyc else "s_memrealtime s[6:7]")
            E.drain_ds()
            e(f"v_writelane_b32 v0, s6, {2*n}")
            e(f"v_writelane_b32 v0, s7, {2*n+1}")
    vLane, vPiece, vWoff, vIdxB, vE0, vE1, vWtr = 1, 2, 3, 4, 5, 6, 7
    vI = {"S": 8, "K": 10}
    vT, vT2, vFlagOff, vFlag = 12, 13, 14, 15
    vEB = 16
    vACC = {"S": 48, "K": 80}
    def wreg(slot, lo, n):
        if slot < 18:
            b = 112 + slot * 8 + lo
            return f"v[{b}:{b+n-1}]"
        b = (slot - 18) * 8 + lo
        return f"a[{b}:{b+n-1}]"

    items = [("S", j) for j in range(50)] + [("K", j) for j in range(50)]
    last_use = {}
    for t, (sub, j) in enumerate(items): last_use[j] = t
    lastS = 49

    e("s_cmp_ge_u32 s2, 256")
    e("s_cbranch_scc1 L_end")
    if diag: e(f"s_memrealtime s[{sTS}:{sTS+1}]")
    e("s_load_dwordx16 s[36:51], s[0:1], 0")
    e("s_load_dwordx4 s[52:55], s[0:1], 64")
    e("s_load_dwordx2 s[58:59], s[0:1], 88")
    e(f"v_and_b32 v{vLane}, 63, v0")
    e(f"v_lshrrev_b32 v{vT}, 6, v0")
    e("s_nop 0")
    e(f"v_readfirstlane_b32 s{sW}, v{vT}")
    if diag: e("v_mov_b32 v0, 0")
    X = vEB
    vQ = X + 20
    for i in range(4):
        e(f"v_add_u32 v{X}, {64*i}, v{vLane}")
        e(f"v_mul_u32_u24 v{X+1}, 5042, v{X}")
        e(f"v_lshrrev_b32 v{X+1}, 16, v{X+1}")
        e(f"v_mul_u32_u24 v{X+2}, 13, v{X+1}")
        e(f"v_sub_u32 v{X+2}, v{X}, v{X+2}")
        e(f"v_mul_u32_u24 v{X+1}, 400, v{X+1}")
        e(f"v_lshl_add_u32 v{vQ+i}, v{X+2}, 4, v{X+1}")
        if i: e(f"v_subrev_u32 v{vQ+i}, {1024*i}, v{vQ+i}")
    e(f"v_bfe_u32 v{X+1}, v{vLane}, 4, 2")
    e(f"v_and_b32 v{X}, 15, v{vLane}")
    e(f"v_lshlrev_b32 v{X+2}, 2, v{X+1}")
    e(f"v_xor_b32 v{X}, v{X}, v{X+2}")
    e(f"v_lshlrev_b32 v{X}, 4, v{X}")
    e(f"v_lshl_add_u32 v{vWoff}, v{X+1}, 8, v{X}")
    e(f"s_lshr_b32 s{sKh}, s2, 3")
    e(f"s_and_b32 s{sKh}, s{sKh}, 1")
    e(f"s_lshr_b32 s{sT0}, s2, 4")
    e(f"s_lshl_b32 s{sT1}, s{sT0}, 3")
    e(f"s_and_b32 s{sKeepRow}, s2, 7")
    e(f"s_add_u32 s{sT1}, s{sT1}, s{sKeepRow}")
    e(f"s_lshl_b32 s{sT1}, s{sT1}, 7")
    e(f"s_lshl_b32 s{sKeepRow}, s{sKh}, 6")
    e(f"s_add_u32 s{sKeepRow}, s{sKeepRow}, s{sT1}")
    e(f"s_mul_i32 s{sT0}, s{sT0}, 25")
    e(f"s_lshr_b32 s{sT0}, s{sT0}, 4")
    e(f"s_lshl_b32 s{sColS}, s{sT0}, 3")
    e(f"s_mov_b32 s{sColK}, s{sColS}")
    e(f"s_lshl_b32 s{sColW}, s{sT0}, 14")
    e(f"s_lshl_b32 s{sW2048}, s{sW}, 11")
    e(f"s_lshl_b32 s{sW1024}, s{sW}, 10")
    e(f"s_mul_i32 s{sWbase}, s{sKh}, {50*8192}")
    e(f"s_add_u32 s{sWbase}, s{sWbase}, s{sW2048}")
    e(f"s_xor_b32 s{sT0}, s{sKeepRow}, 64")
    e(f"s_lshl_b32 s{sT1}, s{sW}, 4")
    e(f"s_add_u32 s{sT0}, s{sT0}, s{sT1}")
    e(f"s_mul_i32 s{sT0}, s{sT0}, 400")
    e(f"s_mul_i32 s{sFoff}, s{sKh}, 192")
    e(f"s_add_u32 s{sT0}, s{sT0}, s{sFoff}")
    e(f"s_mul_i32 s{sT1}, s{sW}, 3328")
    E.drain_ds()
    def srd(d, p, size):
        e(f"s_mov_b32 s{d}, s{p}")
        e(f"s_and_b32 s{d+1}, s{p+1}, 0xffff")
        e(f"s_mov_b32 s{d+2}, {size}")
        e(f"s_mov_b32 s{d+3}, 0x20000")
    srd(S_W1, 46, 3200*256)
    def w_dma_half(slot, q):
        if q == 0:
            buf = WST + (slot % NWB) * 8192
            e(f"s_add_u32 m0, s{sW2048}, {buf}")
            e(f"s_add_u32 s{sFoff}, s{sColW}, s{sWbase}")
        E.vmem(f"buffer_load_dwordx4 v{vWoff}, s[{S_W1}:{S_W1+3}], s{sFoff} offen offset:{q*1024} lds", ("W", slot))
        if q == 1:
            e(f"s_add_u32 s{sColW}, s{sColW}, 8192")
            e(f"s_cmp_ge_u32 s{sColW}, {50*8192}")
            e(f"s_cselect_b32 s{sColW}, 0, s{sColW}")
    def w_dma(slot):
        w_dma_half(slot, 0); w_dma_half(slot, 1)
    for j in range(wfirst):
        w_dma(j)
    srd(S_IDX, 36, 16384*400)
    def idx_dma(ldsbase, tag, lo=0, hi=4, Q=None, soff=None, m0=None):
        Q = vQ if Q is None else Q
        soff = sT0 if soff is None else soff
        e(m0 if m0 else f"s_add_u32 m0, s{sT1}, {ldsbase}")
        e("s_nop 0")
        for i in range(lo, min(hi, 3)):
            E.vmem(f"buffer_load_dwordx4 v{Q+i}, s[{S_IDX}:{S_IDX+3}], s{soff} offen offset:{i*1024} lds", tag)
        if hi == 4:
            e("s_mov_b64 exec, 0xffff")
            E.vmem(f"buffer_load_dwordx4 v{Q+3}, s[{S_IDX}:{S_IDX+3}], s{soff} offen offset:3072 lds", tag)
            e("s_mov_b64 exec, -1")
    if probe: stamp()
    idx_dma(IDX, "idxS")
    if probe:
        E.drain_vm(); stamp()
    e(f"s_lshl_b32 s{sFoff}, s{sKh}, 1")
    e(f"s_sub_u32 s{sFoff}, s{sFoff}, 1")
    e(f"s_mul_i32 s{sFoff}, s{sFoff}, {64*400}")
    e(f"s_add_u32 s{sT0}, s{sT0}, s{sFoff}")
    idx_dma(IDX + 13312, "idxK", 0, 4 - ksplit)
    if ksplit:
        e(f"s_mov_b32 s3, s{sT0}")
        e(f"s_add_u32 s101, s{sT1}, {IDX + 13312}")
    if probe:
        E.drain_vm(); stamp()
    srd(S_TAB, 38, (50000 if halftab else 100000)*64)
    if tlbwarm:
        e("s_load_dword s4, s[38:39], 0")
        for a in (0x200000, 0x400000, 0x600000):
            e(f"s_mov_b32 s5, {a}")
            e("s_load_dword s4, s[38:39], s5")
    if pf:
        e(f"s_lshr_b32 s{sT0}, s2, 3")
        e(f"s_mul_i32 s{sT0}, s{sT0}, 102400")
        e(f"s_mul_i32 s{sFoff}, s{sW}, 25600")
        e(f"s_add_u32 s{sT0}, s{sT0}, s{sFoff}")
        e(f"v_lshlrev_b32 v{vT}, 4, v{vLane}")
        e(f"s_add_u32 m0, s{sW1024}, {ADED}")
        for q in range(25):
            E.vmem(f"buffer_load_dwordx4 v{vT}, s[{S_TAB}:{S_TAB+3}], s{sT0} offen lds", "pf")
            e(f"s_add_u32 s{sT0}, s{sT0}, 1024")
    for j in range(wfirst, n_init):
        w_dma(j)
        if probe and j == 1:
            E.drain_vm(); stamp()
    if not probe: stamp()
    e(f"v_and_b32 v{X}, 3, v{vLane}")
    e(f"v_bfe_u32 v{X+1}, v{vLane}, 4, 2")
    e(f"v_xor_b32 v{X}, v{X}, v{X+1}")
    e(f"v_lshlrev_b32 v{vPiece}, 4, v{X}")
    e(f"v_lshrrev_b32 v{X}, 2, v{vLane}")
    e(f"v_mul_u32_u24 v{vIdxB}, 208, v{X}")
    e(f"s_lshl_b32 s{sT0}, s{sKh}, 3")
    e(f"s_add_u32 s{sT0}, s{sT0}, s{sT1}")
    e(f"s_add_u32 s{sT0}, s{sT0}, {IDX}")
    e(f"v_add_u32 v{vIdxB}, s{sT0}, v{vIdxB}")
    e(f"v_and_b32 v{X}, 31, v{vLane}")
    e(f"v_lshlrev_b32 v{X}, 6, v{X}")
    e(f"v_add_u32 v{X}, {RING0}, v{X}")
    e(f"v_lshrrev_b32 v{X+1}, 5, v{vLane}")
    e(f"v_bfe_u32 v{X+2}, v{vLane}, 2, 2")
    e(f"v_xor_b32 v{X+3}, v{X+1}, v{X+2}")
    e(f"v_lshl_add_u32 v{vE0}, v{X+3}, 4, v{X}")
    e(f"v_xor_b32 v{X+3}, 2, v{X+3}")
    e(f"v_lshl_add_u32 v{vE1}, v{X+3}, 4, v{X}")
    e(f"v_lshl_add_u32 v{X+3}, v{X+1}, 3, v{X+2}")
    e(f"v_lshlrev_b32 v{X+3}, 8, v{X+3}")
    e(f"v_bfe_u32 v{X+4}, v{vLane}, 4, 1")
    e(f"v_lshlrev_b32 v{X+4}, 1, v{X+4}")
    e(f"v_bfe_u32 v{X+5}, v{vLane}, 1, 1")
    e(f"v_add_u32 v{X+4}, v{X+4}, v{X+5}")
    e(f"s_lshl_b32 s{sT0}, s{sW}, 2")
    e(f"v_add_u32 v{X+4}, s{sT0}, v{X+4}")
    e(f"v_lshlrev_b32 v{X+2}, 2, v{X+2}")
    e(f"v_xor_b32 v{X+4}, v{X+4}, v{X+2}")
    e(f"v_and_b32 v{X+5}, 1, v{vLane}")
    e(f"v_lshlrev_b32 v{X+5}, 3, v{X+5}")
    e(f"v_add_u32 v{X+3}, v{X+3}, v{X+5}")
    e(f"v_lshl_add_u32 v{vWtr}, v{X+4}, 4, v{X+3}")
    e(f"v_add_u32 v{vT2}, 65536, v{vWtr}")
    vWtrH = vT2
    e(f"s_lshl_b32 s{sMyOff}, s2, {14 if bfx else 15}")
    e(f"s_xor_b32 s{sT0}, s2, 8")
    e(f"s_lshl_b32 s{sPartOff}, s{sT0}, {14 if bfx else 15}")
    e(f"s_lshl_b32 s{sT0}, s{sW}, {12 if bfx else 13}")
    e(f"s_add_u32 s{sMyOff}, s{sMyOff}, s{sT0}")
    e(f"s_add_u32 s{sPartOff}, s{sPartOff}, s{sT0}")
    srd(S_OUT, 54, 16384*2)
    assert bfx and not hdiag and not spindbg
    FLAGS = 256 * 16384
    srd(S_WS, 58, FLAGS + 256 * 256)
    sTag, sNext = 100, 79


    def w_tr_piece(slot, s):
        buf = WST + (slot % NWB) * 8192
        base = vWtr if buf < 65536 else vWtrH
        off = buf if buf < 65536 else buf - 65536
        for t in range(2):
            E.dsop(f"ds_read_b64_tr_b16 {wreg(slot, s*4 + t*2, 2)}, {'v%d' % base} offset:{off + s*4096 + t*1024}", ("Wtr", slot))
    def w_tr(slot):
        w_tr_piece(slot, 0); w_tr_piece(slot, 1)
    def misc_loads():
        e(f"v_lshlrev_b32 v{vT}, 4, v{vLane}")
        e(f"s_cmp_lt_u32 s{sW}, 2")
        e(f"s_cselect_b32 s{S_MISC}, s40, s48")
        e(f"s_cselect_b32 s{S_MISC+1}, s41, s49")
        e(f"s_mov_b32 s{S_MISC+2}, 256")
        e(f"s_cselect_b32 s{S_MISC+2}, {16384*26}, s{S_MISC+2}")
        e(f"s_cmp_eq_u32 s{sW}, 3")
        e(f"s_cselect_b32 s{S_MISC}, s50, s{S_MISC}")
        e(f"s_cselect_b32 s{S_MISC+1}, s51, s{S_MISC+1}")
        e(f"s_and_b32 s{S_MISC+1}, s{S_MISC+1}, 0xffff")
        e(f"s_mov_b32 s{S_MISC+3}, 0x20000")
        e(f"s_mul_i32 s{sT0}, s{sKeepRow}, 26")
        e(f"s_add_u32 s{sT0}, s{sT0}, s{sW1024}")
        e(f"s_cmp_lt_u32 s{sW}, 2")
        e(f"s_cselect_b32 s{sT0}, s{sT0}, 0")
        e(f"s_add_u32 m0, s{sW1024}, {XW}")
        e("s_nop 0")
        E.vmem(f"buffer_load_dwordx4 v{vT}, s[{S_MISC}:{S_MISC+3}], s{sT0} offen lds", "misc")
        e(f"v_lshlrev_b32 v{vSm}, 1, v{vLane}")
        for n, (p, size) in enumerate(((42, 26), (44, 2), (52, 2))):
            srd(S_SM, p, size)
            E.vmem(f"buffer_load_ushort v{vSm+1+n}, v{vSm}, s[{S_SM}:{S_SM+3}], 0 offen", "small")
            e("s_nop 0")
    vSm = vACC['K'] + 8

    colreg = {"S": sColS, "K": sColK}
    def idx_read(sub, pair, dst, tmp):
        e(f"v_add_u32 v{tmp}, s{colreg[sub]}, v{vIdxB}")
        E.dsop(f"ds_read_b64 v[{dst}:{dst+1}], v{tmp} offset:{13312 if sub == 'K' else 0}", ("idx", sub, pair))
        c = colreg[sub]
        e(f"s_add_u32 s{c}, s{c}, 8")
        e(f"s_cmp_ge_u32 s{c}, 200")
        e(f"s_cselect_b32 s{c}, 0, s{c}")
    def g_issue(i, reg):
        slot = RING0 + aslot(i)
        e(f"v_lshl_add_u32 v{reg}, v{reg}, 6, v{vPiece}")
        e(f"s_add_u32 m0, s{sW1024}, {slot}")
        e("s_nop 0")
        E.vmem(f"buffer_load_dwordx4 v{reg}, s[{S_TAB}:{S_TAB+3}], 0 offen lds", ("G", i))

    rmax = max(rmax, wgrp)
    ngrp = (50 + wgrp - 1) // wgrp
    groups = [list(range(g * wgrp, min(50, (g + 1) * wgrp))) for g in range(ngrp)]
    nxt_w = n_init
    misc_at = 2
    tb = X + 0
    early_done = False
    for g, grp in enumerate(groups):
        E.wait_vm([("W", j) for j in grp])
        if g > 0: E.wait_ds([("Wtr", j) for j in groups[g-1]])
        e("s_barrier")
        if g == 0 and not probe: stamp()
        cnt = 0
        dmas = []
        while nxt_w < 50 and nxt_w < grp[0] + NWB and cnt < rmax:
            dmas += [(nxt_w, 0), (nxt_w, 1)]; nxt_w += 1; cnt += 1
        trs = [(j, sx) for j in grp for sx in range(2)] if inter else []
        while dmas or trs:
            if trs and inter == 1: w_tr_piece(*trs.pop(0))
            if dmas: w_dma_half(*dmas.pop(0))
            if trs and inter == 2: w_tr_piece(*trs.pop(0))
        if nxt_w >= 50 and not early_done:
            early_done = True
            E.wait_vm(["idxS"])
            for n in range(gearly // 2):
                idx_read("S", n, tb + 2 * n, vT)
            E.wait_ds([("idx", "S", gearly // 2 - 1)])
            for i in range(gearly):
                assert aslot_wbufs(i) is None
                g_issue(i, tb + i)
            if not probe: stamp()
        if not inter:
            for j in grp: w_tr(j)
    assert early_done
    def small_scalars():
        E.wait_vm(["small"])
        for n in range(3):
            e(f"v_lshlrev_b32 v{vSm+1+n}, 16, v{vSm+1+n}")
        e("s_nop 0")
        for j in range(13):
            e(f"v_readlane_b32 s{sWW+j}, v{vSm+1}, {j}")
        e(f"v_readlane_b32 s{sBW}, v{vSm+2}, 0")
        e(f"v_readlane_b32 s{sB2}, v{vSm+3}, 0")
    def init_accK():
        e(f"v_lshrrev_b32 v{vT}, 5, v{vLane}")
        e(f"v_lshlrev_b32 v{vT}, 3, v{vT}")
        e(f"s_lshl_b32 s{sT0}, s{sW}, 6")
        e(f"v_add_u32 v{vT}, s{sT0}, v{vT}")
        e(f"v_add_u32 v{vT}, {B1}, v{vT}")
        a = vACC["K"]
        for q in range(4):
            E.dsop(f"ds_read_b64 v[{a+16+2*q}:{a+17+2*q}], v{vT} offset:{16*q}", "b1")
        E.wait_ds(["b1"])
        for q in range(4):
            s0 = a + 16 + 2 * q
            e(f"v_lshlrev_b32 v{a+4*q}, 16, v{s0}")
            e(f"v_and_b32 v{a+4*q+1}, 0xffff0000, v{s0}")
            e(f"v_lshlrev_b32 v{a+4*q+2}, 16, v{s0+1}")
            e(f"v_and_b32 v{a+4*q+3}, 0xffff0000, v{s0+1}")
        for r in range(16):
            e(f"v_mov_b32 v{a+16+r}, v{a+r}")

    vFp = vACC["K"] + 12
    sOwnL, sPartL = 101, 3
    def fold_load():
        e(f"s_lshl_b32 s{sOwnL}, s2, 8")
        e(f"s_add_u32 s{sOwnL}, s{sOwnL}, {FLAGS}")
        e(f"s_xor_b32 s{sPartL}, s2, 8")
        e(f"s_lshl_b32 s{sPartL}, s{sPartL}, 8")
        e(f"s_add_u32 s{sPartL}, s{sPartL}, {FLAGS}")
        e(f"v_mov_b32 v{vT}, 0")
        E.vmem(f"buffer_load_dword v{vFlag}, v{vT}, s[{S_WS}:{S_WS+3}], s{sOwnL} offen sc1", "fold")
        E.vmem(f"buffer_load_dword v{vFp}, v{vT}, s[{S_WS}:{S_WS+3}], s{sPartL} offen sc1", "fold")
    def publish():
        E.wait_vm(["fold"])
        e(f"v_readfirstlane_b32 s{sNext}, v{vFlag}")
        e(f"v_readfirstlane_b32 s{sTag}, v{vFp}")
        e("s_nop 1")
        e(f"s_add_u32 s{sNext}, s{sNext}, 1")
        e(f"s_add_u32 s{sTag}, s{sTag}, 1")
        e(f"v_mov_b32 v{vFlag}, s{sTag}")
        e(f"v_mov_b32 v{vT}, 0")
        e(f"s_cmp_eq_u32 s{sW}, 0")
        e(f"s_cselect_b32 s{sT0}, 1, 0")
        e(f"s_mov_b32 exec_hi, 0")
        e(f"s_mov_b32 exec_lo, s{sT0}")
        E.vmem(f"buffer_store_dword v{vFlag}, v{vT}, s[{S_WS}:{S_WS+3}], s{sOwnL} offen offset:128 sc1", "pub")
        e("s_mov_b64 exec, -1")
    E.drain_ds()
    e("s_barrier")
    for n in range(gearly // 2, DG // 2):
        idx_read("S", n, tb + 2 * (n - gearly // 2), vT)
    E.drain_ds()
    for i in range(gearly, DG):
        g_issue(i, tb + (i - gearly))
    if not probe: stamp()
    pair_state = {"S": None, "K": None}
    nxt_pair = {"S": DG // 2, "K": 0}
    assert DG % 2 == 0 and gearly % 2 == 0

    def ensure_pair(sub, pair):
        if pair_state[sub] != pair and pair < 25:
            assert pair == nxt_pair[sub], (sub, pair, nxt_pair)
            idx_read(sub, pair, vI[sub], vT2)
            pair_state[sub] = pair
            nxt_pair[sub] = pair + 1
    def e_reads(i):
        buf = vEB + (i % 2) * 16
        slot = aslot(i)
        for s in range(2):
            for rb in range(2):
                d = buf + (s * 2 + rb) * 4
                E.dsop(f"ds_read_b128 v[{d}:{d+3}], v{vE1 if s else vE0} offset:{slot + rb*2048}", ("E", i))

    sig_step = lastS + 1 + sig_delay + (st0 + 3 * spread if spread else 0)
    sig_step += sig_step & 1
    part_ok = max(last_use[j] for j in range(6)) + 1
    load_step = max(part_ok, 100 - poll_lead + 4, sig_step + 5)
    poll_step = load_step - 4
    w2_step = max(part_ok, 70)
    add_step = 98
    vW2 = 144
    vWide = 160
    assert last_use[6] < w2_step and last_use[7] < w2_step

    for t in range(-2, 100):
        if t % 2 == 0:
            need = [("G", i) for i in (t + 1, t + 2) if 0 <= i < 100]
            if t == sig_step: need.append("Pst")
            if t == -2: need.append("idxK")
            if t == acc_at: need.append("misc")
            if ksplit and t == acc_at - 4: need.append("idxK2")
            if need: E.wait_vm(need)
            e("s_barrier")
            if t == sig_step:
                e(f"v_mov_b32 v{vT}, 0")
                e(f"v_mov_b32 v{vFlag}, s{sNext}")
                e(f"s_cmp_eq_u32 s{sW}, 0")
                e(f"s_cselect_b32 s{sT0}, 1, 0")
                e(f"s_mov_b32 exec_hi, 0")
                e(f"s_mov_b32 exec_lo, s{sT0}")
                E.vmem(f"buffer_store_dword v{vFlag}, v{vT}, s[{S_WS}:{S_WS+3}], s{sOwnL} offen sc1", "sig")
                e("s_mov_b64 exec, -1")
                e("s_nop 3")
        if steps and t in (0, 10, 20, 30, 40, 46, 50, 52, 54, 56, 58, 60, 64, 70, 80, 90, 94, 96): stamp()
        mf = []
        if t >= 0:
            sub, j = items[t]
            buf = vEB + (t % 2) * 16
            a = vACC[sub]
            E.wait_ds([("E", t)])
            for s in range(2):
                for rb in range(2):
                    c = f"v[{a+rb*16}:{a+rb*16+15}]"
                    src = "0" if (sub == "S" and j == 0 and s == 0) else c
                    mf.append(f"v_mfma_f32_32x32x16_bf16 {c}, {wreg(j, s*4, 4)}, v[{buf+(s*2+rb)*4}:{buf+(s*2+rb)*4+3}], {src}")
        def mfma(n):
            if n < len(mf) and not nomfma:
                if fake16 and t >= 0:
                    sub_, j_ = items[t]
                    s_, rb_ = n >> 1, n & 1
                    a_ = vACC[sub_] + rb_ * 16 + s_ * 8
                    b_ = vEB + (t % 2) * 16 + n * 4
                    for h_ in range(2):
                        e(f"v_mfma_f32_16x16x32_bf16 v[{a_+4*h_}:{a_+4*h_+3}], {wreg(j_, s_*4, 4)}, v[{b_}:{b_+3}], v[{a_+4*h_}:{a_+4*h_+3}]")
                else:
                    e(mf[n])
        mfma(0)
        if 0 <= t + 1 < 100: e_reads(t + 1)
        mfma(1)
        gi = t + DG
        if DG <= gi < 100 and t >= 0:
            sub2, j2 = items[gi]
            assert pair_state[sub2] == (j2 >> 1), (t, gi, sub2, j2, pair_state)
            E.wait_ds([("idx", sub2, j2 >> 1)])
            g_issue(gi, vI[sub2] + (j2 & 1))
            if j2 & 1: pair_state[sub2] = None
        mfma(2)
        mfma(3)
        for look in (t + 1 + DG, t + 2 + DG):
            if DG <= look < 100 and t >= -1:
                sub3, j3 = items[look]
                if pair_state[sub3] is None and (j3 & 1) == 0:
                    ensure_pair(sub3, j3 >> 1)
        if t == lastS:
            e("s_nop 15")
            a = vACC["S"]
            e(f"v_lshlrev_b32 v{vT}, 4, v{vLane}")
            if bfx:
                for r in range(16):
                    e(f"v_cvt_pk_bf16_f32 v{a+r}, v{a+2*r}, v{a+2*r+1}")
                if not spread:
                    for q in range(4):
                        E.vmem(f"buffer_store_dwordx4 v[{a+4*q}:{a+4*q+3}], v{vT}, s[{S_WS}:{S_WS+3}], s{sMyOff} offen offset:{q*1024} sc1", "Pst")
            else:
                e(f"s_add_u32 s{sT0}, s{sMyOff}, 4096")
                for q in range(8):
                    so = sMyOff if q < 4 else sT0
                    E.vmem(f"buffer_store_dwordx4 v[{a+4*q}:{a+4*q+3}], v{vT}, s[{S_WS}:{S_WS+3}], s{so} offen offset:{(q%4)*1024} sc1", "Pst")
            if not steps:
                stamp()
                stamp(cyc=True)
        if spread and bfx and lastS + st0 <= t < lastS + st0 + 4 * spread and (t - lastS - st0) % spread == 0:
            q = (t - lastS - st0) // spread
            a = vACC["S"]
            e(f"v_lshlrev_b32 v{vT}, 4, v{vLane}")
            E.vmem(f"buffer_store_dwordx4 v[{a+4*q}:{a+4*q+3}], v{vT}, s[{S_WS}:{S_WS+3}], s{sMyOff} offen offset:{q*1024} sc1", "Pst")
        if ksplit and t == -1:
            Q = vACC["K"] + 16
            for i in range(4 - ksplit, 4):
                e(f"v_add_u32 v{Q+4}, {64*i}, v{vLane}")
                e(f"v_mul_u32_u24 v{Q+5}, 5042, v{Q+4}")
                e(f"v_lshrrev_b32 v{Q+5}, 16, v{Q+5}")
                e(f"v_mul_u32_u24 v{Q+6}, 13, v{Q+5}")
                e(f"v_sub_u32 v{Q+6}, v{Q+4}, v{Q+6}")
                e(f"v_mul_u32_u24 v{Q+5}, 400, v{Q+5}")
                e(f"v_lshl_add_u32 v{Q+i}, v{Q+6}, 4, v{Q+5}")
                e(f"v_subrev_u32 v{Q+i}, {1024*i}, v{Q+i}")
            idx_dma(0, "idxK2", 4 - ksplit, 4, Q=Q, soff=3, m0="s_mov_b32 m0, s101")
        if t == misc_step - 2: fold_load()
        if t == misc_step: misc_loads()
        if t == pub_at:
            publish()
            e("s_nop 3")
        if t == acc_at - 2: small_scalars()
        if t == acc_at: init_accK()
        if t == tag_at:
            e(f"v_mov_b32 v{vFlagOff}, s{sPartL}")
            E.vmem(f"buffer_load_dword v{vFlag}, v{vFlagOff}, s[{S_WS}:{S_WS+3}], 0 offen offset:128 sc1", "rdy")
        if t == tag_at + 8:
            E.wait_vm(["rdy"])
            e(f"v_readfirstlane_b32 s{sT0}, v{vFlag}")
            e("s_nop 1")
            e(f"s_cmp_eq_u32 s{sT0}, s{sNext}")
            e("s_cbranch_scc0 L_rspin")
            e("L_rspin_done:")
        if t == w2_step:
            e(f"v_lshrrev_b32 v{vT}, 5, v{vLane}")
            e(f"v_lshlrev_b32 v{vT}, 3, v{vT}")
            e(f"s_lshl_b32 s{sT0}, s{sW}, 6")
            e(f"v_add_u32 v{vT}, s{sT0}, v{vT}")
            e(f"v_add_u32 v{vT}, {W2}, v{vT}")
            for q in range(4):
                E.dsop(f"ds_read_b64 v[{112+2*q}:{112+2*q+1}], v{vT} offset:{16*q}", "w2")
            e(f"v_mul_u32_u24 v{vT}, 26, v{vLane}")
            e(f"v_add_u32 v{vT}, {XW}, v{vT}")
            for j in range(13):
                E.dsop(f"ds_read_u16 v{120+j}, v{vT} offset:{2*j}", "xw")
        if t == w2_step + 1:
            E.wait_ds(["xw"])
            for q in range(4):
                s0 = 112 + 2 * q
                e(f"v_lshlrev_b32 v{vW2+4*q}, 16, v{s0}")
                e(f"v_and_b32 v{vW2+4*q+1}, 0xffff0000, v{s0}")
                e(f"v_lshlrev_b32 v{vW2+4*q+2}, 16, v{s0+1}")
                e(f"v_and_b32 v{vW2+4*q+3}, 0xffff0000, v{s0+1}")
            e(f"v_mov_b32 v{vWide}, s{sBW}")
            for j in range(13):
                e(f"v_lshlrev_b32 v{120+j}, 16, v{120+j}")
                e(f"v_fmac_f32 v{vWide}, s{sWW+j}, v{120+j}")
            e(f"v_add_f32 v{vWide}, s{sB2}, v{vWide}")
        if t == poll_step:
            E.vmem(f"buffer_load_dword v{vFlag}, v{vFlagOff}, s[{S_WS}:{S_WS+3}], 0 offen sc1", "poll")
        if t == load_step:
            E.wait_vm(["poll"])
            e(f"v_readfirstlane_b32 s{sT0}, v{vFlag}")
            e("s_nop 1")
            e(f"s_cmp_eq_u32 s{sT0}, s{sTag}")
            e("s_cbranch_scc0 L_spin")
            e("L_spin_done:")
            e(f"v_lshlrev_b32 v{vT}, 4, v{vLane}")
            if bfx:
                for q in range(4):
                    E.vmem(f"buffer_load_dwordx4 v[{164+4*q}:{164+4*q+3}], v{vT}, s[{S_WS}:{S_WS+3}], s{sPartOff} offen offset:{q*1024} sc1", "Pld")
            else:
                e(f"s_add_u32 s{sT0}, s{sPartOff}, 4096")
                for q in range(8):
                    so = sPartOff if q < 4 else sT0
                    E.vmem(f"buffer_load_dwordx4 v[{112+4*q}:{112+4*q+3}], v{vT}, s[{S_WS}:{S_WS+3}], s{so} offen offset:{(q%4)*1024} sc1", "Pld")
        if bfx and t == unp_at:
            E.wait_vm(["Pld"])
            for r in range(16):
                e(f"v_lshlrev_b32 v{112+2*r}, 16, v{164+r}")
                e(f"v_and_b32 v{113+2*r}, 0xffff0000, v{164+r}")
    assert tag_at + 8 < sig_step and pub_at < acc_at and ksplit == 0 and poll_step > sig_step and acc_at % 2 == 0 and misc_step + 8 <= acc_at - 2 and acc_at < 48
    assert w2_step + 1 < load_step < unp_at and max(last_use[j] for j in range(9)) < load_step
    stamp()
    if not steps: stamp(cyc=True)
    e(f"v_lshrrev_b32 v{vT}, 5, v{vLane}")
    e(f"v_lshlrev_b32 v{vT}, 8, v{vT}")
    e(f"v_and_b32 v{vT2}, 31, v{vLane}")
    e(f"v_lshl_add_u32 v{vT}, v{vT2}, 2, v{vT}")
    e(f"s_lshl_b32 s{sT0}, s{sW}, 9")
    e(f"v_add_u32 v{vT}, s{sT0}, v{vT}")
    a = vACC["K"]
    R = vEB
    for rb in range(2):
        e(f"v_mov_b32 v{R+rb}, 0")
        e(f"v_mov_b32 v{R+2+rb}, 0")
    E.wait_vm(["Pld"])
    e("s_nop 7")
    for rb in range(2):
        for r in range(16):
            x = a + rb * 16 + r
            e(f"v_add_f32 v{x}, v{x}, v{112+rb*16+r}")
        for r in range(16):
            x = a + rb * 16 + r
            e(f"v_max_f32 v{x}, 0, v{x}")
        for r in range(16):
            x = a + rb * 16 + r
            e(f"v_fmac_f32 v{R+rb+2*(r&1)}, v{x}, v{vW2+r}")
        e(f"v_add_f32 v{R+rb}, v{R+rb}, v{R+rb+2}")
        E.dsop(f"ds_write_b32 v{vT}, v{R+rb} offset:{RED+128*rb}", "red")
    E.drain_ds()
    e("s_barrier")
    e(f"s_cmp_lg_u32 s{sW}, 0")
    e("s_cbranch_scc1 L_end")
    e(f"v_lshlrev_b32 v{vT}, 2, v{vLane}")
    Y = vEB + 12
    for kk in range(8):
        e(f"ds_read_b32 v{Y+kk}, v{vT} offset:{RED + kk*256}")
    e(f"s_lshl_b32 s{sT0}, s{sKeepRow}, 1")
    e(f"v_lshlrev_b32 v{vT}, 1, v{vLane}")
    e("s_waitcnt lgkmcnt(0)")
    e(f"v_add_f32 v{Y}, v{Y}, v{Y+1}")
    e(f"v_add_f32 v{Y+2}, v{Y+2}, v{Y+3}")
    e(f"v_add_f32 v{Y+4}, v{Y+4}, v{Y+5}")
    e(f"v_add_f32 v{Y+6}, v{Y+6}, v{Y+7}")
    e(f"v_add_f32 v{Y}, v{Y}, v{Y+2}")
    e(f"v_add_f32 v{Y+4}, v{Y+4}, v{Y+6}")
    e(f"v_add_f32 v{Y}, v{Y}, v{vWide}")
    e(f"v_add_f32 v{Y}, v{Y}, v{Y+4}")
    e(f"v_mul_f32 v{Y}, 0xbfb8aa3b, v{Y}")
    e(f"v_exp_f32 v{Y}, v{Y}")
    e("s_nop 0")
    e(f"v_add_f32 v{Y}, 1.0, v{Y}")
    e(f"v_rcp_f32 v{Y}, v{Y}")
    e("s_nop 0")
    e(f"v_cvt_pk_bf16_f32 v{Y}, v{Y}, v{Y}")
    e(f"buffer_store_short v{Y}, v{vT}, s[{S_OUT}:{S_OUT+3}], s{sT0} offen")
    if diag and hdiag:
        e(f"s_memrealtime s[{sTS+2}:{sTS+3}]")
        e("s_waitcnt lgkmcnt(0)")
        e(f"s_not_b32 s{sT0}, s{sTS}")
        e(f"v_writelane_b32 v0, s{sT0}, 0")
        e(f"v_writelane_b32 v0, s{sTS+2}, 1")
        e(f"v_mov_b32 v{vT}, 0x100")
        for lane, slot in ((0, 8), (1, 9), (4, 10), (6, 11), (8, 12), (10, 13), (12, 14), (16, 15)):
            e(f"s_mov_b32 s{sT0}, {4*slot}")
            e(f"v_writelane_b32 v{vT}, s{sT0}, {lane}")
        e(f"buffer_atomic_umax v0, v{vT}, s[{S_DBG}:{S_DBG+3}], 0 offen")
    elif diag:
        e(f"s_memrealtime s[{sTS+2}:{sTS+3}]")
        e("s_waitcnt lgkmcnt(0)")
        for n, r in enumerate((sTS, sTS+1, sTS+2, sTS+3)):
            e(f"v_writelane_b32 v0, s{r}, {n}")
        e(f"v_writelane_b32 v0, s{sTS}, 63")
        e(f"s_add_u32 s{S_SM}, s58, {16<<20}")
        e(f"s_addc_u32 s{S_SM+1}, s59, 0")
        e(f"s_and_b32 s{S_SM+1}, s{S_SM+1}, 0xffff")
        e(f"s_mov_b32 s{S_SM+2}, 65536")
        e(f"s_mov_b32 s{S_SM+3}, 0x20000")
        e(f"s_lshl_b32 s{sT0}, s2, 8")
        e(f"v_lshlrev_b32 v{vT}, 2, v{vLane}")
        e(f"buffer_store_dword v0, v{vT}, s[{S_SM}:{S_SM+3}], s{sT0} offen")
    e("s_endpgm")
    for (lab, off, want) in (("L_spin", 0, sTag), ("L_rspin", 128, sNext)):
        e(f"{lab}:")
        e(f"s_mov_b32 s{sSpin}, {1<<17}")
        e(f"{lab}_loop:")
        e(f"buffer_load_dword v{vFlag}, v{vFlagOff}, s[{S_WS}:{S_WS+3}], 0 offen offset:{off} sc1")
        e("s_waitcnt vmcnt(0)")
        e(f"v_readfirstlane_b32 s{sT0}, v{vFlag}")
        e("s_nop 1")
        e(f"s_cmp_eq_u32 s{sT0}, s{want}")
        e(f"s_cbranch_scc1 {lab}_done")
        e(f"s_sub_u32 s{sSpin}, s{sSpin}, 1")
        e(f"s_cmp_lg_u32 s{sSpin}, 0")
        e(f"s_cbranch_scc1 {lab}_loop")
        e(f"s_branch {lab}_done")
    e("L_end:")
    e("s_endpgm")
    body = "\n".join(E.L)
    out = HEADER
    out += (
        "; Wide & Deep forward, one launch, 256 workgroups of 4 waves (one per CU).\n"
        "; Workgroup = 128 batch rows x 50 of the 100 fields (K split in two). Its half of W1 (1600 x 128 bf16) is loaded once\n"
        "; through LDS (DMA + transposing reads) and stays in 400 registers per wave (wave w owns hidden units 32w..32w+31).\n"
        "; Embedding rows are gathered by LDS-DMA into a ring of 64-row tiles and fed to 32x32x16 MFMAs (D = W1^T * E^T).\n"
        "; The partial sums of 64 rows go to the partner workgroup (id ^ 8) through d_ws as bf16; the other 64 rows are finished\n"
        "; here: + partner partial + b1, ReLU, dot with W2, + wide part, sigmoid. Hand-off: sc1 stores, then a flag word on a\n"
        "; private d_ws line holding (old content + 1); the consumer first announces on its own line which value it waits for.\n")
    out += "; Override launch geometry by editing the next line (default: block=256,\n"
    out += f"; @launch grid=(256,1,1) block=(256,1,1) lds={LDS_TOTAL}\n"
    out += f""".amdgcn_target "amdgcn-amd-amdhsa--gfx950"
.text
.globl {NAME}_kernel
.p2align 8
.type {NAME}_kernel,@function
{NAME}_kernel:
{body}
.section .rodata,"a"
.p2align 6
.amdhsa_kernel {NAME}_kernel
  .amdhsa_next_free_vgpr 512
  .amdhsa_next_free_sgpr 102
  .amdhsa_accum_offset 256
  .amdhsa_group_segment_fixed_size 0
  .amdhsa_kernarg_size 96
  .amdhsa_user_sgpr_count 2
  .amdhsa_user_sgpr_kernarg_segment_ptr 1
  .amdhsa_system_sgpr_workgroup_id_x 1
  .amdhsa_float_denorm_mode_32 3
.end_amdhsa_kernel
"""
    if diag:
        out = out.replace("; @launch", f"; STAMPS nst={stamp_next[0]}\n; @launch", 1)
    return out

if __name__ == "__main__":
    kw = {}
    path = None
    for a in sys.argv[1:]:
        if a.endswith(".s"): path = a
        elif a == "diag": kw["diag"] = True
        elif "=" in a:
            n, v = a.split("="); kw[n] = int(v) if v.lstrip("-").isdigit() else v
    s = gen(**kw)
    open(path or "cdna_kernels/" + NAME + ".s", "w").write(s)
```
